```python
import torch

def _softmax(x, axis=-1):
    return torch.softmax(x, dim=axis)

def _gelu(x):
    return torch.nn.functional.gelu(x, approximate='tanh')

def _silu(x):
    return torch.nn.functional.silu(x)

def _sigmoid(x):
    return torch.sigmoid(x)

def _layernorm(x, axis=-1, eps=1e-05):
    m = x.mean(dim=axis, keepdim=True)
    v = x.var(dim=axis, keepdim=True, unbiased=False)
    return (x - m) / torch.sqrt(v + eps)

def _scatter_add(tgt, idx, src, axis=0):
    return tgt.clone().index_add_(axis, idx, src)

def _segment_sum(src, seg, n):
    out = torch.zeros((n,) + src.shape[1:], dtype=src.dtype)
    return out.index_add_(0, seg, src)

def _pad(x, pw):
    flat = tuple((v for pair in reversed(pw) for v in pair))
    return torch.nn.functional.pad(x, flat)
kernel_name = 'standalone__autoregressive_conv_wavernn__speech'

def setup_inputs():

    _w = lambda a: (lambda t: t.to(torch.bfloat16) if t.is_floating_point() else t)(torch.as_tensor(a))
    B, T, D, K = (2, 4000, 512, 5)
    return {'x': _w((lambda *s: torch.randn(*s, dtype=torch.bfloat16) * 0.05)(B, T, D)), 'w': _w((lambda *s: torch.randn(*s, dtype=torch.bfloat16) * 0.05)(K, D, 2 * D))}

def reference(x, w):
    B, T, D = x.shape
    K = w.shape[0]
    dil = 2
    pad = (K - 1) * dil
    xp = _pad(x, ((0, 0), (pad, 0), (0, 0)))
    h = torch.einsum('btd,de->bte', xp[:, 0:T, :], w[0])
    for i in range(1, K):
        h = h + torch.einsum('btd,de->bte', xp[:, i * dil:i * dil + T, :], w[i])
    f, g = (h[..., :D].clone(), h[..., D:].clone())
    return torch.tanh(f) * _sigmoid(g)
```

```python
import sys, argparse

NAME = "standalone__autoregressive_conv_wavernn__speech_kernel"
XBATCH = 4096000
WBYTES = 5242880
WUNIT = 20480
XBASE = 4 * WUNIT
XBUF = 33792
LDS_BYTES = XBASE + 2 * XBUF

class Asm:
    def __init__(self):
        self.L = []
    def __call__(self, s):
        self.L.append(s)
    def text(self):
        return "\n".join(self.L) + "\n"

class DS:
    def __init__(self, A):
        self.A = A
        self.q = []
    def issue(self, text, regs):
        if len(self.q) >= 14:
            self.wait_n(10)
        self.A(text)
        self.q.append(set(regs))
    def wait_n(self, n):
        if len(self.q) > n:
            self.A(f"s_waitcnt lgkmcnt({n})")
            self.q = self.q[len(self.q)-n:] if n > 0 else []
    def need(self, regs):
        regs = set(regs)
        last = -1
        for i, s in enumerate(self.q):
            if s & regs:
                last = i
        if last >= 0:
            self.wait_n(len(self.q) - 1 - last)
    def drain(self):
        self.A("s_waitcnt lgkmcnt(0)")
        self.q = []

ACC0 = 40
def acc(j, nb):
    b = ACC0 + (j*4 + nb)*4
    return b
def areg(n): return f"a[{n}:{n+3}]"
def XF(q): return 4*q
def WF(st, tap): return 48 + st*20 + tap*4
V_W = [1, 2]
V_X0 = 3
V_X1 = [4, 5, 6, 7]
V_OUT = 8
S_K = 30; S_WD = 31; S_XD = 32; S_T = 33

def gen(opt):
    A = Asm()
    A(f"; @launch grid=(256,1,1) block=(512,1,1) lds={LDS_BYTES}")
    A('.amdgcn_target "amdgcn-amd-amdhsa--gfx950"')
    A(".text")
    A(f".globl {NAME}")
    A(".p2align 8")
    A(f".type {NAME},@function")
    A(f"{NAME}:")
    A("s_cmp_ge_u32 s2, 256")
    A("s_cbranch_scc1 L_end")
    A("s_load_dwordx4 s[4:7], s[0:1], 0")
    A("s_load_dwordx2 s[8:9], s[0:1], 16")
    if opt.stamp:
        A("s_load_dwordx2 s[40:41], s[0:1], 32")
        A("s_memtime s[44:45]")
        A("s_memrealtime s[46:47]")
    A("v_lshrrev_b32 v1, 6, v0")
    A("v_and_b32 v0, 63, v0")
    A("s_and_b32 s28, s2, 7")
    A("v_readfirstlane_b32 s24, v1")
    A("s_lshr_b32 s29, s2, 3")
    A("s_lshr_b32 s30, s28, 1")
    A("s_lshl_b32 s30, s30, 3")
    A("s_lshr_b32 s31, s29, 2")
    A("s_add_u32 s30, s30, s31")
    A("s_and_b32 s31, s28, 1")
    A("s_lshl_b32 s31, s31, 2")
    A("s_and_b32 s29, s29, 3")
    A("s_add_u32 s31, s31, s29")
    A("s_lshr_b32 s27, s30, 4")
    A("s_and_b32 s25, s30, 15")
    A("s_lshl_b32 s25, s25, 8")
    A("s_lshl_b32 s26, s31, 6")
    A(f"s_mul_i32 s28, s27, {XBATCH}")
    A("s_cmp_ge_u32 s24, 4")
    A("s_cbranch_scc1 L_loader")

    A("s_setprio %d" % opt.cprio) if opt.cprio else None
    A("s_lshr_b32 s34, s24, 1")
    A("s_and_b32 s35, s24, 1")
    A("v_lshrrev_b32 v10, 4, v0")
    A("v_and_b32 v11, 15, v0")
    A("v_lshrrev_b32 v12, 2, v11")
    A("v_lshl_add_u32 v12, v10, 3, v12")
    A("v_lshlrev_b32 v12, 7, v12")
    A("v_and_b32 v13, 3, v11")
    A("v_lshl_add_u32 v12, v13, 3, v12")
    A("v_lshrrev_b32 v13, 3, v11")
    A("v_and_b32 v14, 1, v10")
    A("v_lshl_or_b32 v13, v14, 1, v13")
    A("s_lshl_b32 s36, s35, 1")
    for p in range(2):
        A(f"s_add_u32 s37, s36, {p}")
        A("v_xor_b32 v14, s37, v13")
        A(f"v_lshl_add_u32 v{V_W[p]}, v14, 5, v12")
    A("s_lshl_b32 s36, s34, 4")
    def xaddr(dst, Rreg):
        A(f"v_lshrrev_b32 v15, 3, v{Rreg}")
        A(f"v_lshlrev_b32 v15, 10, v15")
        A(f"v_and_b32 v16, 7, v{Rreg}")
        A(f"v_lshl_add_u32 v15, v16, 6, v15")
        A(f"v_bfe_u32 v16, v{Rreg}, 2, 1")
        A(f"v_lshlrev_b32 v16, 1, v16")
        A(f"v_xor_b32 v16, v16, v10")
        A(f"v_lshl_add_u32 v15, v16, 4, v15")
        A(f"v_add_u32 v{dst}, {XBASE}, v15")
    A("v_add_u32 v13, s36, v11")
    xaddr(V_X0, 13)
    A("v_add_u32 v13, 2, v13")
    xaddr(17, 13)
    A("v_and_b32 v16, 1, v13")
    A("v_lshlrev_b32 v16, 6, v16")
    A("v_lshl_add_u32 v16, v10, 4, v16")
    A(f"v_add_u32 v16, {XBASE+32768}, v16")
    A("v_cmp_le_u32 vcc, 32, v13")
    for q in range(4):
        A(f"v_add_u32 v18, {q*4096}, v17")
        A(f"v_add_u32 v19, {q*128}, v16")
        A(f"v_cndmask_b32 v{V_X1[q]}, v18, v19, vcc")
    A("v_and_b32 v13, 1, v11")
    A("v_lshrrev_b32 v14, 1, v11")
    A("v_lshl_add_u32 v13, v14, 4, v13")
    A("s_lshl_b32 s36, s34, 7")
    A("s_add_u32 s36, s36, s25")
    A("v_add_u32 v13, s36, v13")
    A("v_lshlrev_b32 v13, 10, v13")
    A("v_and_b32 v14, 1, v10")
    A("v_lshlrev_b32 v14, 5, v14")
    A("v_lshrrev_b32 v15, 1, v10")
    A("v_lshl_add_u32 v14, v15, 4, v14")
    A("s_lshl_b32 s36, s35, 5")
    A("s_add_u32 s36, s36, s26")
    A("s_lshl_b32 s36, s36, 1")
    A("v_add_u32 v13, s36, v13")
    A(f"v_add_u32 v{V_OUT}, v13, v14")
    for r in range(128):
        A(f"v_mov_b32 v{ACC0+r}, 0")
    A("s_waitcnt lgkmcnt(0)")
    A("s_add_u32 s20, s8, s28")
    A("s_addc_u32 s21, s9, 0")
    A(f"s_mov_b32 s22, {XBATCH}")
    A("s_mov_b32 s23, 0x20000")
    A(f"s_mov_b32 s{S_K}, 0")
    A(f"s_mov_b32 s{S_WD}, {2*WUNIT}")
    A(f"s_mov_b32 s29, {-(XBUF+512)}")

    ds = DS(A)
    def wreads(phi_next):
        p = phi_next & 1; half = (phi_next >> 1) & 1; st = phi_next & 1
        out = []
        for tap in range(5):
            for h in range(2):
                r = WF(st, tap) + 2*h
                off = half*WUNIT + tap*4096 + h*512
                out.append((f"ds_read_b64_tr_b16 a[{r}:{r+1}], v{V_W[p]} offset:{off}", [('a', r), ('a', r+1)]))
        return out
    def xread(q):
        r = XF(q)
        regs = [('a', r+i) for i in range(4)]
        if q < 8:
            return (f"ds_read_b128 a[{r}:{r+3}], v{V_X0} offset:{q*4096}", regs)
        return (f"ds_read_b128 a[{r}:{r+3}], v{V_X1[q-8]} offset:0", regs)

    def phase(phi, wnext=True, xreload=False, barrier=False, extra=None):
        nb = phi & 3; st = phi & 1
        if barrier:
            ds.drain()
            A("s_barrier")
        post = {n: [] for n in range(40)}
        if wnext:
            wr = wreads(phi+1)
            for i, rd in enumerate(wr):
                post[2*i].append(rd)
        if xreload:
            for q in range(8): post[5*q].append(xread(q))
            for q in range(8, 12): post[28+q].append(xread(q))
        for j in range(8):
            for tap in range(5):
                n = 5*j + tap
                wf = WF(st, tap); xf = XF(j+tap)
                ds.need([('a', wf+i) for i in range(4)] + [('a', xf+i) for i in range(4)])
                a = acc(j, nb)
                A(f"v_mfma_f32_16x16x32_bf16 v[{a}:{a+3}], {areg(wf)}, {areg(xf)}, v[{a}:{a+3}]")
                for (t, regs) in post[n]:
                    ds.issue(t, regs)
                if extra and n in extra:
                    for t in extra[n]: A(t)

    if opt.stamp:
        A("s_memtime s[48:49]")
    A("s_barrier")
    if opt.stamp:
        A("s_memtime s[50:51]")
        A("s_waitcnt lgkmcnt(0)")
    wr = wreads(0)
    order = []
    for tap in range(5):
        order.append(xread(tap)); order += wr[2*tap:2*tap+2]
    for q in range(5, 12): order.append(xread(q))
    for (t, regs) in order: ds.issue(t, regs)
    phase(0)
    A(".p2align 6")
    A("L_cloop:")
    xupd = {3: [f"s_bitcmp1_b32 s{S_K}, 1",
                f"s_cselect_b32 s{S_T}, s29, {XBUF-512}",
                f"s_bitcmp1_b32 s{S_K}, 0",
                f"s_cselect_b32 s{S_XD}, s{S_T}, 512"],
            21: [f"v_add_u32 v{V_X0}, s{S_XD}, v{V_X0}"],
            23: [f"v_add_u32 v{V_X1[0]}, s{S_XD}, v{V_X1[0]}"],
            25: [f"v_add_u32 v{V_X1[1]}, s{S_XD}, v{V_X1[1]}"],
            27: [f"v_add_u32 v{V_X1[2]}, s{S_XD}, v{V_X1[2]}"],
            29: [f"v_add_u32 v{V_X1[3]}, s{S_XD}, v{V_X1[3]}"]}
    phase(1, barrier=True, extra=xupd)
    phase(2, extra={25: [f"v_add_u32 v{V_W[0]}, s{S_WD}, v{V_W[0]}"]})
    phase(3, barrier=True, xreload=True,
          extra={25: [f"v_add_u32 v{V_W[1]}, s{S_WD}, v{V_W[1]}"],
                 27: [f"s_sub_u32 s{S_WD}, 0, s{S_WD}", f"s_add_u32 s{S_K}, s{S_K}, 1"]})
    phase(4, extra={37: [f"s_cmp_lt_u32 s{S_K}, 15"]})
    A("s_cbranch_scc1 L_cloop")
    phase(61, barrier=True)
    phase(62)
    phase(63, wnext=False)
    if opt.stamp:
        ds.drain()
        A("s_memtime s[52:53]")
    A("; ---- epilogue")
    A("s_mov_b32 s36, 0x4038aa3b")
    A("s_mov_b32 s37, 0x4038aa3b")
    A("s_mov_b32 s38, 0xbfb8aa3b")
    A("s_mov_b32 s39, 0xbfb8aa3b")
    A("s_mov_b32 s42, 0x7fffffff")
    A("s_nop 7")
    TB = 10
    for j in range(8):
        PB = 20 + 4*(j & 1)
        pairs = []
        for p in range(2):
            for h in range(2):
                f = acc(j, p) + 2*h; g = acc(j, 2+p) + 2*h
                pairs.append((f, g, TB + 2*(2*p+h), PB + 2*p + h))
        for (f, g, t, o) in pairs: A(f"v_pk_mul_f32 v[{t}:{t+1}], v[{f}:{f+1}], s[36:37]")
        for (f, g, t, o) in pairs: A(f"v_pk_mul_f32 v[{g}:{g+1}], v[{g}:{g+1}], s[38:39]")
        for (f, g, t, o) in pairs:
            A(f"v_exp_f32 v{t}, -|v{t}|"); A(f"v_exp_f32 v{t+1}, -|v{t+1}|")
        for (f, g, t, o) in pairs:
            A(f"v_exp_f32 v{g}, v{g}"); A(f"v_exp_f32 v{g+1}, v{g+1}")
        for (f, g, t, o) in pairs: A(f"v_pk_add_f32 v[{g}:{g+1}], v[{g}:{g+1}], 1.0 op_sel_hi:[1,0]")
        for (f, g, t, o) in pairs: A(f"v_pk_fma_f32 v[{g}:{g+1}], v[{t}:{t+1}], v[{g}:{g+1}], v[{g}:{g+1}]")
        for (f, g, t, o) in pairs:
            A(f"v_rcp_f32 v{g}, v{g}"); A(f"v_rcp_f32 v{g+1}, v{g+1}")
        for (f, g, t, o) in pairs: A(f"v_pk_add_f32 v[{t}:{t+1}], v[{t}:{t+1}], 1.0 op_sel_hi:[1,0] neg_lo:[1,0] neg_hi:[1,0]")
        for (f, g, t, o) in pairs: A(f"v_pk_mul_f32 v[{t}:{t+1}], v[{t}:{t+1}], v[{g}:{g+1}]")
        for (f, g, t, o) in pairs:
            A(f"v_bfi_b32 v{t}, s42, v{t}, v{f}"); A(f"v_bfi_b32 v{t+1}, s42, v{t+1}, v{f+1}")
        for (f, g, t, o) in pairs: A(f"v_cvt_pk_bf16_f32 v{o}, v{t}, v{t+1}")
        if j >= 2 and j % 2 == 0:
            A(f"s_mov_b32 s43, {4096*(j//2)}")
        else:
            A("s_nop 0")
        A("s_nop 0")
        A(f"v_permlane16_swap_b32 v{PB}, v{PB+2}")
        A(f"v_permlane16_swap_b32 v{PB+1}, v{PB+3}")
        so = "0" if j < 2 else "s43"
        A(f"buffer_store_dwordx4 v[{PB}:{PB+3}], v{V_OUT}, s[20:23], {so} offen offset:{2048*(j&1)}")
    if opt.stamp:
        A("s_memtime s[54:55]")
        A("s_waitcnt vmcnt(0)")
        A("s_memtime s[56:57]")
        A("s_memrealtime s[58:59]")
        A("s_waitcnt lgkmcnt(0)")
        A("s_mov_b32 s60, s40"); A("s_mov_b32 s61, s41"); A("s_mov_b32 s62, 0x10000000"); A("s_mov_b32 s63, 0x20000")
        A("s_lshl_b32 s43, s2, 2"); A("s_add_u32 s43, s43, s24"); A("s_lshl_b32 s43, s43, 6")
        A("v_mov_b32 v9, s43")
        A("s_mov_b64 exec, 1")
        for i in range(4):
            for k in range(4): A(f"v_mov_b32 v{12+k}, s{44+4*i+k}")
            A(f"buffer_store_dwordx4 v[12:15], v9, s[60:63], 0 offen offset:{16*i}")
            A("s_nop 1")
    A("s_endpgm")

    A("L_loader:")
    A("s_sub_u32 s34, s24, 4")
    A("v_lshrrev_b32 v10, 3, v0")
    A("v_and_b32 v11, 7, v0")
    A("v_lshrrev_b32 v12, 1, v11")
    A("v_bfe_u32 v13, v10, 1, 1")
    A("s_and_b32 s35, s34, 1")
    A("s_lshl_b32 s35, s35, 1")
    A("v_or_b32 v13, s35, v13")
    A("v_xor_b32 v12, v12, v13")
    A("v_lshlrev_b32 v12, 5, v12")
    A("v_and_b32 v11, 1, v11")
    A("v_lshl_add_u32 v12, v11, 4, v12")
    A("s_lshl_b32 s35, s34, 3")
    A("v_add_u32 v10, s35, v10")
    A("v_lshl_add_u32 v12, v10, 11, v12")
    A("s_lshl_b32 s35, s26, 1")
    A("v_add_u32 v1, s35, v12")
    A("v_lshrrev_b32 v10, 5, v0")
    A("v_bfe_u32 v11, v0, 2, 3")
    A("v_and_b32 v12, 3, v0")
    A("v_lshrrev_b32 v13, 2, v11")
    A("v_lshlrev_b32 v13, 1, v13")
    A("v_xor_b32 v13, v13, v12")
    A("v_lshlrev_b32 v14, 6, v10")
    A("v_lshl_add_u32 v15, v13, 4, v14")
    A("v_lshl_add_u32 v16, v12, 4, v14")
    A("v_and_b32 v13, 1, v11")
    A("v_lshrrev_b32 v17, 1, v11")
    A("v_lshl_add_u32 v13, v17, 4, v13")
    A("s_lshl_b32 s35, s34, 6")
    A("s_add_u32 s35, s35, s25")
    A("s_sub_u32 s35, s35, 8")
    A("v_add_u32 v13, s35, v13")
    A("v_lshlrev_b32 v17, 10, v13")
    A("v_add_u32 v17, v17, v15")
    A("v_add_u32 v3, 0x2000, v17")
    A("v_mov_b32 v18, 0x80000000")
    A("v_cmp_gt_i32 vcc, 0, v13")
    A("s_add_u32 s35, s25, 248")
    A("v_add_u32 v11, s35, v11")
    A("v_cndmask_b32 v2, v17, v18, vcc")
    A("v_lshlrev_b32 v11, 10, v11")
    A("v_add_u32 v4, v11, v16")
    A("s_lshl_b32 s35, s34, 4")
    A("s_mov_b64 s[36:37], 0xffff")
    A("s_lshl_b64 s[36:37], s[36:37], s35")
    A("s_lshl_b32 s38, s34, 10")
    A("s_waitcnt lgkmcnt(0)")
    A("s_add_u32 s12, s4, s28")
    A("s_addc_u32 s13, s5, 0")
    A(f"s_mov_b32 s14, {XBATCH}")
    A("s_mov_b32 s15, 0x20000")
    A("s_mov_b32 s16, s6")
    A("s_mov_b32 s17, s7")
    A(f"s_mov_b32 s18, {WBYTES}")
    A("s_mov_b32 s19, 0x20000")

    vq = []
    def w_issue(u, static=True):
        for tap in range(5):
            if tap == 0:
                A("s_mov_b32 m0, s45")
                A("s_mov_b32 s48, s44")
            else:
                A("s_add_u32 m0, m0, 4096")
                A("s_add_u32 s48, s48, 0x100000")
            A(f"buffer_load_dwordx4 v1, s[16:19], s48 offen{opt.wpol} lds")
            vq.append(('W', u))
    def w_advance(u):
        if u & 1: A(f"s_add_u32 s44, s44, {65536-1024}")
        else: A("s_add_u32 s44, s44, 1024")
        if (u & 3) == 3: A(f"s_sub_u32 s45, s45, {3*WUNIT}")
        else: A(f"s_add_u32 s45, s45, {WUNIT}")
    def x_issue(c, part):
        qs = range(0, 4) if part == 0 else range(4, 8)
        for q in qs:
            A(f"s_add_u32 m0, s47, {q*4096}")
            if q < 4:
                A(f"s_add_u32 s48, s46, {2*q*1024}")
                A(f"buffer_load_dwordx4 v2, s[12:15], s48 offen{opt.xpol} lds")
            else:
                A(f"s_add_u32 s48, s46, {(2*q-8)*1024}")
                A(f"buffer_load_dwordx4 v3, s[12:15], s48 offen{opt.xpol} lds")
            vq.append(('X', c))
        if part == 1:
            A(f"s_sub_u32 m0, s47, s38")
            A(f"s_add_u32 m0, m0, 32768")
            A("s_mov_b64 exec, s[36:37]")
            A(f"buffer_load_dwordx4 v4, s[12:15], s46 offen{opt.xpol} lds")
            A("s_mov_b64 exec, -1")
            vq.append(('X', c))
    def x_advance():
        A("s_add_u32 s46, s46, 128")
        A("s_xor_b32 s47, s47, s49")
    def need_n(u):
        need = [('W', u)]
        if u % 4 == 0: need.append(('X', u//4))
        last = -1
        for i, t in enumerate(vq):
            if t in need: last = i
        return len(vq) - 1 - last if last >= 0 else None
    def wait_for(u, n=None):
        nn = need_n(u)
        if n is None: n = nn
        assert nn is None or n <= nn
        if n is not None:
            A(f"s_waitcnt vmcnt({n})")
            del vq[:len(vq)-n]
    A("s_mov_b32 s44, 0")
    A("s_mov_b32 s45, s38")
    A("s_mov_b32 s46, 0")
    A(f"s_add_u32 s47, s38, {XBASE}")
    A(f"s_add_u32 s49, s38, {XBASE+XBUF}")
    A("s_xor_b32 s49, s49, s47")
    x_issue(0, 0); x_issue(0, 1); x_advance()
    for u in range(4):
        w_issue(u); w_advance(u)
    x_issue(1, 0); x_issue(1, 1); x_advance()
    import copy
    def interval(u, emit=True, nfix=None):
        wait_for(u, nfix)
        A("s_barrier")
        if 1 <= u <= 28:
            w_issue(u+3); w_advance(u+3)
        if u % 4 == 3 and u//4 + 2 <= 7:
            x_issue(u//4+2, 0)
        if u % 4 == 0 and u >= 4 and u//4 + 1 <= 7:
            x_issue(u//4+1, 1); x_advance()
    saveL = list(A.L); savevq = list(vq)
    Ns = {}
    for u in range(32):
        Ns[u] = need_n(u)
        interval(u)
    A.L = saveL; vq[:] = savevq
    interval(0)
    Nl = {m: min(Ns[u] for u in range(1, 25) if u % 4 == m) for m in range(4)}
    A("s_mov_b32 s50, 0")
    A("L_lloop:")
    for u in range(1, 5):
        interval(u, nfix=Nl[u % 4])
    A("s_add_u32 s50, s50, 1")
    A("s_cmp_lt_u32 s50, 6")
    A("s_cbranch_scc1 L_lloop")
    saveL = list(A.L)
    for u in range(5, 25): interval(u, nfix=Nl[u % 4])
    A.L = saveL
    for u in range(25, 32): interval(u)
    A("L_end:")
    A("s_endpgm")
    A('.section .rodata,"a"')
    A(".p2align 6")
    A(f".amdhsa_kernel {NAME}")
    A("  .amdhsa_next_free_vgpr 256")
    A("  .amdhsa_next_free_sgpr 72")
    A("  .amdhsa_accum_offset 168")
    A("  .amdhsa_group_segment_fixed_size 0")
    A("  .amdhsa_kernarg_size 40")
    A("  .amdhsa_user_sgpr_count 2")
    A("  .amdhsa_user_sgpr_kernarg_segment_ptr 1")
    A("  .amdhsa_system_sgpr_workgroup_id_x 1")
    A("  .amdhsa_float_denorm_mode_32 3")
    A(".end_amdhsa_kernel")
    if opt.meta:
        A(f""".amdgpu_metadata
---
amdhsa.version: [1, 2]
amdhsa.kernels:
  - .name: {NAME}
    .symbol: {NAME}.kd
    .kernarg_segment_size: 40
    .kernarg_segment_align: 8
    .group_segment_fixed_size: 0
    .private_segment_fixed_size: 0
    .wavefront_size: 64
    .sgpr_count: 72
    .vgpr_count: 256
    .max_flat_workgroup_size: 512
    .args:
      - {{.name: kernargs, .size: 40, .offset: 0, .value_kind: by_value}}
...
.end_amdgpu_metadata""")
    sys.stderr.write(f"loader waits: {Ns}\nloop: {Nl}\n")
    return A.text()

if __name__ == "__main__":
    ap = argparse.ArgumentParser()
    ap.add_argument("-o", default="/dev/stdout")
    ap.add_argument("--meta", action="store_true")
    ap.add_argument("--stamp", action="store_true")
    ap.add_argument("--cprio", type=int, default=0)
    ap.add_argument("--wpol", default="")
    ap.add_argument("--xpol", default="")
    opt = ap.parse_args()
    if opt.wpol: opt.wpol = " " + opt.wpol
    if opt.xpol: opt.xpol = " " + opt.xpol
    open(opt.o, "w").write(gen(opt))
```

```python
import sys, argparse

NAME = "standalone__autoregressive_conv_wavernn__speech_kernel"
XBATCH = 4096000
WBYTES = 5242880
WUNIT = 20480
XBASE = 4 * WUNIT
XBUF = 33792
LDS_BYTES = XBASE + 2 * XBUF

class Asm:
    def __init__(self):
        self.L = []
    def __call__(self, s):
        self.L.append(s)
    def text(self):
        return "\n".join(self.L) + "\n"

class DS:
    def __init__(self, A):
        self.A = A
        self.q = []
    def issue(self, text, regs):
        if len(self.q) >= 14:
            self.wait_n(10)
        self.A(text)
        self.q.append(set(regs))
    def wait_n(self, n):
        if len(self.q) > n:
            self.A(f"s_waitcnt lgkmcnt({n})")
            self.q = self.q[len(self.q)-n:] if n > 0 else []
    def need(self, regs):
        regs = set(regs)
        last = -1
        for i, s in enumerate(self.q):
            if s & regs:
                last = i
        if last >= 0:
            self.wait_n(len(self.q) - 1 - last)
    def drain(self):
        self.A("s_waitcnt lgkmcnt(0)")
        self.q = []

ACC0 = 40
def acc(j, nb):
    b = ACC0 + (j*4 + nb)*4
    return b
def areg(n): return f"a[{n}:{n+3}]"
def XF(q): return 4*q
def WF(st, tap): return 48 + st*20 + tap*4
V_W = [1, 2]
V_X0 = 3
V_X1 = [4, 5, 6, 7]
V_OUT = 8
S_K = 30; S_WD = 31; S_XD = 32; S_T = 33

def gen(opt):
    A = Asm()
    A(f"; @launch grid=(256,1,1) block=(512,1,1) lds={LDS_BYTES}")
    A('.amdgcn_target "amdgcn-amd-amdhsa--gfx950"')
    A(".text")
    A(f".globl {NAME}")
    A(".p2align 8")
    A(f".type {NAME},@function")
    A(f"{NAME}:")
    A("s_cmp_ge_u32 s2, 256")
    A("s_cbranch_scc1 L_end")
    A("s_load_dwordx4 s[4:7], s[0:1], 0")
    A("s_load_dwordx2 s[8:9], s[0:1], 16")
    if opt.stamp:
        A("s_load_dwordx2 s[40:41], s[0:1], %d" % (24 if opt.dbgstamp else 32))
        A("s_memtime s[44:45]")
        A("s_memrealtime s[46:47]")
    A("v_lshrrev_b32 v1, 6, v0")
    A("v_and_b32 v0, 63, v0")
    A("s_and_b32 s28, s2, 7")
    A("v_readfirstlane_b32 s24, v1")
    A("s_lshr_b32 s29, s2, 3")
    A("s_lshr_b32 s30, s28, 1")
    A("s_lshl_b32 s30, s30, 3")
    A("s_lshr_b32 s31, s29, 2")
    A("s_add_u32 s30, s30, s31")
    A("s_and_b32 s31, s28, 1")
    A("s_lshl_b32 s31, s31, 2")
    A("s_and_b32 s29, s29, 3")
    A("s_add_u32 s31, s31, s29")
    A("s_lshr_b32 s27, s30, 4")
    A("s_and_b32 s25, s30, 15")
    A("s_lshl_b32 s25, s25, 8")
    A("s_lshl_b32 s26, s31, 6")
    A(f"s_mul_i32 s28, s27, {XBATCH}")
    A("s_cmp_ge_u32 s24, 4")
    A("s_cbranch_scc1 L_loader")

    A("s_setprio %d" % opt.cprio) if opt.cprio else None
    A("s_lshr_b32 s34, s24, 1")
    A("s_and_b32 s35, s24, 1")
    A("v_lshrrev_b32 v10, 4, v0")
    A("v_and_b32 v11, 15, v0")
    A("v_lshrrev_b32 v12, 2, v11")
    A("v_lshl_add_u32 v12, v10, 3, v12")
    A("v_lshlrev_b32 v12, 7, v12")
    A("v_and_b32 v13, 3, v11")
    A("v_lshl_add_u32 v12, v13, 3, v12")
    A("v_lshrrev_b32 v13, 3, v11")
    A("v_and_b32 v14, 1, v10")
    A("v_lshl_or_b32 v13, v14, 1, v13")
    A("s_lshl_b32 s36, s35, 1")
    for p in range(2):
        A(f"s_add_u32 s37, s36, {p}")
        A("v_xor_b32 v14, s37, v13")
        A(f"v_lshl_add_u32 v{V_W[p]}, v14, 5, v12")
    A("s_lshl_b32 s36, s34, 4")
    def xaddr(dst, Rreg):
        A(f"v_lshrrev_b32 v15, 3, v{Rreg}")
        A(f"v_lshlrev_b32 v15, 10, v15")
        A(f"v_and_b32 v16, 7, v{Rreg}")
        A(f"v_lshl_add_u32 v15, v16, 6, v15")
        A(f"v_bfe_u32 v16, v{Rreg}, 2, 1")
        A(f"v_lshlrev_b32 v16, 1, v16")
        A(f"v_xor_b32 v16, v16, v10")
        A(f"v_lshl_add_u32 v15, v16, 4, v15")
        A(f"v_add_u32 v{dst}, {XBASE}, v15")
    A("v_add_u32 v13, s36, v11")
    xaddr(V_X0, 13)
    A("v_add_u32 v13, 2, v13")
    xaddr(17, 13)
    A("v_and_b32 v16, 1, v13")
    A("v_lshlrev_b32 v16, 6, v16")
    A("v_lshl_add_u32 v16, v10, 4, v16")
    A(f"v_add_u32 v16, {XBASE+32768}, v16")
    A("v_cmp_le_u32 vcc, 32, v13")
    for q in range(4):
        A(f"v_add_u32 v18, {q*4096}, v17")
        A(f"v_add_u32 v19, {q*128}, v16")
        A(f"v_cndmask_b32 v{V_X1[q]}, v18, v19, vcc")
    A("v_and_b32 v13, 1, v11")
    A("v_lshrrev_b32 v14, 1, v11")
    A("v_lshl_add_u32 v13, v14, 4, v13")
    A("s_lshl_b32 s36, s34, 7")
    A("s_add_u32 s36, s36, s25")
    A("v_add_u32 v13, s36, v13")
    A("v_lshlrev_b32 v13, 10, v13")
    A("v_and_b32 v14, 1, v10")
    A("v_lshlrev_b32 v14, 5, v14")
    A("v_lshrrev_b32 v15, 1, v10")
    A("v_lshl_add_u32 v14, v15, 4, v14")
    A("s_lshl_b32 s36, s35, 5")
    A("s_add_u32 s36, s36, s26")
    A("s_lshl_b32 s36, s36, 1")
    A("v_add_u32 v13, s36, v13")
    A(f"v_add_u32 v{V_OUT}, v13, v14")
    for r in range(128):
        A(f"v_mov_b32 v{ACC0+r}, 0")
    A("s_waitcnt lgkmcnt(0)")
    A("s_add_u32 s20, s8, s28")
    A("s_addc_u32 s21, s9, 0")
    A(f"s_mov_b32 s22, {XBATCH}")
    A("s_mov_b32 s23, 0x20000")
    A(f"s_mov_b32 s{S_K}, 0")
    A(f"s_mov_b32 s{S_WD}, {2*WUNIT}")
    A(f"s_mov_b32 s29, {-(XBUF+512)}")

    ds = DS(A)
    def wreads(phi_next):
        p = phi_next & 1; half = (phi_next >> 1) & 1; st = phi_next & 1
        out = []
        for tap in range(5):
            for h in range(2):
                r = WF(st, tap) + 2*h
                off = half*WUNIT + tap*4096 + h*512
                out.append((f"ds_read_b64_tr_b16 a[{r}:{r+1}], v{V_W[p]} offset:{off}", [('a', r), ('a', r+1)]))
        return out
    def xread(q):
        r = XF(q)
        regs = [('a', r+i) for i in range(4)]
        if q < 8:
            return (f"ds_read_b128 a[{r}:{r+3}], v{V_X0} offset:{q*4096}", regs)
        return (f"ds_read_b128 a[{r}:{r+3}], v{V_X1[q-8]} offset:0", regs)

    def phase(phi, wnext=True, xreload=False, barrier=False, extra=None):
        nb = phi & 3; st = phi & 1
        if barrier:
            ds.drain()
            A("s_barrier")
        post = {n: [] for n in range(40)}
        if wnext:
            wr = wreads(phi+1)
            for i, rd in enumerate(wr):
                post[2*i].append(rd)
        if xreload:
            for q in range(8): post[5*q].append(xread(q))
            for q in range(8, 12): post[28+q].append(xread(q))
        for j in range(8):
            for tap in range(5):
                n = 5*j + tap
                wf = WF(st, tap); xf = XF(j+tap)
                ds.need([('a', wf+i) for i in range(4)] + [('a', xf+i) for i in range(4)])
                a = acc(j, nb)
                A(f"v_mfma_f32_16x16x32_bf16 v[{a}:{a+3}], {areg(wf)}, {areg(xf)}, v[{a}:{a+3}]")
                for (t, regs) in post[n]:
                    ds.issue(t, regs)
                if extra and n in extra:
                    for t in extra[n]: A(t)

    if opt.stamp:
        A("s_memtime s[48:49]")
    A("s_barrier")
    if opt.stamp:
        A("s_memtime s[50:51]")
        A("s_waitcnt lgkmcnt(0)")
    wr = wreads(0)
    order = []
    for tap in range(5):
        order.append(xread(tap)); order += wr[2*tap:2*tap+2]
    for q in range(5, 12): order.append(xread(q))
    for (t, regs) in order: ds.issue(t, regs)
    phase(0)
    A(".p2align 6")
    A("L_cloop:")
    xupd = {3: [f"s_bitcmp1_b32 s{S_K}, 1",
                f"s_cselect_b32 s{S_T}, s29, {XBUF-512}",
                f"s_bitcmp1_b32 s{S_K}, 0",
                f"s_cselect_b32 s{S_XD}, s{S_T}, 512"],
            21: [f"v_add_u32 v{V_X0}, s{S_XD}, v{V_X0}"],
            23: [f"v_add_u32 v{V_X1[0]}, s{S_XD}, v{V_X1[0]}"],
            25: [f"v_add_u32 v{V_X1[1]}, s{S_XD}, v{V_X1[1]}"],
            27: [f"v_add_u32 v{V_X1[2]}, s{S_XD}, v{V_X1[2]}"],
            29: [f"v_add_u32 v{V_X1[3]}, s{S_XD}, v{V_X1[3]}"]}
    phase(1, barrier=True, extra=xupd)
    phase(2, extra={25: [f"v_add_u32 v{V_W[0]}, s{S_WD}, v{V_W[0]}"]})
    phase(3, barrier=True, xreload=True,
          extra={25: [f"v_add_u32 v{V_W[1]}, s{S_WD}, v{V_W[1]}"],
                 27: [f"s_sub_u32 s{S_WD}, 0, s{S_WD}", f"s_add_u32 s{S_K}, s{S_K}, 1"]})
    phase(4, extra={37: [f"s_cmp_lt_u32 s{S_K}, 15"]})
    A("s_cbranch_scc1 L_cloop")
    phase(61, barrier=True)
    phase(62)
    phase(63, wnext=False)
    if opt.stamp:
        ds.drain()
        A("s_memtime s[52:53]")
    A("; ---- epilogue")
    A("s_mov_b32 s36, 0x4038aa3b")
    A("s_mov_b32 s37, 0x4038aa3b")
    A("s_mov_b32 s38, 0xbfb8aa3b")
    A("s_mov_b32 s39, 0xbfb8aa3b")
    A("s_mov_b32 s42, 0x7fffffff")
    A("s_nop 7")
    TB = 10
    for j in range(8):
        PB = 20 + 4*(j & 1)
        pairs = []
        for p in range(2):
            for h in range(2):
                f = acc(j, p) + 2*h; g = acc(j, 2+p) + 2*h
                pairs.append((f, g, TB + 2*(2*p+h), PB + 2*p + h))
        for (f, g, t, o) in pairs: A(f"v_pk_mul_f32 v[{t}:{t+1}], v[{f}:{f+1}], s[36:37]")
        for (f, g, t, o) in pairs: A(f"v_pk_mul_f32 v[{g}:{g+1}], v[{g}:{g+1}], s[38:39]")
        for (f, g, t, o) in pairs:
            A(f"v_exp_f32 v{t}, -|v{t}|"); A(f"v_exp_f32 v{t+1}, -|v{t+1}|")
        for (f, g, t, o) in pairs:
            A(f"v_exp_f32 v{g}, v{g}"); A(f"v_exp_f32 v{g+1}, v{g+1}")
        for (f, g, t, o) in pairs: A(f"v_pk_add_f32 v[{g}:{g+1}], v[{g}:{g+1}], 1.0 op_sel_hi:[1,0]")
        for (f, g, t, o) in pairs: A(f"v_pk_fma_f32 v[{g}:{g+1}], v[{t}:{t+1}], v[{g}:{g+1}], v[{g}:{g+1}]")
        for (f, g, t, o) in pairs:
            A(f"v_rcp_f32 v{g}, v{g}"); A(f"v_rcp_f32 v{g+1}, v{g+1}")
        for (f, g, t, o) in pairs: A(f"v_pk_add_f32 v[{t}:{t+1}], v[{t}:{t+1}], 1.0 op_sel_hi:[1,0] neg_lo:[1,0] neg_hi:[1,0]")
        for (f, g, t, o) in pairs: A(f"v_pk_mul_f32 v[{t}:{t+1}], v[{t}:{t+1}], v[{g}:{g+1}]")
        for (f, g, t, o) in pairs:
            A(f"v_bfi_b32 v{t}, s42, v{t}, v{f}"); A(f"v_bfi_b32 v{t+1}, s42, v{t+1}, v{f+1}")
        for (f, g, t, o) in pairs: A(f"v_cvt_pk_bf16_f32 v{o}, v{t}, v{t+1}")
        if j >= 2 and j % 2 == 0:
            A(f"s_mov_b32 s43, {4096*(j//2)}")
        else:
            A("s_nop 0")
        A("s_nop 0")
        A(f"v_permlane16_swap_b32 v{PB}, v{PB+2}")
        A(f"v_permlane16_swap_b32 v{PB+1}, v{PB+3}")
        so = "0" if j < 2 else "s43"
        A(f"buffer_store_dwordx4 v[{PB}:{PB+3}], v{V_OUT}, s[20:23], {so} offen offset:{2048*(j&1)}")
    if opt.stamp:
        A("s_memtime s[54:55]")
        A("s_waitcnt vmcnt(0)")
        A("s_memtime s[56:57]")
        A("s_memrealtime s[58:59]")
        A("s_waitcnt lgkmcnt(0)")
        if opt.dbgstamp:
            A("s_sub_u32 s60, s48, s44")
            A("s_sub_u32 s61, s50, s48")
            A("s_sub_u32 s62, s52, s50")
            A("s_sub_u32 s63, s54, s52")
            A("s_sub_u32 s64, s56, s54")
            A("s_sub_u32 s65, s56, s44")
            A("s_sub_u32 s66, s58, s46")
            A("s_mov_b32 s67, s46")
            A("s_cmp_lg_u32 s24, 0")
            A("s_cbranch_scc1 L_nostamp")
            A("s_mov_b32 s43, 0")
            A("s_cmp_eq_u32 s2, 0")
            A("s_cbranch_scc1 L_dostamp")
            A("s_mov_b32 s43, 32")
            A("s_cmp_eq_u32 s2, 133")
            A("s_cbranch_scc0 L_nostamp")
            A("L_dostamp:")
            A("s_mov_b32 s68, s40"); A("s_mov_b32 s69, s41"); A("s_mov_b32 s70, 256"); A("s_mov_b32 s71, 0x20000")
            A("v_mov_b32 v9, s43")
            A("s_mov_b64 exec, 1")
            for i in range(2):
                for k in range(4): A(f"v_mov_b32 v{12+k}, s{60+4*i+k}")
                A(f"buffer_store_dwordx4 v[12:15], v9, s[68:71], 0 offen offset:{16*i}")
                A("s_nop 1")
            A("L_nostamp:")
        else:
            A("s_mov_b32 s60, s40"); A("s_mov_b32 s61, s41"); A("s_mov_b32 s62, 0x10000000"); A("s_mov_b32 s63, 0x20000")
            A("s_lshl_b32 s43, s2, 2"); A("s_add_u32 s43, s43, s24"); A("s_lshl_b32 s43, s43, 6")
            A("v_mov_b32 v9, s43")
            A("s_mov_b64 exec, 1")
            for i in range(4):
                for k in range(4): A(f"v_mov_b32 v{12+k}, s{44+4*i+k}")
                A(f"buffer_store_dwordx4 v[12:15], v9, s[60:63], 0 offen offset:{16*i}")
                A("s_nop 1")
    A("s_endpgm")

    A("L_loader:")
    A("s_sub_u32 s34, s24, 4")
    A("v_lshrrev_b32 v10, 3, v0")
    A("v_and_b32 v11, 7, v0")
    A("v_lshrrev_b32 v12, 1, v11")
    A("v_bfe_u32 v13, v10, 1, 1")
    A("s_and_b32 s35, s34, 1")
    A("s_lshl_b32 s35, s35, 1")
    A("v_or_b32 v13, s35, v13")
    A("v_xor_b32 v12, v12, v13")
    A("v_lshlrev_b32 v12, 5, v12")
    A("v_and_b32 v11, 1, v11")
    A("v_lshl_add_u32 v12, v11, 4, v12")
    A("s_lshl_b32 s35, s34, 3")
    A("v_add_u32 v10, s35, v10")
    A("v_lshl_add_u32 v12, v10, 11, v12")
    A("s_lshl_b32 s35, s26, 1")
    A("v_add_u32 v1, s35, v12")
    A("v_lshrrev_b32 v10, 5, v0")
    A("v_bfe_u32 v11, v0, 2, 3")
    A("v_and_b32 v12, 3, v0")
    A("v_lshrrev_b32 v13, 2, v11")
    A("v_lshlrev_b32 v13, 1, v13")
    A("v_xor_b32 v13, v13, v12")
    A("v_lshlrev_b32 v14, 6, v10")
    A("v_lshl_add_u32 v15, v13, 4, v14")
    A("v_lshl_add_u32 v16, v12, 4, v14")
    A("v_and_b32 v13, 1, v11")
    A("v_lshrrev_b32 v17, 1, v11")
    A("v_lshl_add_u32 v13, v17, 4, v13")
    A("s_lshl_b32 s35, s34, 6")
    A("s_add_u32 s35, s35, s25")
    A("s_sub_u32 s35, s35, 8")
    A("v_add_u32 v13, s35, v13")
    A("v_lshlrev_b32 v17, 10, v13")
    A("v_add_u32 v17, v17, v15")
    A("v_add_u32 v3, 0x2000, v17")
    A("v_mov_b32 v18, 0x80000000")
    A("v_cmp_gt_i32 vcc, 0, v13")
    A("s_add_u32 s35, s25, 248")
    A("v_add_u32 v11, s35, v11")
    A("v_cndmask_b32 v2, v17, v18, vcc")
    A("v_lshlrev_b32 v11, 10, v11")
    A("v_add_u32 v4, v11, v16")
    A("s_lshl_b32 s35, s34, 4")
    A("s_mov_b64 s[36:37], 0xffff")
    A("s_lshl_b64 s[36:37], s[36:37], s35")
    A("s_lshl_b32 s38, s34, 10")
    A("s_waitcnt lgkmcnt(0)")
    A("s_add_u32 s12, s4, s28")
    A("s_addc_u32 s13, s5, 0")
    A(f"s_mov_b32 s14, {XBATCH}")
    A("s_mov_b32 s15, 0x20000")
    A("s_mov_b32 s16, s6")
    A("s_mov_b32 s17, s7")
    A(f"s_mov_b32 s18, {WBYTES}")
    A("s_mov_b32 s19, 0x20000")

    vq = []
    def w_issue(u, static=True):
        for tap in range(5):
            if tap == 0:
                A("s_mov_b32 m0, s45")
                A("s_mov_b32 s48, s44")
            else:
                A("s_add_u32 m0, m0, 4096")
                A("s_add_u32 s48, s48, 0x100000")
            A(f"buffer_load_dwordx4 v1, s[16:19], s48 offen{opt.wpol} lds")
            vq.append(('W', u))
    def w_advance(u):
        if u & 1: A(f"s_add_u32 s44, s44, {65536-1024}")
        else: A("s_add_u32 s44, s44, 1024")
        if (u & 3) == 3: A(f"s_sub_u32 s45, s45, {3*WUNIT}")
        else: A(f"s_add_u32 s45, s45, {WUNIT}")
    def x_issue(c, part):
        qs = range(0, 4) if part == 0 else range(4, 8)
        for q in qs:
            A(f"s_add_u32 m0, s47, {q*4096}")
            if q < 4:
                A(f"s_add_u32 s48, s46, {2*q*1024}")
                A(f"buffer_load_dwordx4 v2, s[12:15], s48 offen{opt.xpol} lds")
            else:
                A(f"s_add_u32 s48, s46, {(2*q-8)*1024}")
                A(f"buffer_load_dwordx4 v3, s[12:15], s48 offen{opt.xpol} lds")
            vq.append(('X', c))
        if part == 1:
            A(f"s_sub_u32 m0, s47, s38")
            A(f"s_add_u32 m0, m0, 32768")
            A("s_mov_b64 exec, s[36:37]")
            A(f"buffer_load_dwordx4 v4, s[12:15], s46 offen{opt.xpol} lds")
            A("s_mov_b64 exec, -1")
            vq.append(('X', c))
    def x_advance():
        A("s_add_u32 s46, s46, 128")
        A("s_xor_b32 s47, s47, s49")
    def need_n(u):
        need = [('W', u)]
        if u % 4 == 0: need.append(('X', u//4))
        last = -1
        for i, t in enumerate(vq):
            if t in need: last = i
        return len(vq) - 1 - last if last >= 0 else None
    def wait_for(u, n=None):
        nn = need_n(u)
        if n is None: n = nn
        assert nn is None or n <= nn
        if n is not None:
            A(f"s_waitcnt vmcnt({n})")
            del vq[:len(vq)-n]
    A("s_mov_b32 s44, 0")
    A("s_mov_b32 s45, s38")
    A("s_mov_b32 s46, 0")
    A(f"s_add_u32 s47, s38, {XBASE}")
    A(f"s_add_u32 s49, s38, {XBASE+XBUF}")
    A("s_xor_b32 s49, s49, s47")
    x_issue(0, 0); x_issue(0, 1); x_advance()
    for u in range(4):
        w_issue(u); w_advance(u)
    x_issue(1, 0); x_issue(1, 1); x_advance()
    import copy
    def interval(u, emit=True, nfix=None):
        wait_for(u, nfix)
        A("s_barrier")
        if 1 <= u <= 28:
            w_issue(u+3); w_advance(u+3)
        if u % 4 == 3 and u//4 + 2 <= 7:
            x_issue(u//4+2, 0)
        if u % 4 == 0 and u >= 4 and u//4 + 1 <= 7:
            x_issue(u//4+1, 1); x_advance()
    saveL = list(A.L); savevq = list(vq)
    Ns = {}
    for u in range(32):
        Ns[u] = need_n(u)
        interval(u)
    A.L = saveL; vq[:] = savevq
    interval(0)
    Nl = {m: min(Ns[u] for u in range(1, 25) if u % 4 == m) for m in range(4)}
    A("s_mov_b32 s50, 0")
    A("L_lloop:")
    for u in range(1, 5):
        interval(u, nfix=Nl[u % 4])
    A("s_add_u32 s50, s50, 1")
    A("s_cmp_lt_u32 s50, 6")
    A("s_cbranch_scc1 L_lloop")
    saveL = list(A.L)
    for u in range(5, 25): interval(u, nfix=Nl[u % 4])
    A.L = saveL
    for u in range(25, 32): interval(u)
    A("L_end:")
    A("s_endpgm")
    A('.section .rodata,"a"')
    A(".p2align 6")
    A(f".amdhsa_kernel {NAME}")
    A("  .amdhsa_next_free_vgpr 256")
    A("  .amdhsa_next_free_sgpr 72")
    A("  .amdhsa_accum_offset 168")
    A("  .amdhsa_group_segment_fixed_size 0")
    A("  .amdhsa_kernarg_size 40")
    A("  .amdhsa_user_sgpr_count 2")
    A("  .amdhsa_user_sgpr_kernarg_segment_ptr 1")
    A("  .amdhsa_system_sgpr_workgroup_id_x 1")
    A("  .amdhsa_float_denorm_mode_32 3")
    A(".end_amdhsa_kernel")
    if opt.meta:
        A(f""".amdgpu_metadata
---
amdhsa.version: [1, 2]
amdhsa.kernels:
  - .name: {NAME}
    .symbol: {NAME}.kd
    .kernarg_segment_size: 40
    .kernarg_segment_align: 8
    .group_segment_fixed_size: 0
    .private_segment_fixed_size: 0
    .wavefront_size: 64
    .sgpr_count: 72
    .vgpr_count: 256
    .max_flat_workgroup_size: 512
    .args:
      - {{.name: kernargs, .size: 40, .offset: 0, .value_kind: by_value}}
...
.end_amdgpu_metadata""")
    sys.stderr.write(f"loader waits: {Ns}\nloop: {Nl}\n")
    return A.text()

if __name__ == "__main__":
    ap = argparse.ArgumentParser()
    ap.add_argument("-o", default="/dev/stdout")
    ap.add_argument("--meta", action="store_true")
    ap.add_argument("--stamp", action="store_true")
    ap.add_argument("--dbgstamp", action="store_true")
    ap.add_argument("--cprio", type=int, default=0)
    ap.add_argument("--wpol", default="")
    ap.add_argument("--xpol", default="")
    opt = ap.parse_args()
    if opt.wpol: opt.wpol = " " + opt.wpol
    if opt.xpol: opt.xpol = " " + opt.xpol
    open(opt.o, "w").write(gen(opt))
```

```python
import sys, argparse

NAME = "standalone__autoregressive_conv_wavernn__speech_kernel"
XBATCH = 4096000
WBYTES = 5242880
WUNIT = 20480
XBASE = 4 * WUNIT
XBUF = 33792
LDS_BYTES = XBASE + 2 * XBUF

class Asm:
    def __init__(self):
        self.L = []
    def __call__(self, s):
        self.L.append(s)
    def text(self):
        return "\n".join(self.L) + "\n"

class DS:
    def __init__(self, A):
        self.A = A
        self.q = []
    def issue(self, text, regs):
        if len(self.q) >= 14:
            self.wait_n(10)
        self.A(text)
        self.q.append(set(regs))
    def wait_n(self, n):
        if len(self.q) > n:
            self.A(f"s_waitcnt lgkmcnt({n})")
            self.q = self.q[len(self.q)-n:] if n > 0 else []
    def need(self, regs):
        regs = set(regs)
        last = -1
        for i, s in enumerate(self.q):
            if s & regs:
                last = i
        if last >= 0:
            self.wait_n(len(self.q) - 1 - last)
    def drain(self):
        self.A("s_waitcnt lgkmcnt(0)")
        self.q = []

ACC0 = 40
def acc(j, nb):
    b = ACC0 + (j*4 + nb)*4
    return b
def areg(n): return f"a[{n}:{n+3}]"
def XF(q): return 4*q
def WF(st, tap): return 48 + st*20 + tap*4
V_W = [1, 2]
V_X0 = 3
V_X1 = [4, 5, 6, 7]
V_OUT = 8
S_K = 30; S_WD = 31; S_XD = 32; S_T = 33

def gen(opt):
    A = Asm()
    A(f"; @launch grid=(256,1,1) block=(512,1,1) lds={LDS_BYTES}")
    A('.amdgcn_target "amdgcn-amd-amdhsa--gfx950"')
    A(".text")
    A(f".globl {NAME}")
    A(".p2align 8")
    A(f".type {NAME},@function")
    A(f"{NAME}:")
    A("s_cmp_ge_u32 s2, 256")
    A("s_cbranch_scc1 L_end")
    A("s_load_dwordx4 s[4:7], s[0:1], 0")
    A("s_load_dwordx2 s[8:9], s[0:1], 16")
    if opt.stamp:
        A("s_load_dwordx2 s[40:41], s[0:1], %d" % (24 if opt.dbgstamp else 32))
        A("s_memtime s[44:45]")
        A("s_memrealtime s[46:47]")
    A("v_lshrrev_b32 v1, 6, v0")
    A("v_and_b32 v0, 63, v0")
    A("s_and_b32 s28, s2, 7")
    A("v_readfirstlane_b32 s24, v1")
    A("s_lshr_b32 s29, s2, 3")
    A("s_lshr_b32 s30, s28, 1")
    A("s_lshl_b32 s30, s30, 3")
    A("s_lshr_b32 s31, s29, 2")
    A("s_add_u32 s30, s30, s31")
    A("s_and_b32 s31, s28, 1")
    A("s_lshl_b32 s31, s31, 2")
    A("s_and_b32 s29, s29, 3")
    A("s_add_u32 s31, s31, s29")
    A("s_lshr_b32 s27, s30, 4")
    A("s_and_b32 s25, s30, 15")
    A("s_lshl_b32 s25, s25, 8")
    A("s_lshl_b32 s26, s31, 6")
    A(f"s_mul_i32 s28, s27, {XBATCH}")
    A("s_cmp_ge_u32 s24, 4")
    A("s_cbranch_scc1 L_loader")

    A("s_setprio %d" % opt.cprio) if opt.cprio else None
    A("s_lshr_b32 s34, s24, 1")
    A("s_and_b32 s35, s24, 1")
    A("v_lshrrev_b32 v10, 4, v0")
    A("v_and_b32 v11, 15, v0")
    A("v_lshrrev_b32 v12, 2, v11")
    A("v_lshl_add_u32 v12, v10, 3, v12")
    A("v_lshlrev_b32 v12, 7, v12")
    A("v_and_b32 v13, 3, v11")
    A("v_lshl_add_u32 v12, v13, 3, v12")
    A("v_lshrrev_b32 v13, 3, v11")
    A("v_and_b32 v14, 1, v10")
    A("v_lshl_or_b32 v13, v14, 1, v13")
    A("s_lshl_b32 s36, s35, 1")
    for p in range(2):
        A(f"s_add_u32 s37, s36, {p}")
        A("v_xor_b32 v14, s37, v13")
        A(f"v_lshl_add_u32 v{V_W[p]}, v14, 5, v12")
    A("s_lshl_b32 s36, s34, 4")
    def xaddr(dst, Rreg):
        A(f"v_lshrrev_b32 v15, 3, v{Rreg}")
        A(f"v_lshlrev_b32 v15, 10, v15")
        A(f"v_and_b32 v16, 7, v{Rreg}")
        A(f"v_lshl_add_u32 v15, v16, 6, v15")
        A(f"v_bfe_u32 v16, v{Rreg}, 2, 1")
        A(f"v_lshlrev_b32 v16, 1, v16")
        A(f"v_xor_b32 v16, v16, v10")
        A(f"v_lshl_add_u32 v15, v16, 4, v15")
        A(f"v_add_u32 v{dst}, {XBASE}, v15")
    A("v_add_u32 v13, s36, v11")
    xaddr(V_X0, 13)
    A("v_add_u32 v13, 2, v13")
    xaddr(17, 13)
    A("v_and_b32 v16, 1, v13")
    A("v_lshlrev_b32 v16, 6, v16")
    A("v_lshl_add_u32 v16, v10, 4, v16")
    A(f"v_add_u32 v16, {XBASE+32768}, v16")
    A("v_cmp_le_u32 vcc, 32, v13")
    for q in range(4):
        A(f"v_add_u32 v18, {q*4096}, v17")
        A(f"v_add_u32 v19, {q*128}, v16")
        A(f"v_cndmask_b32 v{V_X1[q]}, v18, v19, vcc")
    A("v_and_b32 v13, 1, v11")
    A("v_lshrrev_b32 v14, 1, v11")
    A("v_lshl_add_u32 v13, v14, 4, v13")
    A("s_lshl_b32 s36, s34, 7")
    A("s_add_u32 s36, s36, s25")
    A("v_add_u32 v13, s36, v13")
    A("v_lshlrev_b32 v13, 10, v13")
    A("v_and_b32 v14, 1, v10")
    A("v_lshlrev_b32 v14, 5, v14")
    A("v_lshrrev_b32 v15, 1, v10")
    A("v_lshl_add_u32 v14, v15, 4, v14")
    A("s_lshl_b32 s36, s35, 5")
    A("s_add_u32 s36, s36, s26")
    A("s_lshl_b32 s36, s36, 1")
    A("v_add_u32 v13, s36, v13")
    A(f"v_add_u32 v{V_OUT}, v13, v14")
    for r in range(128):
        A(f"v_mov_b32 v{ACC0+r}, 0")
    A("s_waitcnt lgkmcnt(0)")
    A("s_add_u32 s20, s8, s28")
    A("s_addc_u32 s21, s9, 0")
    A(f"s_mov_b32 s22, {XBATCH}")
    A("s_mov_b32 s23, 0x20000")
    A(f"s_mov_b32 s{S_K}, 0")
    A(f"s_mov_b32 s{S_WD}, {2*WUNIT}")
    A(f"s_mov_b32 s29, {-(XBUF+512)}")

    ds = DS(A)
    def wreads(phi_next):
        p = phi_next & 1; half = (phi_next >> 1) & 1; st = phi_next & 1
        out = []
        for tap in range(5):
            for h in range(2):
                r = WF(st, tap) + 2*h
                off = half*WUNIT + tap*4096 + h*512
                out.append((f"ds_read_b64_tr_b16 a[{r}:{r+1}], v{V_W[p]} offset:{off}", [('a', r), ('a', r+1)]))
        return out
    def xread(q):
        r = XF(q)
        regs = [('a', r+i) for i in range(4)]
        if q < 8:
            return (f"ds_read_b128 a[{r}:{r+3}], v{V_X0} offset:{q*4096}", regs)
        return (f"ds_read_b128 a[{r}:{r+3}], v{V_X1[q-8]} offset:0", regs)

    def phase(phi, wnext=True, xreload=False, barrier=False, extra=None):
        nb = phi & 3; st = phi & 1
        if barrier:
            ds.drain()
            A("s_barrier")
        post = {n: [] for n in range(40)}
        if wnext:
            wr = wreads(phi+1)
            for i, rd in enumerate(wr):
                post[2*i].append(rd)
        if xreload:
            for q in range(8): post[5*q].append(xread(q))
            for q in range(8, 12): post[28+q].append(xread(q))
        for j in range(8):
            for tap in range(5):
                n = 5*j + tap
                wf = WF(st, tap); xf = XF(j+tap)
                ds.need([('a', wf+i) for i in range(4)] + [('a', xf+i) for i in range(4)])
                a = acc(j, nb)
                A(f"v_mfma_f32_16x16x32_bf16 v[{a}:{a+3}], {areg(wf)}, {areg(xf)}, v[{a}:{a+3}]")
                for (t, regs) in post[n]:
                    ds.issue(t, regs)
                if extra and n in extra:
                    for t in extra[n]: A(t)

    if opt.stamp:
        A("s_memtime s[48:49]")
    A("s_barrier")
    if opt.stamp:
        A("s_memtime s[50:51]")
        A("s_waitcnt lgkmcnt(0)")
    wr = wreads(0)
    order = []
    for tap in range(5):
        order.append(xread(tap)); order += wr[2*tap:2*tap+2]
    for q in range(5, 12): order.append(xread(q))
    for (t, regs) in order: ds.issue(t, regs)
    phase(0)
    A(".p2align 6")
    A("L_cloop:")
    xupd = {3: [f"s_bitcmp1_b32 s{S_K}, 1",
                f"s_cselect_b32 s{S_T}, s29, {XBUF-512}",
                f"s_bitcmp1_b32 s{S_K}, 0",
                f"s_cselect_b32 s{S_XD}, s{S_T}, 512"],
            21: [f"v_add_u32 v{V_X0}, s{S_XD}, v{V_X0}"],
            23: [f"v_add_u32 v{V_X1[0]}, s{S_XD}, v{V_X1[0]}"],
            25: [f"v_add_u32 v{V_X1[1]}, s{S_XD}, v{V_X1[1]}"],
            27: [f"v_add_u32 v{V_X1[2]}, s{S_XD}, v{V_X1[2]}"],
            29: [f"v_add_u32 v{V_X1[3]}, s{S_XD}, v{V_X1[3]}"]}
    phase(1, barrier=True, extra=xupd)
    phase(2, extra={25: [f"v_add_u32 v{V_W[0]}, s{S_WD}, v{V_W[0]}"]})
    phase(3, barrier=True, xreload=True,
          extra={25: [f"v_add_u32 v{V_W[1]}, s{S_WD}, v{V_W[1]}"],
                 27: [f"s_sub_u32 s{S_WD}, 0, s{S_WD}", f"s_add_u32 s{S_K}, s{S_K}, 1"]})
    phase(4, extra={37: [f"s_cmp_lt_u32 s{S_K}, 15"]})
    A("s_cbranch_scc1 L_cloop")
    phase(61, barrier=True)
    phase(62)
    phase(63, wnext=False)
    if opt.stamp:
        ds.drain()
        A("s_memtime s[52:53]")
    if opt.dummy:
        A(f"s_mov_b32 s43, {opt.dummy}")
        for r in range(12, 28): A(f"v_mov_b32 v{r}, 0")
        A("s_nop 1")
        A("L_dummy:")
        for i in range(32):
            A(f"v_mfma_f32_16x16x32_bf16 v[{12+4*(i//8)}:{15+4*(i//8)}], {areg(WF(i&1, i%5))}, {areg(XF(i%12))}, v[{12+4*(i//8)}:{15+4*(i//8)}]")
        A("s_sub_u32 s43, s43, 1")
        A("s_cmp_lg_u32 s43, 0")
        A("s_cbranch_scc1 L_dummy")
        A("s_nop 7")
    A("; ---- epilogue")
    A("s_mov_b32 s36, 0x4038aa3b")
    A("s_mov_b32 s37, 0x4038aa3b")
    A("s_mov_b32 s38, 0xbfb8aa3b")
    A("s_mov_b32 s39, 0xbfb8aa3b")
    A("s_mov_b32 s42, 0x7fffffff")
    A("s_nop 7")
    TB = 10
    for j in range(8):
        PB = 20 + 4*(j & 1)
        pairs = []
        for p in range(2):
            for h in range(2):
                f = acc(j, p) + 2*h; g = acc(j, 2+p) + 2*h
                pairs.append((f, g, TB + 2*(2*p+h), PB + 2*p + h))
        for (f, g, t, o) in pairs: A(f"v_pk_mul_f32 v[{t}:{t+1}], v[{f}:{f+1}], s[36:37]")
        for (f, g, t, o) in pairs: A(f"v_pk_mul_f32 v[{g}:{g+1}], v[{g}:{g+1}], s[38:39]")
        for (f, g, t, o) in pairs:
            A(f"v_exp_f32 v{t}, -|v{t}|"); A(f"v_exp_f32 v{t+1}, -|v{t+1}|")
        for (f, g, t, o) in pairs:
            A(f"v_exp_f32 v{g}, v{g}"); A(f"v_exp_f32 v{g+1}, v{g+1}")
        for (f, g, t, o) in pairs: A(f"v_pk_add_f32 v[{g}:{g+1}], v[{g}:{g+1}], 1.0 op_sel_hi:[1,0]")
        for (f, g, t, o) in pairs: A(f"v_pk_fma_f32 v[{g}:{g+1}], v[{t}:{t+1}], v[{g}:{g+1}], v[{g}:{g+1}]")
        for (f, g, t, o) in pairs:
            A(f"v_rcp_f32 v{g}, v{g}"); A(f"v_rcp_f32 v{g+1}, v{g+1}")
        for (f, g, t, o) in pairs: A(f"v_pk_add_f32 v[{t}:{t+1}], v[{t}:{t+1}], 1.0 op_sel_hi:[1,0] neg_lo:[1,0] neg_hi:[1,0]")
        for (f, g, t, o) in pairs: A(f"v_pk_mul_f32 v[{t}:{t+1}], v[{t}:{t+1}], v[{g}:{g+1}]")
        for (f, g, t, o) in pairs:
            A(f"v_bfi_b32 v{t}, s42, v{t}, v{f}"); A(f"v_bfi_b32 v{t+1}, s42, v{t+1}, v{f+1}")
        for (f, g, t, o) in pairs: A(f"v_cvt_pk_bf16_f32 v{o}, v{t}, v{t+1}")
        if j >= 2 and j % 2 == 0:
            A(f"s_mov_b32 s43, {4096*(j//2)}")
        else:
            A("s_nop 0")
        A("s_nop 0")
        A(f"v_permlane16_swap_b32 v{PB}, v{PB+2}")
        A(f"v_permlane16_swap_b32 v{PB+1}, v{PB+3}")
        so = "0" if j < 2 else "s43"
        A(f"buffer_store_dwordx4 v[{PB}:{PB+3}], v{V_OUT}, s[20:23], {so} offen offset:{2048*(j&1)}{opt.spol}")
    if opt.stamp:
        A("s_memtime s[54:55]")
        A("s_waitcnt vmcnt(0)")
        A("s_memtime s[56:57]")
        A("s_memrealtime s[58:59]")
        A("s_waitcnt lgkmcnt(0)")
        if opt.dbgstamp:
            A("s_sub_u32 s60, s48, s44")
            A("s_sub_u32 s61, s50, s48")
            A("s_sub_u32 s62, s52, s50")
            A("s_sub_u32 s63, s54, s52")
            A("s_sub_u32 s64, s56, s54")
            A("s_sub_u32 s65, s56, s44")
            A("s_sub_u32 s66, s58, s46")
            A("s_mov_b32 s67, s46")
            A("s_cmp_lg_u32 s24, 0")
            A("s_cbranch_scc1 L_nostamp")
            A("s_mov_b32 s43, 0")
            A("s_cmp_eq_u32 s2, 0")
            A("s_cbranch_scc1 L_dostamp")
            A("s_mov_b32 s43, 32")
            A("s_cmp_eq_u32 s2, 133")
            A("s_cbranch_scc0 L_nostamp")
            A("L_dostamp:")
            A("s_mov_b32 s68, s40"); A("s_mov_b32 s69, s41"); A("s_mov_b32 s70, 256"); A("s_mov_b32 s71, 0x20000")
            A("v_mov_b32 v9, s43")
            A("s_mov_b64 exec, 1")
            for i in range(2):
                for k in range(4): A(f"v_mov_b32 v{12+k}, s{60+4*i+k}")
                A(f"buffer_store_dwordx4 v[12:15], v9, s[68:71], 0 offen offset:{16*i}")
                A("s_nop 1")
            A("L_nostamp:")
        else:
            A("s_mov_b32 s60, s40"); A("s_mov_b32 s61, s41"); A("s_mov_b32 s62, 0x10000000"); A("s_mov_b32 s63, 0x20000")
            A("s_lshl_b32 s43, s2, 2"); A("s_add_u32 s43, s43, s24"); A("s_lshl_b32 s43, s43, 6")
            A("v_mov_b32 v9, s43")
            A("s_mov_b64 exec, 1")
            for i in range(4):
                for k in range(4): A(f"v_mov_b32 v{12+k}, s{44+4*i+k}")
                A(f"buffer_store_dwordx4 v[12:15], v9, s[60:63], 0 offen offset:{16*i}")
                A("s_nop 1")
    A("s_endpgm")

    A("L_loader:")
    A("s_sub_u32 s34, s24, 4")
    A("v_lshrrev_b32 v10, 3, v0")
    A("v_and_b32 v11, 7, v0")
    A("v_lshrrev_b32 v12, 1, v11")
    A("v_bfe_u32 v13, v10, 1, 1")
    A("s_and_b32 s35, s34, 1")
    A("s_lshl_b32 s35, s35, 1")
    A("v_or_b32 v13, s35, v13")
    A("v_xor_b32 v12, v12, v13")
    A("v_lshlrev_b32 v12, 5, v12")
    A("v_and_b32 v11, 1, v11")
    A("v_lshl_add_u32 v12, v11, 4, v12")
    A("s_lshl_b32 s35, s34, 3")
    A("v_add_u32 v10, s35, v10")
    A("v_lshl_add_u32 v12, v10, 11, v12")
    A("s_lshl_b32 s35, s26, 1")
    A("v_add_u32 v1, s35, v12")
    A("v_lshrrev_b32 v10, 5, v0")
    A("v_bfe_u32 v11, v0, 2, 3")
    A("v_and_b32 v12, 3, v0")
    A("v_lshrrev_b32 v13, 2, v11")
    A("v_lshlrev_b32 v13, 1, v13")
    A("v_xor_b32 v13, v13, v12")
    A("v_lshlrev_b32 v14, 6, v10")
    A("v_lshl_add_u32 v15, v13, 4, v14")
    A("v_lshl_add_u32 v16, v12, 4, v14")
    A("v_and_b32 v13, 1, v11")
    A("v_lshrrev_b32 v17, 1, v11")
    A("v_lshl_add_u32 v13, v17, 4, v13")
    A("s_lshl_b32 s35, s34, 6")
    A("s_add_u32 s35, s35, s25")
    A("s_sub_u32 s35, s35, 8")
    A("v_add_u32 v13, s35, v13")
    A("v_lshlrev_b32 v17, 10, v13")
    A("v_add_u32 v17, v17, v15")
    A("v_add_u32 v3, 0x2000, v17")
    A("v_mov_b32 v18, 0x80000000")
    A("v_cmp_gt_i32 vcc, 0, v13")
    A("s_add_u32 s35, s25, 248")
    A("v_add_u32 v11, s35, v11")
    A("v_cndmask_b32 v2, v17, v18, vcc")
    A("v_lshlrev_b32 v11, 10, v11")
    A("v_add_u32 v4, v11, v16")
    A("s_lshl_b32 s35, s34, 4")
    A("s_mov_b64 s[36:37], 0xffff")
    A("s_lshl_b64 s[36:37], s[36:37], s35")
    A("s_lshl_b32 s38, s34, 10")
    A("s_waitcnt lgkmcnt(0)")
    A("s_add_u32 s12, s4, s28")
    A("s_addc_u32 s13, s5, 0")
    A(f"s_mov_b32 s14, {XBATCH}")
    A("s_mov_b32 s15, 0x20000")
    A("s_mov_b32 s16, s6")
    A("s_mov_b32 s17, s7")
    A(f"s_mov_b32 s18, {WBYTES}")
    A("s_mov_b32 s19, 0x20000")

    vq = []
    def w_issue(u, static=True):
        for tap in range(5):
            if tap == 0:
                A("s_mov_b32 m0, s45")
                A("s_mov_b32 s48, s44")
            else:
                A("s_add_u32 m0, m0, 4096")
                A("s_add_u32 s48, s48, 0x100000")
            A(f"buffer_load_dwordx4 v1, s[16:19], s48 offen{opt.wpol} lds")
            vq.append(('W', u))
    def w_advance(u):
        if u & 1: A(f"s_add_u32 s44, s44, {65536-1024}")
        else: A("s_add_u32 s44, s44, 1024")
        if (u & 3) == 3: A(f"s_sub_u32 s45, s45, {3*WUNIT}")
        else: A(f"s_add_u32 s45, s45, {WUNIT}")
    def x_issue(c, part):
        qs = range(0, 4) if part == 0 else range(4, 8)
        for q in qs:
            A(f"s_add_u32 m0, s47, {q*4096}")
            if q < 4:
                A(f"s_add_u32 s48, s46, {2*q*1024}")
                A(f"buffer_load_dwordx4 v2, s[12:15], s48 offen{opt.xpol} lds")
            else:
                A(f"s_add_u32 s48, s46, {(2*q-8)*1024}")
                A(f"buffer_load_dwordx4 v3, s[12:15], s48 offen{opt.xpol} lds")
            vq.append(('X', c))
        if part == 1:
            A(f"s_sub_u32 m0, s47, s38")
            A(f"s_add_u32 m0, m0, 32768")
            A("s_mov_b64 exec, s[36:37]")
            A(f"buffer_load_dwordx4 v4, s[12:15], s46 offen{opt.xpol} lds")
            A("s_mov_b64 exec, -1")
            vq.append(('X', c))
    def x_advance():
        A("s_add_u32 s46, s46, 128")
        A("s_xor_b32 s47, s47, s49")
    def need_n(u):
        need = [('W', u)]
        if u % 4 == 0: need.append(('X', u//4))
        last = -1
        for i, t in enumerate(vq):
            if t in need: last = i
        return len(vq) - 1 - last if last >= 0 else None
    def wait_for(u, n=None):
        nn = need_n(u)
        if n is None: n = nn
        assert nn is None or n <= nn
        if n is not None:
            A(f"s_waitcnt vmcnt({n})")
            del vq[:len(vq)-n]
    A("s_mov_b32 s44, 0")
    A("s_mov_b32 s45, s38")
    A("s_mov_b32 s46, 0")
    A(f"s_add_u32 s47, s38, {XBASE}")
    A(f"s_add_u32 s49, s38, {XBASE+XBUF}")
    A("s_xor_b32 s49, s49, s47")
    x_issue(0, 0); x_issue(0, 1); x_advance()
    for u in range(4):
        w_issue(u); w_advance(u)
    x_issue(1, 0); x_issue(1, 1); x_advance()
    import copy
    def interval(u, emit=True, nfix=None):
        wait_for(u, nfix)
        A("s_barrier")
        if 1 <= u <= 28:
            w_issue(u+3); w_advance(u+3)
        if u % 4 == 3 and u//4 + 2 <= 7:
            x_issue(u//4+2, 0)
        if u % 4 == 0 and u >= 4 and u//4 + 1 <= 7:
            x_issue(u//4+1, 1); x_advance()
    saveL = list(A.L); savevq = list(vq)
    Ns = {}
    for u in range(32):
        Ns[u] = need_n(u)
        interval(u)
    A.L = saveL; vq[:] = savevq
    interval(0)
    Nl = {m: min(Ns[u] for u in range(1, 25) if u % 4 == m) for m in range(4)}
    A("s_mov_b32 s50, 0")
    A("L_lloop:")
    for u in range(1, 5):
        interval(u, nfix=Nl[u % 4])
    A("s_add_u32 s50, s50, 1")
    A("s_cmp_lt_u32 s50, 6")
    A("s_cbranch_scc1 L_lloop")
    saveL = list(A.L)
    for u in range(5, 25): interval(u, nfix=Nl[u % 4])
    A.L = saveL
    for u in range(25, 32): interval(u)
    A("L_end:")
    A("s_endpgm")
    A('.section .rodata,"a"')
    A(".p2align 6")
    A(f".amdhsa_kernel {NAME}")
    A("  .amdhsa_next_free_vgpr 256")
    A("  .amdhsa_next_free_sgpr 72")
    A("  .amdhsa_accum_offset 168")
    A("  .amdhsa_group_segment_fixed_size 0")
    A("  .amdhsa_kernarg_size 40")
    A("  .amdhsa_user_sgpr_count 2")
    A("  .amdhsa_user_sgpr_kernarg_segment_ptr 1")
    A("  .amdhsa_system_sgpr_workgroup_id_x 1")
    A("  .amdhsa_float_denorm_mode_32 3")
    A(".end_amdhsa_kernel")
    if opt.meta:
        A(f""".amdgpu_metadata
---
amdhsa.version: [1, 2]
amdhsa.kernels:
  - .name: {NAME}
    .symbol: {NAME}.kd
    .kernarg_segment_size: 40
    .kernarg_segment_align: 8
    .group_segment_fixed_size: 0
    .private_segment_fixed_size: 0
    .wavefront_size: 64
    .sgpr_count: 72
    .vgpr_count: 256
    .max_flat_workgroup_size: 512
    .args:
      - {{.name: kernargs, .size: 40, .offset: 0, .value_kind: by_value}}
...
.end_amdgpu_metadata""")
    sys.stderr.write(f"loader waits: {Ns}\nloop: {Nl}\n")
    return A.text()

if __name__ == "__main__":
    ap = argparse.ArgumentParser()
    ap.add_argument("-o", default="/dev/stdout")
    ap.add_argument("--meta", action="store_true")
    ap.add_argument("--stamp", action="store_true")
    ap.add_argument("--dbgstamp", action="store_true")
    ap.add_argument("--dummy", type=int, default=0)
    ap.add_argument("--cprio", type=int, default=0)
    ap.add_argument("--wpol", default="")
    ap.add_argument("--xpol", default="")
    ap.add_argument("--spol", default="")
    opt = ap.parse_args()
    if opt.wpol: opt.wpol = " " + opt.wpol
    if opt.xpol: opt.xpol = " " + opt.xpol
    if opt.spol: opt.spol = " " + opt.spol
    open(opt.o, "w").write(gen(opt))
```

```python
import sys, argparse

NAME = "standalone__autoregressive_conv_wavernn__speech_kernel"
XBATCH = 4096000
WBYTES = 5242880
WUNIT = 20480
XBASE = 4 * WUNIT
XBUF = 33792
LDS_BYTES = XBASE + 2 * XBUF

class Asm:
    def __init__(self):
        self.L = []
    def __call__(self, s):
        self.L.append(s)
    def text(self):
        return "\n".join(self.L) + "\n"

class DS:
    def __init__(self, A):
        self.A = A
        self.q = []
    def issue(self, text, regs):
        if len(self.q) >= 14:
            self.wait_n(10)
        self.A(text)
        self.q.append(set(regs))
    def wait_n(self, n):
        if len(self.q) > n:
            self.A(f"s_waitcnt lgkmcnt({n})")
            self.q = self.q[len(self.q)-n:] if n > 0 else []
    def need(self, regs):
        regs = set(regs)
        last = -1
        for i, s in enumerate(self.q):
            if s & regs:
                last = i
        if last >= 0:
            self.wait_n(len(self.q) - 1 - last)
    def drain(self):
        self.A("s_waitcnt lgkmcnt(0)")
        self.q = []

ACC0 = 40
def acc(j, nb):
    b = ACC0 + (j*4 + nb)*4
    return b
def areg(n): return f"a[{n}:{n+3}]"
def XF(q): return 4*q
def WF(st, tap): return 48 + st*20 + tap*4
V_W = [1, 2]
V_X0 = 3
V_X1 = [4, 5, 6, 7]
V_OUT = 8
S_K = 30; S_WD = 31; S_XD = 32; S_T = 33

def gen(opt):
    A = Asm()
    A(f"; @launch grid=(256,1,1) block=(512,1,1) lds={LDS_BYTES}")
    A('.amdgcn_target "amdgcn-amd-amdhsa--gfx950"')
    A(".text")
    A(f".globl {NAME}")
    A(".p2align 8")
    A(f".type {NAME},@function")
    A(f"{NAME}:")
    A("s_cmp_ge_u32 s2, 256")
    A("s_cbranch_scc1 L_end")
    A("s_load_dwordx4 s[4:7], s[0:1], 0")
    A("s_load_dwordx2 s[8:9], s[0:1], 16")
    if opt.stamp:
        A("s_load_dwordx2 s[40:41], s[0:1], %d" % (24 if opt.dbgstamp else 32))
        A("s_memtime s[44:45]")
        A("s_memrealtime s[46:47]")
    A("v_lshrrev_b32 v1, 6, v0")
    A("v_and_b32 v0, 63, v0")
    A("s_and_b32 s28, s2, 7")
    A("v_readfirstlane_b32 s24, v1")
    A("s_lshr_b32 s29, s2, 3")
    A("s_lshr_b32 s30, s28, 1")
    A("s_lshl_b32 s30, s30, 3")
    A("s_lshr_b32 s31, s29, 2")
    A("s_add_u32 s30, s30, s31")
    A("s_and_b32 s31, s28, 1")
    A("s_lshl_b32 s31, s31, 2")
    A("s_and_b32 s29, s29, 3")
    A("s_add_u32 s31, s31, s29")
    A("s_lshr_b32 s27, s30, 4")
    A("s_and_b32 s25, s30, 15")
    A("s_lshl_b32 s25, s25, 8")
    A("s_lshl_b32 s26, s31, 6")
    A(f"s_mul_i32 s28, s27, {XBATCH}")
    A("s_cmp_ge_u32 s24, 4")
    A("s_cbranch_scc1 L_loader")

    A("s_setprio %d" % opt.cprio) if opt.cprio else None
    A("s_lshr_b32 s34, s24, 1")
    A("s_and_b32 s35, s24, 1")
    A("v_lshrrev_b32 v10, 4, v0")
    A("v_and_b32 v11, 15, v0")
    A("v_lshrrev_b32 v12, 2, v11")
    A("v_lshl_add_u32 v12, v10, 3, v12")
    A("v_lshlrev_b32 v12, 7, v12")
    A("v_and_b32 v13, 3, v11")
    A("v_lshl_add_u32 v12, v13, 3, v12")
    A("v_lshrrev_b32 v13, 3, v11")
    A("v_and_b32 v14, 1, v10")
    A("v_lshl_or_b32 v13, v14, 1, v13")
    A("s_lshl_b32 s36, s35, 1")
    for p in range(2):
        A(f"s_add_u32 s37, s36, {p}")
        A("v_xor_b32 v14, s37, v13")
        A(f"v_lshl_add_u32 v{V_W[p]}, v14, 5, v12")
    A("s_lshl_b32 s36, s34, 4")
    def xaddr(dst, Rreg):
        A(f"v_lshrrev_b32 v15, 3, v{Rreg}")
        A(f"v_lshlrev_b32 v15, 10, v15")
        A(f"v_and_b32 v16, 7, v{Rreg}")
        A(f"v_lshl_add_u32 v15, v16, 6, v15")
        A(f"v_bfe_u32 v16, v{Rreg}, 2, 1")
        A(f"v_lshlrev_b32 v16, 1, v16")
        A(f"v_xor_b32 v16, v16, v10")
        A(f"v_lshl_add_u32 v15, v16, 4, v15")
        A(f"v_add_u32 v{dst}, {XBASE}, v15")
    A("v_add_u32 v13, s36, v11")
    xaddr(V_X0, 13)
    A("v_add_u32 v13, 2, v13")
    xaddr(17, 13)
    A("v_and_b32 v16, 1, v13")
    A("v_lshlrev_b32 v16, 6, v16")
    A("v_lshl_add_u32 v16, v10, 4, v16")
    A(f"v_add_u32 v16, {XBASE+32768}, v16")
    A("v_cmp_le_u32 vcc, 32, v13")
    for q in range(4):
        A(f"v_add_u32 v18, {q*4096}, v17")
        A(f"v_add_u32 v19, {q*128}, v16")
        A(f"v_cndmask_b32 v{V_X1[q]}, v18, v19, vcc")
    A("v_and_b32 v13, 1, v11")
    A("v_lshrrev_b32 v14, 1, v11")
    A("v_lshl_add_u32 v13, v14, 4, v13")
    A("s_lshl_b32 s36, s34, 7")
    A("s_add_u32 s36, s36, s25")
    A("v_add_u32 v13, s36, v13")
    A("v_lshlrev_b32 v13, 10, v13")
    A("v_and_b32 v14, 1, v10")
    A("v_lshlrev_b32 v14, 5, v14")
    A("v_lshrrev_b32 v15, 1, v10")
    A("v_lshl_add_u32 v14, v15, 4, v14")
    A("s_lshl_b32 s36, s35, 5")
    A("s_add_u32 s36, s36, s26")
    A("s_lshl_b32 s36, s36, 1")
    A("v_add_u32 v13, s36, v13")
    A(f"v_add_u32 v{V_OUT}, v13, v14")
    for r in range(128):
        A(f"v_mov_b32 v{ACC0+r}, 0")
    A("s_waitcnt lgkmcnt(0)")
    A("s_add_u32 s20, s8, s28")
    A("s_addc_u32 s21, s9, 0")
    A(f"s_mov_b32 s22, {XBATCH}")
    A("s_mov_b32 s23, 0x20000")
    A(f"s_mov_b32 s{S_K}, 0")
    A(f"s_mov_b32 s{S_WD}, {2*WUNIT}")
    A(f"s_mov_b32 s29, {-(XBUF+512)}")

    ds = DS(A)
    def wreads(phi_next):
        p = phi_next & 1; half = (phi_next >> 1) & 1; st = phi_next & 1
        out = []
        for tap in range(5):
            for h in range(2):
                r = WF(st, tap) + 2*h
                off = half*WUNIT + tap*4096 + h*512
                out.append((f"ds_read_b64_tr_b16 a[{r}:{r+1}], v{V_W[p]} offset:{off}", [('a', r), ('a', r+1)]))
        return out
    def xread(q):
        r = XF(q)
        regs = [('a', r+i) for i in range(4)]
        if q < 8:
            return (f"ds_read_b128 a[{r}:{r+3}], v{V_X0} offset:{q*4096}", regs)
        return (f"ds_read_b128 a[{r}:{r+3}], v{V_X1[q-8]} offset:0", regs)

    def phase(phi, wnext=True, xreload=False, barrier=False, extra=None):
        nb = phi & 3; st = phi & 1
        if barrier:
            ds.drain()
            A("s_barrier")
        post = {n: [] for n in range(40)}
        if wnext:
            wr = wreads(phi+1)
            for i, rd in enumerate(wr):
                post[2*i].append(rd)
        if xreload:
            for q in range(8): post[5*q].append(xread(q))
            for q in range(8, 12): post[28+q].append(xread(q))
        for j in range(8):
            for tap in range(5):
                n = 5*j + tap
                wf = WF(st, tap); xf = XF(j+tap)
                ds.need([('a', wf+i) for i in range(4)] + [('a', xf+i) for i in range(4)])
                a = acc(j, nb)
                A(f"v_mfma_f32_16x16x32_bf16 v[{a}:{a+3}], {areg(wf)}, {areg(xf)}, v[{a}:{a+3}]")
                for (t, regs) in post[n]:
                    ds.issue(t, regs)
                if extra and n in extra:
                    for t in extra[n]: A(t)

    if opt.stamp:
        A("s_memtime s[48:49]")
    A("s_barrier")
    if opt.stamp:
        A("s_memtime s[50:51]")
        A("s_waitcnt lgkmcnt(0)")
    wr = wreads(0)
    order = []
    for tap in range(5):
        order.append(xread(tap)); order += wr[2*tap:2*tap+2]
    for q in range(5, 12): order.append(xread(q))
    for (t, regs) in order: ds.issue(t, regs)
    phase(0)
    A(".p2align 6")
    A("L_cloop:")
    xupd = {3: [f"s_bitcmp1_b32 s{S_K}, 1",
                f"s_cselect_b32 s{S_T}, s29, {XBUF-512}",
                f"s_bitcmp1_b32 s{S_K}, 0",
                f"s_cselect_b32 s{S_XD}, s{S_T}, 512"],
            21: [f"v_add_u32 v{V_X0}, s{S_XD}, v{V_X0}"],
            23: [f"v_add_u32 v{V_X1[0]}, s{S_XD}, v{V_X1[0]}"],
            25: [f"v_add_u32 v{V_X1[1]}, s{S_XD}, v{V_X1[1]}"],
            27: [f"v_add_u32 v{V_X1[2]}, s{S_XD}, v{V_X1[2]}"],
            29: [f"v_add_u32 v{V_X1[3]}, s{S_XD}, v{V_X1[3]}"]}
    phase(1, barrier=True, extra=xupd)
    phase(2, extra={25: [f"v_add_u32 v{V_W[0]}, s{S_WD}, v{V_W[0]}"]})
    phase(3, barrier=True, xreload=True,
          extra={25: [f"v_add_u32 v{V_W[1]}, s{S_WD}, v{V_W[1]}"],
                 27: [f"s_sub_u32 s{S_WD}, 0, s{S_WD}", f"s_add_u32 s{S_K}, s{S_K}, 1"]})
    phase(4, extra={37: [f"s_cmp_lt_u32 s{S_K}, 15"]})
    A("s_cbranch_scc1 L_cloop")
    phase(61, barrier=True)
    phase(62)
    phase(63, wnext=False)
    if opt.stamp:
        ds.drain()
        A("s_memtime s[52:53]")
    if opt.pad:
        n, loop = opt.pad.split(',')
        n = int(n); loop = int(loop)
        A(f"s_mov_b32 s43, {loop}")
        A("L_pad:")
        for i in range(n): A("v_mov_b32_e64 v9, v9")
        A("s_sub_u32 s43, s43, 1")
        A("s_cmp_lg_u32 s43, 0")
        A("s_cbranch_scc1 L_pad")
    if opt.dummy:
        A(f"s_mov_b32 s43, {opt.dummy}")
        for r in range(12, 28): A(f"v_mov_b32 v{r}, 0")
        A("s_nop 1")
        A("L_dummy:")
        for i in range(32):
            A(f"v_mfma_f32_16x16x32_bf16 v[{12+4*(i//8)}:{15+4*(i//8)}], {areg(WF(i&1, i%5))}, {areg(XF(i%12))}, v[{12+4*(i//8)}:{15+4*(i//8)}]")
        A("s_sub_u32 s43, s43, 1")
        A("s_cmp_lg_u32 s43, 0")
        A("s_cbranch_scc1 L_dummy")
        A("s_nop 7")
    A("; ---- epilogue")
    A("s_mov_b32 s36, 0x4038aa3b")
    A("s_mov_b32 s37, 0x4038aa3b")
    A("s_mov_b32 s38, 0xbfb8aa3b")
    A("s_mov_b32 s39, 0xbfb8aa3b")
    A("s_mov_b32 s42, 0x7fffffff")
    A("s_nop 7")
    TB = 10
    for j in range(8):
        PB = 20 + 4*(j & 1)
        pairs = []
        for p in range(2):
            for h in range(2):
                f = acc(j, p) + 2*h; g = acc(j, 2+p) + 2*h
                pairs.append((f, g, TB + 2*(2*p+h), PB + 2*p + h))
        for (f, g, t, o) in pairs: A(f"v_pk_mul_f32 v[{t}:{t+1}], v[{f}:{f+1}], s[36:37]")
        for (f, g, t, o) in pairs: A(f"v_pk_mul_f32 v[{g}:{g+1}], v[{g}:{g+1}], s[38:39]")
        for (f, g, t, o) in pairs:
            A(f"v_exp_f32 v{t}, -|v{t}|"); A(f"v_exp_f32 v{t+1}, -|v{t+1}|")
        for (f, g, t, o) in pairs:
            A(f"v_exp_f32 v{g}, v{g}"); A(f"v_exp_f32 v{g+1}, v{g+1}")
        for (f, g, t, o) in pairs: A(f"v_pk_add_f32 v[{g}:{g+1}], v[{g}:{g+1}], 1.0 op_sel_hi:[1,0]")
        for (f, g, t, o) in pairs: A(f"v_pk_fma_f32 v[{g}:{g+1}], v[{t}:{t+1}], v[{g}:{g+1}], v[{g}:{g+1}]")
        for (f, g, t, o) in pairs:
            A(f"v_rcp_f32 v{g}, v{g}"); A(f"v_rcp_f32 v{g+1}, v{g+1}")
        for (f, g, t, o) in pairs: A(f"v_pk_add_f32 v[{t}:{t+1}], v[{t}:{t+1}], 1.0 op_sel_hi:[1,0] neg_lo:[1,0] neg_hi:[1,0]")
        for (f, g, t, o) in pairs: A(f"v_pk_mul_f32 v[{t}:{t+1}], v[{t}:{t+1}], v[{g}:{g+1}]")
        for (f, g, t, o) in pairs:
            A(f"v_bfi_b32 v{t}, s42, v{t}, v{f}"); A(f"v_bfi_b32 v{t+1}, s42, v{t+1}, v{f+1}")
        for (f, g, t, o) in pairs: A(f"v_cvt_pk_bf16_f32 v{o}, v{t}, v{t+1}")
        if j >= 2 and j % 2 == 0:
            A(f"s_mov_b32 s43, {4096*(j//2)}")
        else:
            A("s_nop 0")
        A("s_nop 0")
        A(f"v_permlane16_swap_b32 v{PB}, v{PB+2}")
        A(f"v_permlane16_swap_b32 v{PB+1}, v{PB+3}")
        so = "0" if j < 2 else "s43"
        A(f"buffer_store_dwordx4 v[{PB}:{PB+3}], v{V_OUT}, s[20:23], {so} offen offset:{2048*(j&1)}{opt.spol}")
    if opt.stamp:
        A("s_memtime s[54:55]")
        A("s_waitcnt vmcnt(0)")
        A("s_memtime s[56:57]")
        A("s_memrealtime s[58:59]")
        A("s_waitcnt lgkmcnt(0)")
        if opt.dbgstamp:
            A("s_sub_u32 s60, s48, s44")
            A("s_sub_u32 s61, s50, s48")
            A("s_sub_u32 s62, s52, s50")
            A("s_sub_u32 s63, s54, s52")
            A("s_sub_u32 s64, s56, s54")
            A("s_sub_u32 s65, s56, s44")
            A("s_sub_u32 s66, s58, s46")
            A("s_mov_b32 s67, s46")
            A("s_cmp_lg_u32 s24, 0")
            A("s_cbranch_scc1 L_nostamp")
            A("s_mov_b32 s43, 0")
            A("s_cmp_eq_u32 s2, 0")
            A("s_cbranch_scc1 L_dostamp")
            A("s_mov_b32 s43, 32")
            A("s_cmp_eq_u32 s2, 133")
            A("s_cbranch_scc0 L_nostamp")
            A("L_dostamp:")
            A("s_mov_b32 s68, s40"); A("s_mov_b32 s69, s41"); A("s_mov_b32 s70, 256"); A("s_mov_b32 s71, 0x20000")
            A("v_mov_b32 v9, s43")
            A("s_mov_b64 exec, 1")
            for i in range(2):
                for k in range(4): A(f"v_mov_b32 v{12+k}, s{60+4*i+k}")
                A(f"buffer_store_dwordx4 v[12:15], v9, s[68:71], 0 offen offset:{16*i}")
                A("s_nop 1")
            A("L_nostamp:")
        else:
            A("s_mov_b32 s60, s40"); A("s_mov_b32 s61, s41"); A("s_mov_b32 s62, 0x10000000"); A("s_mov_b32 s63, 0x20000")
            A("s_lshl_b32 s43, s2, 2"); A("s_add_u32 s43, s43, s24"); A("s_lshl_b32 s43, s43, 6")
            A("v_mov_b32 v9, s43")
            A("s_mov_b64 exec, 1")
            for i in range(4):
                for k in range(4): A(f"v_mov_b32 v{12+k}, s{44+4*i+k}")
                A(f"buffer_store_dwordx4 v[12:15], v9, s[60:63], 0 offen offset:{16*i}")
                A("s_nop 1")
    A("s_endpgm")

    A("L_loader:")
    A("s_sub_u32 s34, s24, 4")
    A("v_lshrrev_b32 v10, 3, v0")
    A("v_and_b32 v11, 7, v0")
    A("v_lshrrev_b32 v12, 1, v11")
    A("v_bfe_u32 v13, v10, 1, 1")
    A("s_and_b32 s35, s34, 1")
    A("s_lshl_b32 s35, s35, 1")
    A("v_or_b32 v13, s35, v13")
    A("v_xor_b32 v12, v12, v13")
    A("v_lshlrev_b32 v12, 5, v12")
    A("v_and_b32 v11, 1, v11")
    A("v_lshl_add_u32 v12, v11, 4, v12")
    A("s_lshl_b32 s35, s34, 3")
    A("v_add_u32 v10, s35, v10")
    A("v_lshl_add_u32 v12, v10, 11, v12")
    A("s_lshl_b32 s35, s26, 1")
    A("v_add_u32 v1, s35, v12")
    A("v_lshrrev_b32 v10, 5, v0")
    A("v_bfe_u32 v11, v0, 2, 3")
    A("v_and_b32 v12, 3, v0")
    A("v_lshrrev_b32 v13, 2, v11")
    A("v_lshlrev_b32 v13, 1, v13")
    A("v_xor_b32 v13, v13, v12")
    A("v_lshlrev_b32 v14, 6, v10")
    A("v_lshl_add_u32 v15, v13, 4, v14")
    A("v_lshl_add_u32 v16, v12, 4, v14")
    A("v_and_b32 v13, 1, v11")
    A("v_lshrrev_b32 v17, 1, v11")
    A("v_lshl_add_u32 v13, v17, 4, v13")
    A("s_lshl_b32 s35, s34, 6")
    A("s_add_u32 s35, s35, s25")
    A("s_sub_u32 s35, s35, 8")
    A("v_add_u32 v13, s35, v13")
    A("v_lshlrev_b32 v17, 10, v13")
    A("v_add_u32 v17, v17, v15")
    A("v_add_u32 v3, 0x2000, v17")
    A("v_mov_b32 v18, 0x80000000")
    A("v_cmp_gt_i32 vcc, 0, v13")
    A("s_add_u32 s35, s25, 248")
    A("v_add_u32 v11, s35, v11")
    A("v_cndmask_b32 v2, v17, v18, vcc")
    A("v_lshlrev_b32 v11, 10, v11")
    A("v_add_u32 v4, v11, v16")
    A("s_lshl_b32 s35, s34, 4")
    A("s_mov_b64 s[36:37], 0xffff")
    A("s_lshl_b64 s[36:37], s[36:37], s35")
    A("s_lshl_b32 s38, s34, 10")
    A("s_waitcnt lgkmcnt(0)")
    A("s_add_u32 s12, s4, s28")
    A("s_addc_u32 s13, s5, 0")
    A(f"s_mov_b32 s14, {XBATCH}")
    A("s_mov_b32 s15, 0x20000")
    A("s_mov_b32 s16, s6")
    A("s_mov_b32 s17, s7")
    A(f"s_mov_b32 s18, {WBYTES}")
    A("s_mov_b32 s19, 0x20000")

    vq = []
    def w_issue(u, static=True):
        for tap in range(5):
            if tap == 0:
                A("s_mov_b32 m0, s45")
                A("s_mov_b32 s48, s44")
            else:
                A("s_add_u32 m0, m0, 4096")
                A("s_add_u32 s48, s48, 0x100000")
            A(f"buffer_load_dwordx4 v1, s[16:19], s48 offen{opt.wpol} lds")
            vq.append(('W', u))
    def w_advance(u):
        if u & 1: A(f"s_add_u32 s44, s44, {65536-1024}")
        else: A("s_add_u32 s44, s44, 1024")
        if (u & 3) == 3: A(f"s_sub_u32 s45, s45, {3*WUNIT}")
        else: A(f"s_add_u32 s45, s45, {WUNIT}")
    def x_issue(c, part):
        qs = range(0, 4) if part == 0 else range(4, 8)
        for q in qs:
            A(f"s_add_u32 m0, s47, {q*4096}")
            if q < 4:
                A(f"s_add_u32 s48, s46, {2*q*1024}")
                A(f"buffer_load_dwordx4 v2, s[12:15], s48 offen{opt.xpol} lds")
            else:
                A(f"s_add_u32 s48, s46, {(2*q-8)*1024}")
                A(f"buffer_load_dwordx4 v3, s[12:15], s48 offen{opt.xpol} lds")
            vq.append(('X', c))
        if part == 1:
            A(f"s_sub_u32 m0, s47, s38")
            A(f"s_add_u32 m0, m0, 32768")
            A("s_mov_b64 exec, s[36:37]")
            A(f"buffer_load_dwordx4 v4, s[12:15], s46 offen{opt.xpol} lds")
            A("s_mov_b64 exec, -1")
            vq.append(('X', c))
    def x_advance():
        A("s_add_u32 s46, s46, 128")
        A("s_xor_b32 s47, s47, s49")
    def need_n(u):
        need = [('W', u)]
        if u % 4 == 0: need.append(('X', u//4))
        last = -1
        for i, t in enumerate(vq):
            if t in need: last = i
        return len(vq) - 1 - last if last >= 0 else None
    def wait_for(u, n=None):
        nn = need_n(u)
        if n is None: n = nn
        assert nn is None or n <= nn
        if n is not None:
            A(f"s_waitcnt vmcnt({n})")
            del vq[:len(vq)-n]
    A("s_mov_b32 s44, 0")
    A("s_mov_b32 s45, s38")
    A("s_mov_b32 s46, 0")
    A(f"s_add_u32 s47, s38, {XBASE}")
    A(f"s_add_u32 s49, s38, {XBASE+XBUF}")
    A("s_xor_b32 s49, s49, s47")
    x_issue(0, 0); x_issue(0, 1); x_advance()
    for u in range(4):
        w_issue(u); w_advance(u)
    x_issue(1, 0); x_issue(1, 1); x_advance()
    import copy
    def interval(u, emit=True, nfix=None):
        wait_for(u, nfix)
        A("s_barrier")
        if 1 <= u <= 28:
            w_issue(u+3); w_advance(u+3)
        if u % 4 == 3 and u//4 + 2 <= 7:
            x_issue(u//4+2, 0)
        if u % 4 == 0 and u >= 4 and u//4 + 1 <= 7:
            x_issue(u//4+1, 1); x_advance()
    saveL = list(A.L); savevq = list(vq)
    Ns = {}
    for u in range(32):
        Ns[u] = need_n(u)
        interval(u)
    A.L = saveL; vq[:] = savevq
    interval(0)
    Nl = {m: min(Ns[u] for u in range(1, 25) if u % 4 == m) for m in range(4)}
    A("s_mov_b32 s50, 0")
    A("L_lloop:")
    for u in range(1, 5):
        interval(u, nfix=Nl[u % 4])
    A("s_add_u32 s50, s50, 1")
    A("s_cmp_lt_u32 s50, 6")
    A("s_cbranch_scc1 L_lloop")
    saveL = list(A.L)
    for u in range(5, 25): interval(u, nfix=Nl[u % 4])
    A.L = saveL
    for u in range(25, 32): interval(u)
    A("L_end:")
    A("s_endpgm")
    A('.section .rodata,"a"')
    A(".p2align 6")
    A(f".amdhsa_kernel {NAME}")
    A("  .amdhsa_next_free_vgpr 256")
    A("  .amdhsa_next_free_sgpr 72")
    A("  .amdhsa_accum_offset 168")
    A("  .amdhsa_group_segment_fixed_size 0")
    A("  .amdhsa_kernarg_size 40")
    A("  .amdhsa_user_sgpr_count 2")
    A("  .amdhsa_user_sgpr_kernarg_segment_ptr 1")
    A("  .amdhsa_system_sgpr_workgroup_id_x 1")
    A("  .amdhsa_float_denorm_mode_32 3")
    A(".end_amdhsa_kernel")
    if opt.meta:
        A(f""".amdgpu_metadata
---
amdhsa.version: [1, 2]
amdhsa.kernels:
  - .name: {NAME}
    .symbol: {NAME}.kd
    .kernarg_segment_size: 40
    .kernarg_segment_align: 8
    .group_segment_fixed_size: 0
    .private_segment_fixed_size: 0
    .wavefront_size: 64
    .sgpr_count: 72
    .vgpr_count: 256
    .max_flat_workgroup_size: 512
    .args:
      - {{.name: kernargs, .size: 40, .offset: 0, .value_kind: by_value}}
...
.end_amdgpu_metadata""")
    sys.stderr.write(f"loader waits: {Ns}\nloop: {Nl}\n")
    return A.text()

if __name__ == "__main__":
    ap = argparse.ArgumentParser()
    ap.add_argument("-o", default="/dev/stdout")
    ap.add_argument("--meta", action="store_true")
    ap.add_argument("--stamp", action="store_true")
    ap.add_argument("--dbgstamp", action="store_true")
    ap.add_argument("--dummy", type=int, default=0)
    ap.add_argument("--pad", default="")
    ap.add_argument("--cprio", type=int, default=0)
    ap.add_argument("--wpol", default="")
    ap.add_argument("--xpol", default="")
    ap.add_argument("--spol", default="")
    opt = ap.parse_args()
    if opt.wpol: opt.wpol = " " + opt.wpol
    if opt.xpol: opt.xpol = " " + opt.xpol
    if opt.spol: opt.spol = " " + opt.spol
    open(opt.o, "w").write(gen(opt))
```

```python
import sys, argparse

NAME = "standalone__autoregressive_conv_wavernn__speech_kernel"
XBATCH = 4096000
WBYTES = 5242880
WUNIT = 20480
XBASE = 4 * WUNIT
XBUF = 33792
LDS_BYTES = XBASE + 2 * XBUF

class Asm:
    def __init__(self):
        self.L = []
    def __call__(self, s):
        self.L.append(s)
    def text(self):
        return "\n".join(self.L) + "\n"

class DS:
    def __init__(self, A):
        self.A = A
        self.q = []
    def issue(self, text, regs):
        if len(self.q) >= 14:
            self.wait_n(10)
        self.A(text)
        self.q.append(set(regs))
    def wait_n(self, n):
        if len(self.q) > n:
            self.A(f"s_waitcnt lgkmcnt({n})")
            self.q = self.q[len(self.q)-n:] if n > 0 else []
    def need(self, regs):
        regs = set(regs)
        last = -1
        for i, s in enumerate(self.q):
            if s & regs:
                last = i
        if last >= 0:
            self.wait_n(len(self.q) - 1 - last)
    def drain(self):
        self.A("s_waitcnt lgkmcnt(0)")
        self.q = []

ACC0 = 40
def acc(j, nb):
    b = ACC0 + (j*4 + nb)*4
    return b
def areg(n): return f"a[{n}:{n+3}]"
def XF(q): return 4*q
def WF(st, tap): return 48 + st*20 + tap*4
V_W = [1, 2]
V_X0 = 3
V_X1 = [4, 5, 6, 7]
V_OUT = 8
S_K = 30; S_WD = 31; S_XD = 32; S_T = 33

def gen(opt):
    A = Asm()
    A(f"; @launch grid=(256,1,1) block=(512,1,1) lds={LDS_BYTES}")
    A('.amdgcn_target "amdgcn-amd-amdhsa--gfx950"')
    A(".text")
    A(f".globl {NAME}")
    A(".p2align 8")
    A(f".type {NAME},@function")
    A(f"{NAME}:")
    A("s_cmp_ge_u32 s2, 256")
    A("s_cbranch_scc1 L_end")
    A("s_load_dwordx4 s[4:7], s[0:1], 0")
    A("s_load_dwordx2 s[8:9], s[0:1], 16")
    if opt.stamp:
        A("s_load_dwordx2 s[40:41], s[0:1], %d" % (24 if opt.dbgstamp else 32))
        A("s_memtime s[44:45]")
        A("s_memrealtime s[46:47]")
    if opt.spin:
        A("s_memrealtime s[62:63]")
    A("v_lshrrev_b32 v1, 6, v0")
    A("v_and_b32 v0, 63, v0")
    A("s_and_b32 s28, s2, 7")
    A("v_readfirstlane_b32 s24, v1")
    A("s_lshr_b32 s29, s2, 3")
    A("s_lshr_b32 s30, s28, 1")
    A("s_lshl_b32 s30, s30, 3")
    A("s_lshr_b32 s31, s29, 2")
    A("s_add_u32 s30, s30, s31")
    A("s_and_b32 s31, s28, 1")
    A("s_lshl_b32 s31, s31, 2")
    A("s_and_b32 s29, s29, 3")
    A("s_add_u32 s31, s31, s29")
    A("s_lshr_b32 s27, s30, 4")
    A("s_and_b32 s25, s30, 15")
    A("s_lshl_b32 s25, s25, 8")
    A("s_lshl_b32 s26, s31, 6")
    A(f"s_mul_i32 s28, s27, {XBATCH}")
    A("s_cmp_ge_u32 s24, 4")
    A("s_cbranch_scc1 L_loader")

    A("s_setprio %d" % opt.cprio) if opt.cprio else None
    A("s_lshr_b32 s34, s24, 1")
    A("s_and_b32 s35, s24, 1")
    A("v_lshrrev_b32 v10, 4, v0")
    A("v_and_b32 v11, 15, v0")
    A("v_lshrrev_b32 v12, 2, v11")
    A("v_lshl_add_u32 v12, v10, 3, v12")
    A("v_lshlrev_b32 v12, 7, v12")
    A("v_and_b32 v13, 3, v11")
    A("v_lshl_add_u32 v12, v13, 3, v12")
    A("v_lshrrev_b32 v13, 3, v11")
    A("v_and_b32 v14, 1, v10")
    A("v_lshl_or_b32 v13, v14, 1, v13")
    A("s_lshl_b32 s36, s35, 1")
    for p in range(2):
        A(f"s_add_u32 s37, s36, {p}")
        A("v_xor_b32 v14, s37, v13")
        A(f"v_lshl_add_u32 v{V_W[p]}, v14, 5, v12")
    A("s_lshl_b32 s36, s34, 4")
    def xaddr(dst, Rreg):
        A(f"v_lshrrev_b32 v15, 3, v{Rreg}")
        A(f"v_lshlrev_b32 v15, 10, v15")
        A(f"v_and_b32 v16, 7, v{Rreg}")
        A(f"v_lshl_add_u32 v15, v16, 6, v15")
        A(f"v_bfe_u32 v16, v{Rreg}, 2, 1")
        A(f"v_lshlrev_b32 v16, 1, v16")
        A(f"v_xor_b32 v16, v16, v10")
        A(f"v_lshl_add_u32 v15, v16, 4, v15")
        A(f"v_add_u32 v{dst}, {XBASE}, v15")
    A("v_add_u32 v13, s36, v11")
    xaddr(V_X0, 13)
    A("v_add_u32 v13, 2, v13")
    xaddr(17, 13)
    A("v_and_b32 v16, 1, v13")
    A("v_lshlrev_b32 v16, 6, v16")
    A("v_lshl_add_u32 v16, v10, 4, v16")
    A(f"v_add_u32 v16, {XBASE+32768}, v16")
    A("v_cmp_le_u32 vcc, 32, v13")
    for q in range(4):
        A(f"v_add_u32 v18, {q*4096}, v17")
        A(f"v_add_u32 v19, {q*128}, v16")
        A(f"v_cndmask_b32 v{V_X1[q]}, v18, v19, vcc")
    A("v_and_b32 v13, 1, v11")
    A("v_lshrrev_b32 v14, 1, v11")
    A("v_lshl_add_u32 v13, v14, 4, v13")
    A("s_lshl_b32 s36, s34, 7")
    A("s_add_u32 s36, s36, s25")
    A("v_add_u32 v13, s36, v13")
    A("v_lshlrev_b32 v13, 10, v13")
    A("v_and_b32 v14, 1, v10")
    A("v_lshlrev_b32 v14, 5, v14")
    A("v_lshrrev_b32 v15, 1, v10")
    A("v_lshl_add_u32 v14, v15, 4, v14")
    A("s_lshl_b32 s36, s35, 5")
    A("s_add_u32 s36, s36, s26")
    A("s_lshl_b32 s36, s36, 1")
    A("v_add_u32 v13, s36, v13")
    A(f"v_add_u32 v{V_OUT}, v13, v14")
    for r in range(128):
        A(f"v_mov_b32 v{ACC0+r}, 0")
    A("s_waitcnt lgkmcnt(0)")
    A("s_add_u32 s20, s8, s28")
    A("s_addc_u32 s21, s9, 0")
    A(f"s_mov_b32 s22, {XBATCH}")
    A("s_mov_b32 s23, 0x20000")
    A(f"s_mov_b32 s{S_K}, 0")
    A(f"s_mov_b32 s{S_WD}, {2*WUNIT}")
    A(f"s_mov_b32 s29, {-(XBUF+512)}")

    ds = DS(A)
    def wreads(phi_next):
        p = phi_next & 1; half = (phi_next >> 1) & 1; st = phi_next & 1
        out = []
        for tap in range(5):
            for h in range(2):
                r = WF(st, tap) + 2*h
                off = half*WUNIT + tap*4096 + h*512
                out.append((f"ds_read_b64_tr_b16 a[{r}:{r+1}], v{V_W[p]} offset:{off}", [('a', r), ('a', r+1)]))
        return out
    def xread(q):
        r = XF(q)
        regs = [('a', r+i) for i in range(4)]
        if q < 8:
            return (f"ds_read_b128 a[{r}:{r+3}], v{V_X0} offset:{q*4096}", regs)
        return (f"ds_read_b128 a[{r}:{r+3}], v{V_X1[q-8]} offset:0", regs)

    def phase(phi, wnext=True, xreload=False, barrier=False, extra=None):
        nb = phi & 3; st = phi & 1
        if barrier:
            ds.drain()
            A("s_barrier")
        post = {n: [] for n in range(40)}
        if wnext:
            wr = wreads(phi+1)
            for i, rd in enumerate(wr):
                post[2*i].append(rd)
        if xreload:
            for q in range(8): post[5*q].append(xread(q))
            for q in range(8, 12): post[28+q].append(xread(q))
        for j in range(8):
            for tap in range(5):
                n = 5*j + tap
                wf = WF(st, tap); xf = XF(j+tap)
                ds.need([('a', wf+i) for i in range(4)] + [('a', xf+i) for i in range(4)])
                a = acc(j, nb)
                A(f"v_mfma_f32_16x16x32_bf16 v[{a}:{a+3}], {areg(wf)}, {areg(xf)}, v[{a}:{a+3}]")
                for (t, regs) in post[n]:
                    ds.issue(t, regs)
                if extra and n in extra:
                    for t in extra[n]: A(t)

    if opt.spin:
        A("s_memrealtime s[64:65]")
        A("s_waitcnt lgkmcnt(0)")
    if opt.stamp:
        A("s_memtime s[48:49]")
    A("s_barrier")
    if opt.stamp:
        A("s_memtime s[50:51]")
        A("s_waitcnt lgkmcnt(0)")
    if opt.spin:
        A("s_memrealtime s[66:67]")
        A("s_waitcnt lgkmcnt(0)")
    wr = wreads(0)
    order = []
    for tap in range(5):
        order.append(xread(tap)); order += wr[2*tap:2*tap+2]
    for q in range(5, 12): order.append(xread(q))
    for (t, regs) in order: ds.issue(t, regs)
    phase(0)
    A(".p2align 6")
    A("L_cloop:")
    xupd = {3: [f"s_bitcmp1_b32 s{S_K}, 1",
                f"s_cselect_b32 s{S_T}, s29, {XBUF-512}",
                f"s_bitcmp1_b32 s{S_K}, 0",
                f"s_cselect_b32 s{S_XD}, s{S_T}, 512"],
            21: [f"v_add_u32 v{V_X0}, s{S_XD}, v{V_X0}"],
            23: [f"v_add_u32 v{V_X1[0]}, s{S_XD}, v{V_X1[0]}"],
            25: [f"v_add_u32 v{V_X1[1]}, s{S_XD}, v{V_X1[1]}"],
            27: [f"v_add_u32 v{V_X1[2]}, s{S_XD}, v{V_X1[2]}"],
            29: [f"v_add_u32 v{V_X1[3]}, s{S_XD}, v{V_X1[3]}"]}
    phase(1, barrier=True, extra=xupd)
    phase(2, extra={25: [f"v_add_u32 v{V_W[0]}, s{S_WD}, v{V_W[0]}"]})
    phase(3, barrier=True, xreload=True,
          extra={25: [f"v_add_u32 v{V_W[1]}, s{S_WD}, v{V_W[1]}"],
                 27: [f"s_sub_u32 s{S_WD}, 0, s{S_WD}", f"s_add_u32 s{S_K}, s{S_K}, 1"]})
    phase(4, extra={37: [f"s_cmp_lt_u32 s{S_K}, 15"]})
    A("s_cbranch_scc1 L_cloop")
    phase(61, barrier=True)
    phase(62)
    phase(63, wnext=False)
    if opt.stamp:
        ds.drain()
        A("s_memtime s[52:53]")
    if opt.spin:
        ds.drain()
        A("s_memrealtime s[68:69]")
        A("s_waitcnt lgkmcnt(0)")
    if opt.pad:
        n, loop = opt.pad.split(',')
        n = int(n); loop = int(loop)
        A(f"s_mov_b32 s43, {loop}")
        A("L_pad:")
        for i in range(n): A("v_mov_b32_e64 v9, v9")
        A("s_sub_u32 s43, s43, 1")
        A("s_cmp_lg_u32 s43, 0")
        A("s_cbranch_scc1 L_pad")
    if opt.dummy:
        A(f"s_mov_b32 s43, {opt.dummy}")
        for r in range(12, 28): A(f"v_mov_b32 v{r}, 0")
        A("s_nop 1")
        A("L_dummy:")
        for i in range(32):
            A(f"v_mfma_f32_16x16x32_bf16 v[{12+4*(i//8)}:{15+4*(i//8)}], {areg(WF(i&1, i%5))}, {areg(XF(i%12))}, v[{12+4*(i//8)}:{15+4*(i//8)}]")
        A("s_sub_u32 s43, s43, 1")
        A("s_cmp_lg_u32 s43, 0")
        A("s_cbranch_scc1 L_dummy")
        A("s_nop 7")
    A("; ---- epilogue")
    A("s_mov_b32 s36, 0x4038aa3b")
    A("s_mov_b32 s37, 0x4038aa3b")
    A("s_mov_b32 s38, 0xbfb8aa3b")
    A("s_mov_b32 s39, 0xbfb8aa3b")
    A("s_mov_b32 s42, 0x7fffffff")
    A("s_nop 7")
    TB = 10
    for j in range(8):
        PB = 20 + 4*(j & 1)
        pairs = []
        for p in range(2):
            for h in range(2):
                f = acc(j, p) + 2*h; g = acc(j, 2+p) + 2*h
                pairs.append((f, g, TB + 2*(2*p+h), PB + 2*p + h))
        for (f, g, t, o) in pairs: A(f"v_pk_mul_f32 v[{t}:{t+1}], v[{f}:{f+1}], s[36:37]")
        for (f, g, t, o) in pairs: A(f"v_pk_mul_f32 v[{g}:{g+1}], v[{g}:{g+1}], s[38:39]")
        for (f, g, t, o) in pairs:
            A(f"v_exp_f32 v{t}, -|v{t}|"); A(f"v_exp_f32 v{t+1}, -|v{t+1}|")
        for (f, g, t, o) in pairs:
            A(f"v_exp_f32 v{g}, v{g}"); A(f"v_exp_f32 v{g+1}, v{g+1}")
        for (f, g, t, o) in pairs: A(f"v_pk_add_f32 v[{g}:{g+1}], v[{g}:{g+1}], 1.0 op_sel_hi:[1,0]")
        for (f, g, t, o) in pairs: A(f"v_pk_fma_f32 v[{g}:{g+1}], v[{t}:{t+1}], v[{g}:{g+1}], v[{g}:{g+1}]")
        for (f, g, t, o) in pairs:
            A(f"v_rcp_f32 v{g}, v{g}"); A(f"v_rcp_f32 v{g+1}, v{g+1}")
        for (f, g, t, o) in pairs: A(f"v_pk_add_f32 v[{t}:{t+1}], v[{t}:{t+1}], 1.0 op_sel_hi:[1,0] neg_lo:[1,0] neg_hi:[1,0]")
        for (f, g, t, o) in pairs: A(f"v_pk_mul_f32 v[{t}:{t+1}], v[{t}:{t+1}], v[{g}:{g+1}]")
        for (f, g, t, o) in pairs:
            A(f"v_bfi_b32 v{t}, s42, v{t}, v{f}"); A(f"v_bfi_b32 v{t+1}, s42, v{t+1}, v{f+1}")
        for (f, g, t, o) in pairs: A(f"v_cvt_pk_bf16_f32 v{o}, v{t}, v{t+1}")
        if j >= 2 and j % 2 == 0:
            A(f"s_mov_b32 s43, {4096*(j//2)}")
        else:
            A("s_nop 0")
        A("s_nop 0")
        A(f"v_permlane16_swap_b32 v{PB}, v{PB+2}")
        A(f"v_permlane16_swap_b32 v{PB+1}, v{PB+3}")
        so = "0" if j < 2 else "s43"
        A(f"buffer_store_dwordx4 v[{PB}:{PB+3}], v{V_OUT}, s[20:23], {so} offen offset:{2048*(j&1)}{opt.spol}")
    if opt.spin:
        A("s_waitcnt vmcnt(0)")
        A("s_memrealtime s[70:71]")
        A("s_waitcnt lgkmcnt(0)")
        which, mult = opt.spin.split(',')
        a, b = {'pro': (62, 66), 'main': (66, 68), 'epi': (68, 70), 'none': (70, 70)}[which]
        A(f"s_sub_u32 s43, s{b}, s{a}")
        A(f"s_mul_i32 s43, s43, {mult}")
        A("s_add_u32 s43, s43, s70")
        A("L_spin:")
        A("s_memrealtime s[60:61]")
        A("s_waitcnt lgkmcnt(0)")
        A("s_sub_u32 s42, s60, s43")
        A("s_cmp_lt_i32 s42, 0")
        A("s_cbranch_scc1 L_spin")
    if opt.stamp:
        A("s_memtime s[54:55]")
        A("s_waitcnt vmcnt(0)")
        A("s_memtime s[56:57]")
        A("s_memrealtime s[58:59]")
        A("s_waitcnt lgkmcnt(0)")
        if opt.dbgstamp:
            A("s_sub_u32 s60, s48, s44")
            A("s_sub_u32 s61, s50, s48")
            A("s_sub_u32 s62, s52, s50")
            A("s_sub_u32 s63, s54, s52")
            A("s_sub_u32 s64, s56, s54")
            A("s_sub_u32 s65, s56, s44")
            A("s_sub_u32 s66, s58, s46")
            A("s_mov_b32 s67, s46")
            A("s_cmp_lg_u32 s24, 0")
            A("s_cbranch_scc1 L_nostamp")
            A("s_mov_b32 s43, 0")
            A("s_cmp_eq_u32 s2, 0")
            A("s_cbranch_scc1 L_dostamp")
            A("s_mov_b32 s43, 32")
            A("s_cmp_eq_u32 s2, 133")
            A("s_cbranch_scc0 L_nostamp")
            A("L_dostamp:")
            A("s_mov_b32 s68, s40"); A("s_mov_b32 s69, s41"); A("s_mov_b32 s70, 256"); A("s_mov_b32 s71, 0x20000")
            A("v_mov_b32 v9, s43")
            A("s_mov_b64 exec, 1")
            for i in range(2):
                for k in range(4): A(f"v_mov_b32 v{12+k}, s{60+4*i+k}")
                A(f"buffer_store_dwordx4 v[12:15], v9, s[68:71], 0 offen offset:{16*i}")
                A("s_nop 1")
            A("L_nostamp:")
        else:
            A("s_mov_b32 s60, s40"); A("s_mov_b32 s61, s41"); A("s_mov_b32 s62, 0x10000000"); A("s_mov_b32 s63, 0x20000")
            A("s_lshl_b32 s43, s2, 2"); A("s_add_u32 s43, s43, s24"); A("s_lshl_b32 s43, s43, 6")
            A("v_mov_b32 v9, s43")
            A("s_mov_b64 exec, 1")
            for i in range(4):
                for k in range(4): A(f"v_mov_b32 v{12+k}, s{44+4*i+k}")
                A(f"buffer_store_dwordx4 v[12:15], v9, s[60:63], 0 offen offset:{16*i}")
                A("s_nop 1")
    A("s_endpgm")

    A("L_loader:")
    A("s_sub_u32 s34, s24, 4")
    A("v_lshrrev_b32 v10, 3, v0")
    A("v_and_b32 v11, 7, v0")
    A("v_lshrrev_b32 v12, 1, v11")
    A("v_bfe_u32 v13, v10, 1, 1")
    A("s_and_b32 s35, s34, 1")
    A("s_lshl_b32 s35, s35, 1")
    A("v_or_b32 v13, s35, v13")
    A("v_xor_b32 v12, v12, v13")
    A("v_lshlrev_b32 v12, 5, v12")
    A("v_and_b32 v11, 1, v11")
    A("v_lshl_add_u32 v12, v11, 4, v12")
    A("s_lshl_b32 s35, s34, 3")
    A("v_add_u32 v10, s35, v10")
    A("v_lshl_add_u32 v12, v10, 11, v12")
    A("s_lshl_b32 s35, s26, 1")
    A("v_add_u32 v1, s35, v12")
    A("v_lshrrev_b32 v10, 5, v0")
    A("v_bfe_u32 v11, v0, 2, 3")
    A("v_and_b32 v12, 3, v0")
    A("v_lshrrev_b32 v13, 2, v11")
    A("v_lshlrev_b32 v13, 1, v13")
    A("v_xor_b32 v13, v13, v12")
    A("v_lshlrev_b32 v14, 6, v10")
    A("v_lshl_add_u32 v15, v13, 4, v14")
    A("v_lshl_add_u32 v16, v12, 4, v14")
    A("v_and_b32 v13, 1, v11")
    A("v_lshrrev_b32 v17, 1, v11")
    A("v_lshl_add_u32 v13, v17, 4, v13")
    A("s_lshl_b32 s35, s34, 6")
    A("s_add_u32 s35, s35, s25")
    A("s_sub_u32 s35, s35, 8")
    A("v_add_u32 v13, s35, v13")
    A("v_lshlrev_b32 v17, 10, v13")
    A("v_add_u32 v17, v17, v15")
    A("v_add_u32 v3, 0x2000, v17")
    A("v_mov_b32 v18, 0x80000000")
    A("v_cmp_gt_i32 vcc, 0, v13")
    A("s_add_u32 s35, s25, 248")
    A("v_add_u32 v11, s35, v11")
    A("v_cndmask_b32 v2, v17, v18, vcc")
    A("v_lshlrev_b32 v11, 10, v11")
    A("v_add_u32 v4, v11, v16")
    A("s_lshl_b32 s35, s34, 4")
    A("s_mov_b64 s[36:37], 0xffff")
    A("s_lshl_b64 s[36:37], s[36:37], s35")
    A("s_lshl_b32 s38, s34, 10")
    A("s_waitcnt lgkmcnt(0)")
    A("s_add_u32 s12, s4, s28")
    A("s_addc_u32 s13, s5, 0")
    A(f"s_mov_b32 s14, {XBATCH}")
    A("s_mov_b32 s15, 0x20000")
    A("s_mov_b32 s16, s6")
    A("s_mov_b32 s17, s7")
    A(f"s_mov_b32 s18, {WBYTES}")
    A("s_mov_b32 s19, 0x20000")

    vq = []
    def w_issue(u, static=True):
        for tap in range(5):
            if tap == 0:
                A("s_mov_b32 m0, s45")
                A("s_mov_b32 s48, s44")
            else:
                A("s_add_u32 m0, m0, 4096")
                A("s_add_u32 s48, s48, 0x100000")
            A(f"buffer_load_dwordx4 v1, s[16:19], s48 offen{opt.wpol} lds")
            vq.append(('W', u))
    def w_advance(u):
        if u & 1: A(f"s_add_u32 s44, s44, {65536-1024}")
        else: A("s_add_u32 s44, s44, 1024")
        if (u & 3) == 3: A(f"s_sub_u32 s45, s45, {3*WUNIT}")
        else: A(f"s_add_u32 s45, s45, {WUNIT}")
    def x_issue(c, part):
        qs = range(0, 4) if part == 0 else range(4, 8)
        for q in qs:
            A(f"s_add_u32 m0, s47, {q*4096}")
            if q < 4:
                A(f"s_add_u32 s48, s46, {2*q*1024}")
                A(f"buffer_load_dwordx4 v2, s[12:15], s48 offen{opt.xpol} lds")
            else:
                A(f"s_add_u32 s48, s46, {(2*q-8)*1024}")
                A(f"buffer_load_dwordx4 v3, s[12:15], s48 offen{opt.xpol} lds")
            vq.append(('X', c))
        if part == 1:
            A(f"s_sub_u32 m0, s47, s38")
            A(f"s_add_u32 m0, m0, 32768")
            A("s_mov_b64 exec, s[36:37]")
            A(f"buffer_load_dwordx4 v4, s[12:15], s46 offen{opt.xpol} lds")
            A("s_mov_b64 exec, -1")
            vq.append(('X', c))
    def x_advance():
        A("s_add_u32 s46, s46, 128")
        A("s_xor_b32 s47, s47, s49")
    def need_n(u):
        need = [('W', u)]
        if u % 4 == 0: need.append(('X', u//4))
        last = -1
        for i, t in enumerate(vq):
            if t in need: last = i
        return len(vq) - 1 - last if last >= 0 else None
    def wait_for(u, n=None):
        nn = need_n(u)
        if n is None: n = nn
        assert nn is None or n <= nn
        if n is not None:
            A(f"s_waitcnt vmcnt({n})")
            del vq[:len(vq)-n]
    A("s_mov_b32 s44, 0")
    A("s_mov_b32 s45, s38")
    A("s_mov_b32 s46, 0")
    A(f"s_add_u32 s47, s38, {XBASE}")
    A(f"s_add_u32 s49, s38, {XBASE+XBUF}")
    A("s_xor_b32 s49, s49, s47")
    x_issue(0, 0); x_issue(0, 1); x_advance()
    for u in range(4):
        w_issue(u); w_advance(u)
    x_issue(1, 0); x_issue(1, 1); x_advance()
    import copy
    def interval(u, emit=True, nfix=None):
        wait_for(u, nfix)
        A("s_barrier")
        if 1 <= u <= 28:
            w_issue(u+3); w_advance(u+3)
        if u % 4 == 3 and u//4 + 2 <= 7:
            x_issue(u//4+2, 0)
        if u % 4 == 0 and u >= 4 and u//4 + 1 <= 7:
            x_issue(u//4+1, 1); x_advance()
    saveL = list(A.L); savevq = list(vq)
    Ns = {}
    for u in range(32):
        Ns[u] = need_n(u)
        interval(u)
    A.L = saveL; vq[:] = savevq
    interval(0)
    Nl = {m: min(Ns[u] for u in range(1, 25) if u % 4 == m) for m in range(4)}
    A("s_mov_b32 s50, 0")
    A("L_lloop:")
    for u in range(1, 5):
        interval(u, nfix=Nl[u % 4])
    A("s_add_u32 s50, s50, 1")
    A("s_cmp_lt_u32 s50, 6")
    A("s_cbranch_scc1 L_lloop")
    saveL = list(A.L)
    for u in range(5, 25): interval(u, nfix=Nl[u % 4])
    A.L = saveL
    for u in range(25, 32): interval(u)
    A("L_end:")
    A("s_endpgm")
    A('.section .rodata,"a"')
    A(".p2align 6")
    A(f".amdhsa_kernel {NAME}")
    A("  .amdhsa_next_free_vgpr 256")
    A("  .amdhsa_next_free_sgpr 72")
    A("  .amdhsa_accum_offset 168")
    A("  .amdhsa_group_segment_fixed_size 0")
    A("  .amdhsa_kernarg_size 40")
    A("  .amdhsa_user_sgpr_count 2")
    A("  .amdhsa_user_sgpr_kernarg_segment_ptr 1")
    A("  .amdhsa_system_sgpr_workgroup_id_x 1")
    A("  .amdhsa_float_denorm_mode_32 3")
    A(".end_amdhsa_kernel")
    if opt.meta:
        A(f""".amdgpu_metadata
---
amdhsa.version: [1, 2]
amdhsa.kernels:
  - .name: {NAME}
    .symbol: {NAME}.kd
    .kernarg_segment_size: 40
    .kernarg_segment_align: 8
    .group_segment_fixed_size: 0
    .private_segment_fixed_size: 0
    .wavefront_size: 64
    .sgpr_count: 72
    .vgpr_count: 256
    .max_flat_workgroup_size: 512
    .args:
      - {{.name: kernargs, .size: 40, .offset: 0, .value_kind: by_value}}
...
.end_amdgpu_metadata""")
    sys.stderr.write(f"loader waits: {Ns}\nloop: {Nl}\n")
    return A.text()

if __name__ == "__main__":
    ap = argparse.ArgumentParser()
    ap.add_argument("-o", default="/dev/stdout")
    ap.add_argument("--meta", action="store_true")
    ap.add_argument("--stamp", action="store_true")
    ap.add_argument("--dbgstamp", action="store_true")
    ap.add_argument("--dummy", type=int, default=0)
    ap.add_argument("--pad", default="")
    ap.add_argument("--spin", default="")
    ap.add_argument("--cprio", type=int, default=0)
    ap.add_argument("--wpol", default="")
    ap.add_argument("--xpol", default="")
    ap.add_argument("--spol", default="")
    opt = ap.parse_args()
    if opt.wpol: opt.wpol = " " + opt.wpol
    if opt.xpol: opt.xpol = " " + opt.xpol
    if opt.spol: opt.spol = " " + opt.spol
    open(opt.o, "w").write(gen(opt))
```

```python
import sys, argparse

NAME = "standalone__autoregressive_conv_wavernn__speech_kernel"
XBATCH = 4096000
WBYTES = 5242880
WUNIT = 20480
XBASE = 4 * WUNIT
XBUF = 33792
LDS_BYTES = XBASE + 2 * XBUF

class Asm:
    def __init__(self):
        self.L = []
    def __call__(self, s):
        self.L.append(s)
    def text(self):
        return "\n".join(self.L) + "\n"

class DS:
    def __init__(self, A):
        self.A = A
        self.q = []
    def issue(self, text, regs):
        if len(self.q) >= 14:
            self.wait_n(10)
        self.A(text)
        self.q.append(set(regs))
    def wait_n(self, n):
        if len(self.q) > n:
            self.A(f"s_waitcnt lgkmcnt({n})")
            self.q = self.q[len(self.q)-n:] if n > 0 else []
    def need(self, regs):
        regs = set(regs)
        last = -1
        for i, s in enumerate(self.q):
            if s & regs:
                last = i
        if last >= 0:
            self.wait_n(len(self.q) - 1 - last)
    def drain(self):
        self.A("s_waitcnt lgkmcnt(0)")
        self.q = []

ACC0 = 40
def acc(j, nb): return ACC0 + (j*4 + nb)*4
def areg(n): return f"a[{n}:{n+3}]"
def XF(q): return 4*q
def WF(st, tap): return 48 + st*20 + tap*4
V_W = [1, 2]
V_X0 = 3
V_X1 = [4, 5, 6, 7]
V_OUT = 8
S_K = 30; S_WD = 31; S_XD = 32; S_T = 33

def gen(opt):
    A = Asm()
    A(f"; @launch grid=(256,1,1) block=(512,1,1) lds={LDS_BYTES}")
    A('.amdgcn_target "amdgcn-amd-amdhsa--gfx950"')
    A(".text")
    A(f".globl {NAME}")
    A(".p2align 8")
    A(f".type {NAME},@function")
    A(f"{NAME}:")
    A("s_cmp_ge_u32 s2, 256")
    A("s_cbranch_scc1 L_end")
    A("s_load_dwordx4 s[4:7], s[0:1], 0")
    A("s_load_dwordx2 s[8:9], s[0:1], 16")
    if opt.stamp:
        A("s_load_dwordx2 s[40:41], s[0:1], %d" % (24 if opt.dbgstamp else 32))
        A("s_memtime s[44:45]")
        A("s_memrealtime s[46:47]")
    if opt.spin:
        A("s_memrealtime s[62:63]")
    A("v_lshrrev_b32 v1, 6, v0")
    A("v_and_b32 v0, 63, v0")
    A("s_and_b32 s28, s2, 7")
    A("v_readfirstlane_b32 s24, v1")
    A("s_lshr_b32 s29, s2, 3")
    A("s_lshr_b32 s30, s28, 1")
    A("s_lshl_b32 s30, s30, 3")
    A("s_lshr_b32 s31, s29, 2")
    A("s_add_u32 s30, s30, s31")
    A("s_and_b32 s31, s28, 1")
    A("s_lshl_b32 s31, s31, 2")
    A("s_and_b32 s29, s29, 3")
    A("s_add_u32 s31, s31, s29")
    A("s_lshr_b32 s27, s30, 4")
    A("s_and_b32 s25, s30, 15")
    A("s_lshl_b32 s25, s25, 8")
    A("s_lshl_b32 s26, s31, 6")
    A(f"s_mul_i32 s28, s27, {XBATCH}")
    A("s_cmp_lt_u32 s24, 4")
    A("s_cbranch_scc1 L_compute")

    A("s_sub_u32 s34, s24, 4")
    if opt.lprio: A(f"s_setprio {opt.lprio}")
    A("v_lshrrev_b32 v10, 5, v0")
    A("v_bfe_u32 v11, v0, 2, 3")
    A("v_and_b32 v12, 3, v0")
    A("v_lshrrev_b32 v13, 2, v11")
    A("v_lshlrev_b32 v13, 1, v13")
    A("v_xor_b32 v13, v13, v12")
    A("v_lshlrev_b32 v14, 6, v10")
    A("v_lshl_add_u32 v15, v13, 4, v14")
    A("v_lshl_add_u32 v16, v12, 4, v14")
    A("v_and_b32 v13, 1, v11")
    A("v_lshrrev_b32 v17, 1, v11")
    A("v_lshl_add_u32 v13, v17, 4, v13")
    A("s_lshl_b32 s35, s34, 6")
    A("s_add_u32 s35, s35, s25")
    A("s_sub_u32 s35, s35, 8")
    A("v_add_u32 v13, s35, v13")
    A("v_lshlrev_b32 v17, 10, v13")
    A("v_add_u32 v17, v17, v15")
    A("v_add_u32 v3, 0x2000, v17")
    A("v_bfrev_b32 v18, 1")
    A("v_cmp_gt_i32 vcc, 0, v13")
    A("s_add_u32 s35, s25, 248")
    A("v_add_u32 v11, s35, v11")
    A("v_cndmask_b32 v2, v17, v18, vcc")
    A("v_lshlrev_b32 v11, 10, v11")
    A("v_add_u32 v4, v11, v16")
    A("v_lshrrev_b32 v10, 3, v0")
    A("v_and_b32 v11, 7, v0")
    A("v_lshrrev_b32 v12, 1, v11")
    A("v_bfe_u32 v13, v10, 1, 1")
    A("s_and_b32 s35, s34, 1")
    A("s_lshl_b32 s35, s35, 1")
    A("v_or_b32 v13, s35, v13")
    A("v_xor_b32 v12, v12, v13")
    A("v_lshlrev_b32 v12, 5, v12")
    A("v_and_b32 v11, 1, v11")
    A("v_lshl_add_u32 v12, v11, 4, v12")
    A("s_lshl_b32 s35, s34, 3")
    A("v_add_u32 v10, s35, v10")
    A("v_lshl_add_u32 v12, v10, 11, v12")
    A("s_lshl_b32 s35, s26, 1")
    A("v_add_u32 v1, s35, v12")
    A("s_lshl_b32 s35, s34, 4")
    A("s_mov_b64 s[36:37], 0xffff")
    A("s_lshl_b64 s[36:37], s[36:37], s35")
    A("s_lshl_b32 s38, s34, 10")
    A(f"s_mov_b32 s14, {XBATCH}")
    A("s_mov_b32 s15, 0x20000")
    A(f"s_mov_b32 s18, {WBYTES}")
    A("s_mov_b32 s19, 0x20000")
    if opt.rot:
        if opt.rot == 'xcd': A("s_and_b32 s66, s2, 7")
        elif opt.rot == 'xcd4': A("s_and_b32 s66, s2, 6")
        A("s_lshl_b32 s64, s66, 17")
        A("s_lshl_b32 s66, s66, 7")
    else:
        A("s_mov_b32 s64, 0")
        A("s_mov_b32 s66, 0")
    A("s_mov_b32 s65, s38")
    A(f"s_add_u32 s67, s38, {XBASE}")
    A(f"s_add_u32 s69, s38, {XBASE+XBUF}")
    A("s_xor_b32 s69, s69, s67")
    A("s_waitcnt lgkmcnt(0)")
    A("s_add_u32 s12, s4, s28")
    A("s_addc_u32 s13, s5, 0")
    A("s_mov_b32 s16, s6")
    A("s_mov_b32 s17, s7")

    vq = []
    def w_issue(u):
        if opt.nodmaw and u > 3: return
        for tap in range(5):
            if tap == 0:
                A("s_mov_b32 m0, s65")
                A("s_mov_b32 s68, s64")
            else:
                A("s_add_u32 m0, m0, 4096")
                A("s_add_u32 s68, s68, 0x100000")
            A(f"buffer_load_dwordx4 v1, s[16:19], s68 offen{opt.wpol} lds")
            vq.append(('W', u))
        if u & 1:
            A(f"s_add_u32 s64, s64, {65536-1024}")
            if opt.rot: A("s_and_b32 s64, s64, 0xfffff")
        else: A("s_add_u32 s64, s64, 1024")
        if (u & 3) == 3: A(f"s_sub_u32 s65, s65, {3*WUNIT}")
        else: A(f"s_add_u32 s65, s65, {WUNIT}")
    def x_issue(c, part):
        if opt.nodmax and c > 1: return
        qs = range(0, 4) if part == 0 else range(4, 8)
        for q in qs:
            A(f"s_add_u32 m0, s67, {q*4096}")
            if q < 4:
                A(f"s_add_u32 s68, s66, {2*q*1024}")
                A(f"buffer_load_dwordx4 v2, s[12:15], s68 offen{opt.xpol} lds")
            else:
                A(f"s_add_u32 s68, s66, {(2*q-8)*1024}")
                A(f"buffer_load_dwordx4 v3, s[12:15], s68 offen{opt.xpol} lds")
            vq.append(('X', c))
        if part == 1:
            A(f"s_sub_u32 m0, s67, s38")
            A(f"s_add_u32 m0, m0, 32768")
            A("s_mov_b64 exec, s[36:37]")
            A(f"buffer_load_dwordx4 v4, s[12:15], s66 offen{opt.xpol} lds")
            A("s_mov_b64 exec, -1")
            vq.append(('X', c))
            A("s_add_u32 s66, s66, 128")
            if opt.rot: A("s_and_b32 s66, s66, 0x3ff")
            A("s_xor_b32 s67, s67, s69")
    def need_n(u):
        need = [('W', u)]
        if u % 4 == 0: need.append(('X', u//4))
        last = -1
        for i, t in enumerate(vq):
            if t in need: last = i
        return len(vq) - 1 - last if last >= 0 else None
    def wait_for(u, n=None):
        nn = need_n(u)
        if n is None: n = nn
        assert nn is None or n <= nn
        if n is not None and n <= len(vq):
            A(f"s_waitcnt vmcnt({n})")
            del vq[:len(vq)-n]
    def issues(u):
        r = []
        if u + 3 <= 31 and u + 3 >= opt.npre: r.append(('W', u+3))
        if u == 1: r.append(('X', 1, 0))
        elif u == 2: r.append(('X', 1, 1))
        elif u % 4 == 3 and u//4 + 2 <= 7: r.append(('X', u//4+2, 0))
        elif u % 4 == 0 and u >= 4 and u//4 + 1 <= 7: r.append(('X', u//4+1, 1))
        return r
    def interval(u, nfix=None):
        wait_for(u, nfix)
        if not (opt.nobar and u > 0): A("s_barrier")
        if opt.nodma: return
        for it in issues(u):
            if it[0] == 'W': w_issue(it[1])
            else: x_issue(it[1], it[2])
    def lst(i):
        if opt.lstamp: A(f"s_memtime s[{72+2*i}:{73+2*i}]")
    lst(0)
    if opt.order == 'xwx':
        x_issue(0, 0); lst(1); w_issue(0); lst(2); x_issue(0, 1); lst(3)
    else:
        w_issue(0); lst(1); x_issue(0, 0); lst(2); x_issue(0, 1); lst(3)
    for u in range(1, opt.npre): w_issue(u)
    lst(4)
    if opt.lstamp:
        sv = list(vq)
        wait_for(0)
        lst(5)
        A("s_waitcnt lgkmcnt(0)")
        A("s_mov_b32 s84, s40"); A("s_mov_b32 s85, s41"); A("s_mov_b32 s86, 0x10000000"); A("s_mov_b32 s87, 0x20000")
        A("s_lshl_b32 s43, s2, 2"); A("s_add_u32 s43, s43, s34"); A("s_lshl_b32 s43, s43, 6")
        A("s_add_u32 s43, s43, 0x10000")
        A("v_mov_b32 v9, s43")
        A("s_mov_b64 exec, 1")
        regs = [44,45,46,47,72,73,74,75,76,77,78,79,80,81,82,83]
        for i in range(4):
            for k in range(4): A(f"v_mov_b32 v{20+k}, s{regs[4*i+k]}")
            A(f"buffer_store_dwordx4 v[20:23], v9, s[84:87], 0 offen offset:{16*i}")
            A("s_nop 1")
        A("s_mov_b64 exec, -1")
        A("s_waitcnt vmcnt(0)")
        vq[:] = sv
    saveL = list(A.L); savevq = list(vq)
    Ns = {}
    for u in range(32):
        Ns[u] = need_n(u)
        interval(u)
    A.L = saveL; vq[:] = savevq
    for u in range(0, 3): interval(u)
    Nl = {m: min([Ns[u] for u in range(3, 27) if u % 4 == m and Ns[u] is not None] or [0]) for m in range(4)}
    A("s_mov_b32 s70, 0")
    A("L_lloop:")
    for u in range(3, 7): interval(u, nfix=Nl[u % 4])
    A("s_add_u32 s70, s70, 1")
    A("s_cmp_lt_u32 s70, 6")
    A("s_cbranch_scc1 L_lloop")
    saveL = list(A.L)
    for u in range(7, 27): interval(u, nfix=Nl[u % 4])
    A.L = saveL
    for u in range(27, 32): interval(u)
    A("L_end:")
    A("s_endpgm")

    A(".p2align 6")
    A("L_compute:")
    if opt.cprio: A(f"s_setprio {opt.cprio}")
    A("s_lshr_b32 s34, s24, 1")
    A("s_and_b32 s35, s24, 1")
    A("v_lshrrev_b32 v10, 4, v0")
    A("v_and_b32 v11, 15, v0")
    A("v_lshrrev_b32 v12, 2, v11")
    A("v_lshl_add_u32 v12, v10, 3, v12")
    A("v_lshlrev_b32 v12, 7, v12")
    A("v_and_b32 v13, 3, v11")
    A("v_lshl_add_u32 v12, v13, 3, v12")
    A("v_lshrrev_b32 v13, 3, v11")
    A("v_and_b32 v14, 1, v10")
    A("v_lshl_or_b32 v13, v14, 1, v13")
    A("s_lshl_b32 s36, s35, 1")
    for p in range(2):
        A(f"s_add_u32 s37, s36, {p}")
        A("v_xor_b32 v14, s37, v13")
        A(f"v_lshl_add_u32 v{V_W[p]}, v14, 5, v12")
    A("s_lshl_b32 s36, s34, 4")
    def xaddr(dst, Rreg):
        A(f"v_lshrrev_b32 v15, 3, v{Rreg}")
        A(f"v_lshlrev_b32 v15, 10, v15")
        A(f"v_and_b32 v16, 7, v{Rreg}")
        A(f"v_lshl_add_u32 v15, v16, 6, v15")
        A(f"v_bfe_u32 v16, v{Rreg}, 2, 1")
        A(f"v_lshlrev_b32 v16, 1, v16")
        A(f"v_xor_b32 v16, v16, v10")
        A(f"v_lshl_add_u32 v15, v16, 4, v15")
        A(f"v_add_u32 v{dst}, {XBASE}, v15")
    A("v_add_u32 v13, s36, v11")
    xaddr(V_X0, 13)
    A("v_add_u32 v13, 2, v13")
    xaddr(17, 13)
    A("v_and_b32 v16, 1, v13")
    A("v_lshlrev_b32 v16, 6, v16")
    A("v_lshl_add_u32 v16, v10, 4, v16")
    A(f"v_add_u32 v16, {XBASE+32768}, v16")
    A("v_cmp_le_u32 vcc, 32, v13")
    for q in range(4):
        A(f"v_add_u32 v18, {q*4096}, v17")
        A(f"v_add_u32 v19, {q*128}, v16")
        A(f"v_cndmask_b32 v{V_X1[q]}, v18, v19, vcc")
    A("v_and_b32 v13, 1, v11")
    A("v_lshrrev_b32 v14, 1, v11")
    A("v_lshl_add_u32 v13, v14, 4, v13")
    A("s_lshl_b32 s36, s34, 7")
    A("s_add_u32 s36, s36, s25")
    A("v_add_u32 v13, s36, v13")
    A("v_lshlrev_b32 v13, 10, v13")
    A("v_and_b32 v14, 1, v10")
    A("v_lshlrev_b32 v14, 5, v14")
    A("v_lshrrev_b32 v15, 1, v10")
    A("v_lshl_add_u32 v14, v15, 4, v14")
    A("s_lshl_b32 s36, s35, 5")
    A("s_add_u32 s36, s36, s26")
    A("s_lshl_b32 s36, s36, 1")
    A("v_add_u32 v13, s36, v13")
    A(f"v_add_u32 v{V_OUT}, v13, v14")
    for r in range(128):
        A(f"v_mov_b32 v{ACC0+r}, 0")
    A(f"s_mov_b32 s22, {XBATCH}")
    A("s_mov_b32 s23, 0x20000")
    A(f"s_mov_b32 s{S_K}, 0")
    A(f"s_mov_b32 s{S_WD}, {2*WUNIT}")
    A(f"s_mov_b32 s29, {-(XBUF+512)}")
    A("s_mov_b32 s36, 0x4038aa3b")
    A("s_mov_b32 s37, 0x4038aa3b")
    A("s_mov_b32 s38, 0xbfb8aa3b")
    A("s_mov_b32 s39, 0xbfb8aa3b")
    A("s_mov_b32 s42, 0x7fffffff")
    A("s_waitcnt lgkmcnt(0)")
    A("s_add_u32 s20, s8, s28")
    A("s_addc_u32 s21, s9, 0")
    if opt.touch:
        A(f"buffer_load_dword v9, v{V_OUT}, s[20:23], 0 offen")
    ds = DS(A)
    def wreads(phi_next):
        p = phi_next & 1; half = (phi_next >> 1) & 1; st = phi_next & 1
        out = []
        for tap in range(5):
            for h in range(2):
                r = WF(st, tap) + 2*h
                off = half*WUNIT + tap*4096 + h*512
                out.append((f"ds_read_b64_tr_b16 a[{r}:{r+1}], v{V_W[p]} offset:{off}", [('a', r), ('a', r+1)]))
        return out
    def xread(q):
        r = XF(q)
        regs = [('a', r+i) for i in range(4)]
        if q < 8:
            return (f"ds_read_b128 a[{r}:{r+3}], v{V_X0} offset:{q*4096}", regs)
        return (f"ds_read_b128 a[{r}:{r+3}], v{V_X1[q-8]} offset:0", regs)

    def phase(phi, wnext=True, xreload=False, barrier=False, extra=None):
        nb = phi & 3; st = phi & 1
        if barrier:
            ds.drain()
            if not opt.nobar: A("s_barrier")
        post = {n: [] for n in range(40)}
        if wnext:
            for i, rd in enumerate(wreads(phi+1)): post[2*i].append(rd)
        if xreload:
            for q in range(8): post[5*q].append(xread(q))
            for q in range(8, 12): post[28+q].append(xread(q))
        for j in range(8):
            for tap in range(5):
                n = 5*j + tap
                wf = WF(st, tap); xf = XF(j+tap)
                ds.need([('a', wf+i) for i in range(4)] + [('a', xf+i) for i in range(4)])
                a = acc(j, nb)
                A(f"v_mfma_f32_16x16x32_bf16 v[{a}:{a+3}], {areg(wf)}, {areg(xf)}, v[{a}:{a+3}]")
                for (t, regs) in post[n]:
                    if opt.nods and phi != 0: continue
                    ds.issue(t, regs)
                if extra and n in extra:
                    for t in extra[n]: A(t)

    A("s_barrier")
    if opt.stamp:
        A("s_memtime s[50:51]")
        A("s_memrealtime s[48:49]")
        A("s_waitcnt lgkmcnt(0)")
    if opt.spin:
        A("s_memrealtime s[66:67]")
        A("s_waitcnt lgkmcnt(0)")
    wr = wreads(0)
    order = []
    for tap in range(5):
        order.append(xread(tap)); order += wr[2*tap:2*tap+2]
    for q in range(5, 12): order.append(xread(q))
    for (t, regs) in order: ds.issue(t, regs)
    phase(0)
    A(".p2align 6")
    A("L_cloop:")
    xupd = {3: [f"s_bitcmp1_b32 s{S_K}, 1",
                f"s_cselect_b32 s{S_T}, s29, {XBUF-512}"],
            5: [f"s_bitcmp1_b32 s{S_K}, 0",
                f"s_cselect_b32 s{S_XD}, s{S_T}, 512"],
            21: [f"v_add_u32 v{V_X0}, s{S_XD}, v{V_X0}"],
            23: [f"v_add_u32 v{V_X1[0]}, s{S_XD}, v{V_X1[0]}"],
            25: [f"v_add_u32 v{V_X1[1]}, s{S_XD}, v{V_X1[1]}"],
            27: [f"v_add_u32 v{V_X1[2]}, s{S_XD}, v{V_X1[2]}"],
            29: [f"v_add_u32 v{V_X1[3]}, s{S_XD}, v{V_X1[3]}"]}
    phase(1, barrier=True, extra=xupd)
    phase(2, extra={25: [f"v_add_u32 v{V_W[0]}, s{S_WD}, v{V_W[0]}"]})
    phase(3, barrier=True, xreload=True,
          extra={22: [f"v_add_u32 v{V_W[1]}, s{S_WD}, v{V_W[1]}"],
                 27: [f"s_sub_u32 s{S_WD}, 0, s{S_WD}"], 28: [f"s_add_u32 s{S_K}, s{S_K}, 1"]})
    phase(4, extra={37: [f"s_cmp_lt_u32 s{S_K}, 15"]})
    A("s_cbranch_scc1 L_cloop")
    phase(61, barrier=True)
    phase(62)
    phase(63, wnext=False)
    if opt.stamp:
        ds.drain()
        A("s_memtime s[52:53]")
        A("s_memrealtime s[54:55]")
        A("s_waitcnt lgkmcnt(0)")
    if opt.spin:
        ds.drain()
        A("s_memrealtime s[68:69]")
        A("s_waitcnt lgkmcnt(0)")
    A("; ---- epilogue")
    A("s_nop 7")
    TB = 10
    for j in range(8):
        PB = 20 + 4*(j & 1)
        pairs = []
        for p in range(2):
            for h in range(2):
                f = acc(j, p) + 2*h; g = acc(j, 2+p) + 2*h
                pairs.append((f, g, TB + 2*(2*p+h), PB + 2*p + h))
        for (f, g, t, o) in pairs: A(f"v_pk_mul_f32 v[{t}:{t+1}], v[{f}:{f+1}], s[36:37]")
        for (f, g, t, o) in pairs: A(f"v_pk_mul_f32 v[{g}:{g+1}], v[{g}:{g+1}], s[38:39]")
        for (f, g, t, o) in pairs:
            A(f"v_exp_f32 v{t}, -|v{t}|"); A(f"v_exp_f32 v{t+1}, -|v{t+1}|")
        for (f, g, t, o) in pairs:
            A(f"v_exp_f32 v{g}, v{g}"); A(f"v_exp_f32 v{g+1}, v{g+1}")
        for (f, g, t, o) in pairs: A(f"v_pk_add_f32 v[{g}:{g+1}], v[{g}:{g+1}], 1.0 op_sel_hi:[1,0]")
        for (f, g, t, o) in pairs: A(f"v_pk_fma_f32 v[{g}:{g+1}], v[{t}:{t+1}], v[{g}:{g+1}], v[{g}:{g+1}]")
        for (f, g, t, o) in pairs:
            A(f"v_rcp_f32 v{g}, v{g}"); A(f"v_rcp_f32 v{g+1}, v{g+1}")
        for (f, g, t, o) in pairs: A(f"v_pk_fma_f32 v[{t}:{t+1}], v[{t}:{t+1}], v[{g}:{g+1}], v[{g}:{g+1}] neg_lo:[1,0,0] neg_hi:[1,0,0]")
        for (f, g, t, o) in pairs:
            A(f"v_bfi_b32 v{t}, s42, v{t}, v{f}"); A(f"v_bfi_b32 v{t+1}, s42, v{t+1}, v{f+1}")
        for (f, g, t, o) in pairs: A(f"v_cvt_pk_bf16_f32 v{o}, v{t}, v{t+1}")
        if j >= 2 and j % 2 == 0:
            A(f"s_mov_b32 s43, {4096*(j//2)}")
        else:
            A("s_nop 0")
        A("s_nop 0")
        A(f"v_permlane16_swap_b32 v{PB}, v{PB+2}")
        A(f"v_permlane16_swap_b32 v{PB+1}, v{PB+3}")
        so = "0" if j < 2 else "s43"
        A(f"buffer_store_dwordx4 v[{PB}:{PB+3}], v{V_OUT}, s[20:23], {so} offen offset:{2048*(j&1)}{opt.spol}")
    if opt.spin:
        A("s_waitcnt vmcnt(0)")
        A("s_memrealtime s[70:71]")
        A("s_waitcnt lgkmcnt(0)")
        which, mult = opt.spin.split(',')
        a, b = {'pro': (62, 66), 'main': (66, 68), 'epi': (68, 70), 'none': (70, 70)}[which]
        A(f"s_sub_u32 s43, s{b}, s{a}")
        A(f"s_mul_i32 s43, s43, {mult}")
        A("s_add_u32 s43, s43, s70")
        A("L_spin:")
        A("s_memrealtime s[60:61]")
        A("s_waitcnt lgkmcnt(0)")
        A("s_sub_u32 s42, s60, s43")
        A("s_cmp_lt_i32 s42, 0")
        A("s_cbranch_scc1 L_spin")
    if opt.stamp:
        A("s_waitcnt vmcnt(0)")
        A("s_memtime s[56:57]")
        A("s_memrealtime s[58:59]")
        A("s_waitcnt lgkmcnt(0)")
        if opt.dbgstamp:
            A("s_sub_u32 s60, s50, s44")
            A("s_sub_u32 s61, s48, s46")
            A("s_sub_u32 s62, s52, s50")
            A("s_sub_u32 s63, s54, s48")
            A("s_sub_u32 s64, s56, s52")
            A("s_sub_u32 s65, s56, s44")
            A("s_sub_u32 s66, s58, s46")
            A("s_mov_b32 s67, s46")
            A("s_cmp_lg_u32 s24, 0")
            A("s_cbranch_scc1 L_nostamp")
            A("s_mov_b32 s43, 0")
            A("s_cmp_eq_u32 s2, 0")
            A("s_cbranch_scc1 L_dostamp")
            A("s_mov_b32 s43, 32")
            A("s_cmp_eq_u32 s2, 133")
            A("s_cbranch_scc0 L_nostamp")
            A("L_dostamp:")
            A("s_mov_b32 s68, s40"); A("s_mov_b32 s69, s41"); A("s_mov_b32 s70, 256"); A("s_mov_b32 s71, 0x20000")
            A("v_mov_b32 v9, s43")
            A("s_mov_b64 exec, 1")
            for i in range(2):
                for k in range(4): A(f"v_mov_b32 v{12+k}, s{60+4*i+k}")
                A(f"buffer_store_dwordx4 v[12:15], v9, s[68:71], 0 offen offset:{16*i}")
                A("s_nop 1")
            A("L_nostamp:")
        else:
            A("s_mov_b32 s60, s40"); A("s_mov_b32 s61, s41"); A("s_mov_b32 s62, 0x10000000"); A("s_mov_b32 s63, 0x20000")
            A("s_lshl_b32 s43, s2, 2"); A("s_add_u32 s43, s43, s24"); A("s_lshl_b32 s43, s43, 6")
            A("v_mov_b32 v9, s43")
            A("s_mov_b64 exec, 1")
            for i in range(4):
                for k in range(4): A(f"v_mov_b32 v{12+k}, s{44+4*i+k}")
                A(f"buffer_store_dwordx4 v[12:15], v9, s[60:63], 0 offen offset:{16*i}")
                A("s_nop 1")
    A("s_endpgm")

    A('.section .rodata,"a"')
    A(".p2align 6")
    A(f".amdhsa_kernel {NAME}")
    A("  .amdhsa_next_free_vgpr 256")
    A("  .amdhsa_next_free_sgpr 96")
    A("  .amdhsa_accum_offset 168")
    A("  .amdhsa_group_segment_fixed_size 0")
    A("  .amdhsa_kernarg_size 40")
    A("  .amdhsa_user_sgpr_count 2")
    A("  .amdhsa_user_sgpr_kernarg_segment_ptr 1")
    A("  .amdhsa_system_sgpr_workgroup_id_x 1")
    A("  .amdhsa_float_denorm_mode_32 3")
    A(".end_amdhsa_kernel")
    if opt.meta:
        A(f""".amdgpu_metadata
---
amdhsa.version: [1, 2]
amdhsa.kernels:
  - .name: {NAME}
    .symbol: {NAME}.kd
    .kernarg_segment_size: 40
    .kernarg_segment_align: 8
    .group_segment_fixed_size: 0
    .private_segment_fixed_size: 0
    .wavefront_size: 64
    .sgpr_count: 96
    .vgpr_count: 256
    .max_flat_workgroup_size: 512
    .args:
      - {{.name: kernargs, .size: 40, .offset: 0, .value_kind: by_value}}
...
.end_amdgpu_metadata""")
    if opt.verbose: sys.stderr.write(f"loader waits: {Ns}\nloop: {Nl}\n")
    return A.text()

def parse(argv=None):
    ap = argparse.ArgumentParser()
    ap.add_argument("-o", default="/dev/stdout")
    for o in ["meta", "stamp", "dbgstamp", "nods", "nodma", "nodmaw", "nodmax", "nobar", "verbose", "lstamp", "touch"]:
        ap.add_argument("--"+o, action="store_true")
    ap.add_argument("--spin", default="")
    ap.add_argument("--rot", default="")
    ap.add_argument("--order", default="xwx")
    ap.add_argument("--cprio", type=int, default=0)
    ap.add_argument("--lprio", type=int, default=0)
    ap.add_argument("--npre", type=int, default=3)
    ap.add_argument("--wpol", default="")
    ap.add_argument("--xpol", default="")
    ap.add_argument("--spol", default="nt")
    opt = ap.parse_args(argv)
    for k in ["wpol", "xpol", "spol"]:
        v = getattr(opt, k)
        if v: setattr(opt, k, " " + v)
    return opt

if __name__ == "__main__":
    opt = parse()
    open(opt.o, "w").write(gen(opt))
```

```python
import sys, argparse

NAME = "standalone__autoregressive_conv_wavernn__speech_kernel"
XBATCH = 4096000
WBYTES = 5242880
WUNIT = 20480
XBASE = 4 * WUNIT
XBUF = 33792
LDS_BYTES = XBASE + 2 * XBUF

class Asm:
    def __init__(self):
        self.L = []
    def __call__(self, s):
        self.L.append(s)
    def text(self):
        return "\n".join(self.L) + "\n"

class DS:
    def __init__(self, A):
        self.A = A
        self.q = []
    def issue(self, text, regs):
        if len(self.q) >= 14:
            self.wait_n(10)
        self.A(text)
        self.q.append(set(regs))
    def wait_n(self, n):
        if len(self.q) > n:
            self.A(f"s_waitcnt lgkmcnt({n})")
            self.q = self.q[len(self.q)-n:] if n > 0 else []
    def need(self, regs):
        regs = set(regs)
        last = -1
        for i, s in enumerate(self.q):
            if s & regs:
                last = i
        if last >= 0:
            self.wait_n(len(self.q) - 1 - last)
    def drain(self):
        self.A("s_waitcnt lgkmcnt(0)")
        self.q = []

ACC0 = 40
def acc(j, nb): return ACC0 + (j*4 + nb)*4
def areg(n): return f"a[{n}:{n+3}]"
def XF(q): return 4*q
def WF(st, tap): return 48 + st*20 + tap*4
V_W = [1, 2]
V_X0 = 3
V_X1 = [4, 5, 6, 7]
V_OUT = 8
S_K = 30; S_WD = 31; S_XD = 32; S_T = 33

def gen(opt):
    A = Asm()
    A(f"; @launch grid=(256,1,1) block=(512,1,1) lds={LDS_BYTES}")
    A('.amdgcn_target "amdgcn-amd-amdhsa--gfx950"')
    A(".text")
    A(f".globl {NAME}")
    A(".p2align 8")
    A(f".type {NAME},@function")
    A(f"{NAME}:")
    A("s_cmp_ge_u32 s2, 256")
    A("s_cbranch_scc1 L_end")
    A("s_load_dwordx4 s[4:7], s[0:1], 0")
    A("s_load_dwordx2 s[8:9], s[0:1], 16")
    if opt.stamp:
        A("s_load_dwordx2 s[40:41], s[0:1], %d" % (24 if opt.dbgstamp else 32))
        A("s_memtime s[44:45]")
        A("s_memrealtime s[46:47]")
    if opt.spin:
        A("s_memrealtime s[62:63]")
    A("v_lshrrev_b32 v1, 6, v0")
    A("v_and_b32 v0, 63, v0")
    A("s_and_b32 s28, s2, 7")
    A("v_readfirstlane_b32 s24, v1")
    A("s_lshr_b32 s29, s2, 3")
    A("s_lshr_b32 s30, s28, 1")
    A("s_lshl_b32 s30, s30, 3")
    A("s_lshr_b32 s31, s29, 2")
    A("s_add_u32 s30, s30, s31")
    A("s_and_b32 s31, s28, 1")
    A("s_lshl_b32 s31, s31, 2")
    A("s_and_b32 s29, s29, 3")
    A("s_add_u32 s31, s31, s29")
    A("s_lshr_b32 s27, s30, 4")
    A("s_and_b32 s25, s30, 15")
    A("s_lshl_b32 s25, s25, 8")
    A("s_lshl_b32 s26, s31, 6")
    A(f"s_mul_i32 s28, s27, {XBATCH}")
    A("s_cmp_lt_u32 s24, 4")
    A("s_cbranch_scc1 L_compute")

    A("s_sub_u32 s34, s24, 4")
    if opt.lprio: A(f"s_setprio {opt.lprio}")
    A("v_lshrrev_b32 v10, 5, v0")
    A("v_bfe_u32 v11, v0, 2, 3")
    A("v_and_b32 v12, 3, v0")
    A("v_lshrrev_b32 v13, 2, v11")
    A("v_lshlrev_b32 v13, 1, v13")
    A("v_xor_b32 v13, v13, v12")
    A("v_lshlrev_b32 v14, 6, v10")
    A("v_lshl_add_u32 v15, v13, 4, v14")
    A("v_lshl_add_u32 v16, v12, 4, v14")
    A("v_and_b32 v13, 1, v11")
    A("v_lshrrev_b32 v17, 1, v11")
    A("v_lshl_add_u32 v13, v17, 4, v13")
    A("s_lshl_b32 s35, s34, 6")
    A("s_add_u32 s35, s35, s25")
    A("s_sub_u32 s35, s35, 8")
    A("v_add_u32 v13, s35, v13")
    A("v_lshlrev_b32 v17, 10, v13")
    A("v_add_u32 v17, v17, v15")
    A("v_add_u32 v3, 0x2000, v17")
    A("v_bfrev_b32 v18, 1")
    A("v_cmp_gt_i32 vcc, 0, v13")
    A("s_add_u32 s35, s25, 248")
    A("v_add_u32 v11, s35, v11")
    A("v_cndmask_b32 v2, v17, v18, vcc")
    A("v_lshlrev_b32 v11, 10, v11")
    A("v_add_u32 v4, v11, v16")
    A("v_lshrrev_b32 v10, 3, v0")
    A("v_and_b32 v11, 7, v0")
    A("v_lshrrev_b32 v12, 1, v11")
    A("v_bfe_u32 v13, v10, 1, 1")
    A("s_and_b32 s35, s34, 1")
    A("s_lshl_b32 s35, s35, 1")
    A("v_or_b32 v13, s35, v13")
    A("v_xor_b32 v12, v12, v13")
    A("v_lshlrev_b32 v12, 5, v12")
    A("v_and_b32 v11, 1, v11")
    A("v_lshl_add_u32 v12, v11, 4, v12")
    A("s_lshl_b32 s35, s34, 3")
    A("v_add_u32 v10, s35, v10")
    A("v_lshl_add_u32 v12, v10, 11, v12")
    A("s_lshl_b32 s35, s26, 1")
    A("v_add_u32 v1, s35, v12")
    A("s_lshl_b32 s35, s34, 4")
    A("s_mov_b64 s[36:37], 0xffff")
    A("s_lshl_b64 s[36:37], s[36:37], s35")
    A("s_lshl_b32 s38, s34, 10")
    A(f"s_mov_b32 s14, {XBATCH}")
    A("s_mov_b32 s15, 0x20000")
    A(f"s_mov_b32 s18, {WBYTES}")
    A("s_mov_b32 s19, 0x20000")
    if opt.rot:
        if opt.rot == 'xcd': A("s_and_b32 s66, s2, 7")
        elif opt.rot == 'xcd4': A("s_and_b32 s66, s2, 6")
        A("s_lshl_b32 s64, s66, 17")
        A("s_lshl_b32 s66, s66, 7")
    else:
        A("s_mov_b32 s64, 0")
        A("s_mov_b32 s66, 0")
    A("s_mov_b32 s65, s38")
    A(f"s_add_u32 s67, s38, {XBASE}")
    A(f"s_add_u32 s69, s38, {XBASE+XBUF}")
    A("s_xor_b32 s69, s69, s67")
    A("s_waitcnt lgkmcnt(0)")
    A("s_add_u32 s12, s4, s28")
    A("s_addc_u32 s13, s5, 0")
    A("s_mov_b32 s16, s6")
    A("s_mov_b32 s17, s7")

    vq = []
    def w_issue(u):
        if opt.nodmaw and u > 3: return
        for tap in range(5):
            if tap == 0:
                A("s_mov_b32 m0, s65")
                A("s_mov_b32 s68, s64")
            else:
                A("s_add_u32 m0, m0, 4096")
                A("s_add_u32 s68, s68, 0x100000")
            A(f"buffer_load_dwordx4 v1, s[16:19], s68 offen{opt.wpol} lds")
            vq.append(('W', u))
        if u & 1:
            A(f"s_add_u32 s64, s64, {65536-1024}")
            if opt.rot: A("s_and_b32 s64, s64, 0xfffff")
        else: A("s_add_u32 s64, s64, 1024")
        if (u & 3) == 3: A(f"s_sub_u32 s65, s65, {3*WUNIT}")
        else: A(f"s_add_u32 s65, s65, {WUNIT}")
    def x_issue(c, part):
        if opt.nodmax and c > 1: return
        qs = range(0, 4) if part == 0 else range(4, 8)
        for q in qs:
            A(f"s_add_u32 m0, s67, {q*4096}")
            if q < 4:
                A(f"s_add_u32 s68, s66, {2*q*1024}")
                A(f"buffer_load_dwordx4 v2, s[12:15], s68 offen{opt.xpol} lds")
            else:
                A(f"s_add_u32 s68, s66, {(2*q-8)*1024}")
                A(f"buffer_load_dwordx4 v3, s[12:15], s68 offen{opt.xpol} lds")
            vq.append(('X', c))
        if part == 1:
            A(f"s_sub_u32 m0, s67, s38")
            A(f"s_add_u32 m0, m0, 32768")
            A("s_mov_b64 exec, s[36:37]")
            A(f"buffer_load_dwordx4 v4, s[12:15], s66 offen{opt.xpol} lds")
            A("s_mov_b64 exec, -1")
            vq.append(('X', c))
            A("s_add_u32 s66, s66, 128")
            if opt.rot: A("s_and_b32 s66, s66, 0x3ff")
            A("s_xor_b32 s67, s67, s69")
    def need_n(u):
        need = [('W', u)]
        if u % 4 == 0: need.append(('X', u//4))
        last = -1
        for i, t in enumerate(vq):
            if t in need: last = i
        return len(vq) - 1 - last if last >= 0 else None
    def wait_for(u, n=None):
        nn = need_n(u)
        if n is None: n = nn
        assert nn is None or n <= nn
        if n is not None and n <= len(vq):
            A(f"s_waitcnt vmcnt({n})")
            del vq[:len(vq)-n]
    def issues(u):
        r = []
        if u + 3 <= 31 and u + 3 >= opt.npre: r.append(('W', u+3))
        if u == 1: r.append(('X', 1, 0))
        elif u == 2: r.append(('X', 1, 1))
        elif u % 4 == 3 and u//4 + 2 <= 7: r.append(('X', u//4+2, 0))
        elif u % 4 == 0 and u >= 4 and u//4 + 1 <= 7: r.append(('X', u//4+1, 1))
        return r
    def interval(u, nfix=None):
        wait_for(u, nfix)
        if not (opt.nobar and u > 0): A("s_barrier")
        if opt.nodma: return
        for it in issues(u):
            if it[0] == 'W': w_issue(it[1])
            else: x_issue(it[1], it[2])
    def lst(i):
        if opt.lstamp: A(f"s_memtime s[{72+2*i}:{73+2*i}]")
    lst(0)
    if opt.order == 'xwx':
        x_issue(0, 0); lst(1); w_issue(0); lst(2); x_issue(0, 1); lst(3)
    else:
        w_issue(0); lst(1); x_issue(0, 0); lst(2); x_issue(0, 1); lst(3)
    for u in range(1, opt.npre): w_issue(u)
    lst(4)
    if opt.lstamp:
        sv = list(vq)
        wait_for(0)
        lst(5)
        A("s_waitcnt lgkmcnt(0)")
        A("s_mov_b32 s84, s40"); A("s_mov_b32 s85, s41"); A("s_mov_b32 s86, 0x10000000"); A("s_mov_b32 s87, 0x20000")
        A("s_lshl_b32 s43, s2, 2"); A("s_add_u32 s43, s43, s34"); A("s_lshl_b32 s43, s43, 6")
        A("s_add_u32 s43, s43, 0x10000")
        A("v_mov_b32 v9, s43")
        A("s_mov_b64 exec, 1")
        regs = [44,45,46,47,72,73,74,75,76,77,78,79,80,81,82,83]
        for i in range(4):
            for k in range(4): A(f"v_mov_b32 v{20+k}, s{regs[4*i+k]}")
            A(f"buffer_store_dwordx4 v[20:23], v9, s[84:87], 0 offen offset:{16*i}")
            A("s_nop 1")
        A("s_mov_b64 exec, -1")
        A("s_waitcnt vmcnt(0)")
        vq[:] = sv
    saveL = list(A.L); savevq = list(vq)
    Ns = {}
    for u in range(32):
        Ns[u] = need_n(u)
        interval(u)
    A.L = saveL; vq[:] = savevq
    for u in range(0, 3): interval(u)
    Nl = {m: min([Ns[u] for u in range(3, 27) if u % 4 == m and Ns[u] is not None] or [0]) for m in range(4)}
    A("s_mov_b32 s70, 0")
    A("L_lloop:")
    for u in range(3, 7): interval(u, nfix=Nl[u % 4])
    A("s_add_u32 s70, s70, 1")
    A("s_cmp_lt_u32 s70, 6")
    A("s_cbranch_scc1 L_lloop")
    saveL = list(A.L)
    for u in range(7, 27): interval(u, nfix=Nl[u % 4])
    A.L = saveL
    for u in range(27, 32): interval(u)
    A("L_end:")
    A("s_endpgm")

    A(".p2align 6")
    A("L_compute:")
    if opt.cprio: A(f"s_setprio {opt.cprio}")
    A("s_lshr_b32 s34, s24, 1")
    A("s_and_b32 s35, s24, 1")
    A("v_lshrrev_b32 v10, 4, v0")
    A("v_and_b32 v11, 15, v0")
    A("v_lshrrev_b32 v12, 2, v11")
    A("v_lshl_add_u32 v12, v10, 3, v12")
    A("v_lshlrev_b32 v12, 7, v12")
    A("v_and_b32 v13, 3, v11")
    A("v_lshl_add_u32 v12, v13, 3, v12")
    A("v_lshrrev_b32 v13, 3, v11")
    A("v_and_b32 v14, 1, v10")
    A("v_lshl_or_b32 v13, v14, 1, v13")
    A("s_lshl_b32 s36, s35, 1")
    for p in range(2):
        A(f"s_add_u32 s37, s36, {p}")
        A("v_xor_b32 v14, s37, v13")
        A(f"v_lshl_add_u32 v{V_W[p]}, v14, 5, v12")
    A("s_lshl_b32 s36, s34, 4")
    def xaddr(dst, Rreg):
        A(f"v_lshrrev_b32 v15, 3, v{Rreg}")
        A(f"v_lshlrev_b32 v15, 10, v15")
        A(f"v_and_b32 v16, 7, v{Rreg}")
        A(f"v_lshl_add_u32 v15, v16, 6, v15")
        A(f"v_bfe_u32 v16, v{Rreg}, 2, 1")
        A(f"v_lshlrev_b32 v16, 1, v16")
        A(f"v_xor_b32 v16, v16, v10")
        A(f"v_lshl_add_u32 v15, v16, 4, v15")
        A(f"v_add_u32 v{dst}, {XBASE}, v15")
    A("v_add_u32 v13, s36, v11")
    xaddr(V_X0, 13)
    A("v_add_u32 v13, 2, v13")
    xaddr(17, 13)
    A("v_and_b32 v16, 1, v13")
    A("v_lshlrev_b32 v16, 6, v16")
    A("v_lshl_add_u32 v16, v10, 4, v16")
    A(f"v_add_u32 v16, {XBASE+32768}, v16")
    A("v_cmp_le_u32 vcc, 32, v13")
    for q in range(4):
        A(f"v_add_u32 v18, {q*4096}, v17")
        A(f"v_add_u32 v19, {q*128}, v16")
        A(f"v_cndmask_b32 v{V_X1[q]}, v18, v19, vcc")
    A("v_and_b32 v13, 1, v11")
    A("v_lshrrev_b32 v14, 1, v11")
    A("v_lshl_add_u32 v13, v14, 4, v13")
    A("s_lshl_b32 s36, s34, 7")
    A("s_add_u32 s36, s36, s25")
    A("v_add_u32 v13, s36, v13")
    A("v_lshlrev_b32 v13, 10, v13")
    A("v_and_b32 v14, 1, v10")
    A("v_lshlrev_b32 v14, 5, v14")
    A("v_lshrrev_b32 v15, 1, v10")
    A("v_lshl_add_u32 v14, v15, 4, v14")
    A("s_lshl_b32 s36, s35, 5")
    A("s_add_u32 s36, s36, s26")
    A("s_lshl_b32 s36, s36, 1")
    A("v_add_u32 v13, s36, v13")
    A(f"v_add_u32 v{V_OUT}, v13, v14")
    if opt.full:
        A("v_and_b32 v13, 1, v10")
        A("v_lshlrev_b32 v13, 1, v13")
        A("v_lshrrev_b32 v14, 1, v10")
        A("v_or_b32 v13, v13, v14")
        A("s_lshl_b32 s43, s35, 2")
        A("v_add_u32 v13, s43, v13")
        A("v_and_b32 v14, 7, v11")
        A("v_xor_b32 v13, v13, v14")
        A("v_lshlrev_b32 v13, 4, v13")
        A("v_lshl_add_u32 v13, v11, 7, v13")
        A("s_lshl_b32 s43, s34, 14")
        A("v_add_u32 v28, s43, v13")
        A("v_lshrrev_b32 v13, 3, v0")
        A("v_and_b32 v14, 7, v0")
        A("v_xor_b32 v15, v13, v14")
        A("v_lshlrev_b32 v15, 4, v15")
        A("s_lshl_b32 s21, s35, 3")
        A("v_add_u32 v13, s21, v13")
        A("v_lshl_add_u32 v15, v13, 7, v15")
        A("v_add_u32 v29, s43, v15")
        A("v_and_b32 v15, 1, v13")
        A("v_lshrrev_b32 v16, 1, v13")
        A("v_lshl_add_u32 v15, v16, 4, v15")
        A("s_lshl_b32 s43, s34, 7")
        A("s_add_u32 s43, s43, s25")
        A("v_add_u32 v15, s43, v15")
        A("v_lshlrev_b32 v15, 10, v15")
        A("v_lshl_add_u32 v15, v14, 4, v15")
        A("s_lshl_b32 s43, s26, 1")
        A(f"v_add_u32 v{V_OUT}, s43, v15")
    for r in range(128):
        A(f"v_mov_b32 v{ACC0+r}, 0")
    A(f"s_mov_b32 s22, {XBATCH}")
    A("s_mov_b32 s23, 0x20000")
    A(f"s_mov_b32 s{S_K}, 0")
    A(f"s_mov_b32 s{S_WD}, {2*WUNIT}")
    A(f"s_mov_b32 s29, {-(XBUF+512)}")
    A("s_mov_b32 s36, 0x4038aa3b")
    A("s_mov_b32 s37, 0x4038aa3b")
    A("s_mov_b32 s38, 0xbfb8aa3b")
    A("s_mov_b32 s39, 0xbfb8aa3b")
    A("s_mov_b32 s42, 0x7fffffff")
    A("s_waitcnt lgkmcnt(0)")
    A("s_add_u32 s20, s8, s28")
    A("s_addc_u32 s21, s9, 0")
    if opt.touch:
        A(f"buffer_load_dword v9, v{V_OUT}, s[20:23], 0 offen")
    ds = DS(A)
    def wreads(phi_next):
        p = phi_next & 1; half = (phi_next >> 1) & 1; st = phi_next & 1
        out = []
        for tap in range(5):
            for h in range(2):
                r = WF(st, tap) + 2*h
                off = half*WUNIT + tap*4096 + h*512
                out.append((f"ds_read_b64_tr_b16 a[{r}:{r+1}], v{V_W[p]} offset:{off}", [('a', r), ('a', r+1)]))
        return out
    def xread(q):
        r = XF(q)
        regs = [('a', r+i) for i in range(4)]
        if q < 8:
            return (f"ds_read_b128 a[{r}:{r+3}], v{V_X0} offset:{q*4096}", regs)
        return (f"ds_read_b128 a[{r}:{r+3}], v{V_X1[q-8]} offset:0", regs)

    def phase(phi, wnext=True, xreload=False, barrier=False, extra=None):
        nb = phi & 3; st = phi & 1
        if barrier:
            ds.drain()
            if not opt.nobar: A("s_barrier")
        post = {n: [] for n in range(40)}
        if wnext:
            for i, rd in enumerate(wreads(phi+1)): post[2*i].append(rd)
        if xreload:
            for q in range(8): post[5*q].append(xread(q))
            for q in range(8, 12): post[28+q].append(xread(q))
        for j in range(8):
            for tap in range(5):
                n = 5*j + tap
                wf = WF(st, tap); xf = XF(j+tap)
                ds.need([('a', wf+i) for i in range(4)] + [('a', xf+i) for i in range(4)])
                a = acc(j, nb)
                A(f"v_mfma_f32_16x16x32_bf16 v[{a}:{a+3}], {areg(wf)}, {areg(xf)}, v[{a}:{a+3}]")
                for (t, regs) in post[n]:
                    if opt.nods and phi != 0: continue
                    ds.issue(t, regs)
                if extra and n in extra:
                    for t in extra[n]: A(t)

    A("s_barrier")
    if opt.stamp:
        A("s_memtime s[50:51]")
        A("s_memrealtime s[48:49]")
        A("s_waitcnt lgkmcnt(0)")
    if opt.spin:
        A("s_memrealtime s[66:67]")
        A("s_waitcnt lgkmcnt(0)")
    wr = wreads(0)
    order = []
    for tap in range(5):
        order.append(xread(tap)); order += wr[2*tap:2*tap+2]
    for q in range(5, 12): order.append(xread(q))
    for (t, regs) in order: ds.issue(t, regs)
    phase(0)
    A(".p2align 6")
    A("L_cloop:")
    xupd = {3: [f"s_bitcmp1_b32 s{S_K}, 1",
                f"s_cselect_b32 s{S_T}, s29, {XBUF-512}"],
            5: [f"s_bitcmp1_b32 s{S_K}, 0",
                f"s_cselect_b32 s{S_XD}, s{S_T}, 512"],
            21: [f"v_add_u32 v{V_X0}, s{S_XD}, v{V_X0}"],
            23: [f"v_add_u32 v{V_X1[0]}, s{S_XD}, v{V_X1[0]}"],
            25: [f"v_add_u32 v{V_X1[1]}, s{S_XD}, v{V_X1[1]}"],
            27: [f"v_add_u32 v{V_X1[2]}, s{S_XD}, v{V_X1[2]}"],
            29: [f"v_add_u32 v{V_X1[3]}, s{S_XD}, v{V_X1[3]}"]}
    phase(1, barrier=True, extra=xupd)
    phase(2, extra={25: [f"v_add_u32 v{V_W[0]}, s{S_WD}, v{V_W[0]}"]})
    phase(3, barrier=True, xreload=True,
          extra={22: [f"v_add_u32 v{V_W[1]}, s{S_WD}, v{V_W[1]}"],
                 27: [f"s_sub_u32 s{S_WD}, 0, s{S_WD}"], 28: [f"s_add_u32 s{S_K}, s{S_K}, 1"]})
    phase(4, extra={37: [f"s_cmp_lt_u32 s{S_K}, 15"]})
    A("s_cbranch_scc1 L_cloop")
    phase(61, barrier=True)
    phase(62)
    phase(63, wnext=False)
    if opt.stamp:
        ds.drain()
        A("s_memtime s[52:53]")
        A("s_memrealtime s[54:55]")
        A("s_waitcnt lgkmcnt(0)")
    if opt.spin:
        ds.drain()
        A("s_memrealtime s[68:69]")
        A("s_waitcnt lgkmcnt(0)")
    A("; ---- epilogue")
    A("s_nop 7")
    TB = 10
    def epi_math(j, PB):
        pairs = []
        for p in range(2):
            for h in range(2):
                f = acc(j, p) + 2*h; g = acc(j, 2+p) + 2*h
                pairs.append((f, g, TB + 2*(2*p+h), PB + 2*p + h))
        for (f, g, t, o) in pairs: A(f"v_pk_mul_f32 v[{t}:{t+1}], v[{f}:{f+1}], s[36:37]")
        for (f, g, t, o) in pairs: A(f"v_pk_mul_f32 v[{g}:{g+1}], v[{g}:{g+1}], s[38:39]")
        for (f, g, t, o) in pairs:
            A(f"v_exp_f32 v{t}, -|v{t}|"); A(f"v_exp_f32 v{t+1}, -|v{t+1}|")
        for (f, g, t, o) in pairs:
            A(f"v_exp_f32 v{g}, v{g}"); A(f"v_exp_f32 v{g+1}, v{g+1}")
        for (f, g, t, o) in pairs: A(f"v_pk_add_f32 v[{g}:{g+1}], v[{g}:{g+1}], 1.0 op_sel_hi:[1,0]")
        for (f, g, t, o) in pairs: A(f"v_pk_fma_f32 v[{g}:{g+1}], v[{t}:{t+1}], v[{g}:{g+1}], v[{g}:{g+1}]")
        for (f, g, t, o) in pairs:
            A(f"v_rcp_f32 v{g}, v{g}"); A(f"v_rcp_f32 v{g+1}, v{g+1}")
        for (f, g, t, o) in pairs: A(f"v_pk_fma_f32 v[{t}:{t+1}], v[{t}:{t+1}], v[{g}:{g+1}], v[{g}:{g+1}] neg_lo:[1,0,0] neg_hi:[1,0,0]")
        for (f, g, t, o) in pairs:
            A(f"v_bfi_b32 v{t}, s42, v{t}, v{f}"); A(f"v_bfi_b32 v{t+1}, s42, v{t+1}, v{f+1}")
        for (f, g, t, o) in pairs: A(f"v_cvt_pk_bf16_f32 v{o}, v{t}, v{t+1}")
        A("s_nop 1")
        A(f"v_permlane16_swap_b32 v{PB}, v{PB+2}")
        A(f"v_permlane16_swap_b32 v{PB+1}, v{PB+3}")
    def gstore(j, PB):
        if j >= 2: A(f"s_mov_b32 s43, {4096*(j//2)}")
        so = "0" if j < 2 else "s43"
        A(f"buffer_store_dwordx4 v[{PB}:{PB+3}], v{V_OUT}, s[20:23], {so} offen offset:{2048*(j&1)}{opt.spol}")
    if not opt.full:
        for j in range(8):
            PB = 20 + 4*(j & 1)
            epi_math(j, PB)
            gstore(j, PB)
    else:
        gs = opt.full
        pend = []
        for j0 in range(0, 8, gs):
            for j in range(j0, j0+gs):
                PB = 20 + 4*(j & 1)
                epi_math(j, PB)
                A(f"ds_write_b128 v28, v[{PB}:{PB+3}] offset:{j*2048}")
                if pend:
                    jj = pend.pop(0)
                    A("s_waitcnt lgkmcnt(1)")
                    gstore(jj, 32 + 4*(jj & 1))
                    if pend: A(f"ds_read_b128 v[{32+4*(pend[0]&1)}:{35+4*(pend[0]&1)}], v29 offset:{pend[0]*2048}")
            while pend:
                jj = pend.pop(0)
                A("s_waitcnt lgkmcnt(0)")
                gstore(jj, 32 + 4*(jj & 1))
                if pend: A(f"ds_read_b128 v[{32+4*(pend[0]&1)}:{35+4*(pend[0]&1)}], v29 offset:{pend[0]*2048}")
            A("s_waitcnt lgkmcnt(0)")
            A("s_barrier")
            pend = list(range(j0, j0+gs))
            A(f"ds_read_b128 v[{32+4*(pend[0]&1)}:{35+4*(pend[0]&1)}], v29 offset:{pend[0]*2048}")
        while pend:
            jj = pend.pop(0)
            if pend: A(f"ds_read_b128 v[{32+4*(pend[0]&1)}:{35+4*(pend[0]&1)}], v29 offset:{pend[0]*2048}")
            A("s_waitcnt lgkmcnt(%d)" % (1 if pend else 0))
            gstore(jj, 32 + 4*(jj & 1))
            A("s_nop 0")
    if opt.spin:
        A("s_waitcnt vmcnt(0)")
        A("s_memrealtime s[70:71]")
        A("s_waitcnt lgkmcnt(0)")
        which, mult = opt.spin.split(',')
        a, b = {'pro': (62, 66), 'main': (66, 68), 'epi': (68, 70), 'none': (70, 70)}[which]
        A(f"s_sub_u32 s43, s{b}, s{a}")
        A(f"s_mul_i32 s43, s43, {mult}")
        A("s_add_u32 s43, s43, s70")
        A("L_spin:")
        A("s_memrealtime s[60:61]")
        A("s_waitcnt lgkmcnt(0)")
        A("s_sub_u32 s42, s60, s43")
        A("s_cmp_lt_i32 s42, 0")
        A("s_cbranch_scc1 L_spin")
    if opt.stamp:
        A("s_waitcnt vmcnt(0)")
        A("s_memtime s[56:57]")
        A("s_memrealtime s[58:59]")
        A("s_waitcnt lgkmcnt(0)")
        if opt.dbgstamp:
            A("s_sub_u32 s60, s50, s44")
            A("s_sub_u32 s61, s48, s46")
            A("s_sub_u32 s62, s52, s50")
            A("s_sub_u32 s63, s54, s48")
            A("s_sub_u32 s64, s56, s52")
            A("s_sub_u32 s65, s56, s44")
            A("s_sub_u32 s66, s58, s46")
            A("s_mov_b32 s67, s46")
            A("s_cmp_lg_u32 s24, 0")
            A("s_cbranch_scc1 L_nostamp")
            A("s_mov_b32 s43, 0")
            A("s_cmp_eq_u32 s2, 0")
            A("s_cbranch_scc1 L_dostamp")
            A("s_mov_b32 s43, 32")
            A("s_cmp_eq_u32 s2, 133")
            A("s_cbranch_scc0 L_nostamp")
            A("L_dostamp:")
            A("s_mov_b32 s68, s40"); A("s_mov_b32 s69, s41"); A("s_mov_b32 s70, 256"); A("s_mov_b32 s71, 0x20000")
            A("v_mov_b32 v9, s43")
            A("s_mov_b64 exec, 1")
            for i in range(2):
                for k in range(4): A(f"v_mov_b32 v{12+k}, s{60+4*i+k}")
                A(f"buffer_store_dwordx4 v[12:15], v9, s[68:71], 0 offen offset:{16*i}")
                A("s_nop 1")
            A("L_nostamp:")
        else:
            A("s_mov_b32 s60, s40"); A("s_mov_b32 s61, s41"); A("s_mov_b32 s62, 0x10000000"); A("s_mov_b32 s63, 0x20000")
            A("s_lshl_b32 s43, s2, 2"); A("s_add_u32 s43, s43, s24"); A("s_lshl_b32 s43, s43, 6")
            A("v_mov_b32 v9, s43")
            A("s_mov_b64 exec, 1")
            for i in range(4):
                for k in range(4): A(f"v_mov_b32 v{12+k}, s{44+4*i+k}")
                A(f"buffer_store_dwordx4 v[12:15], v9, s[60:63], 0 offen offset:{16*i}")
                A("s_nop 1")
    A("s_endpgm")

    A('.section .rodata,"a"')
    A(".p2align 6")
    A(f".amdhsa_kernel {NAME}")
    A("  .amdhsa_next_free_vgpr 256")
    A("  .amdhsa_next_free_sgpr 96")
    A("  .amdhsa_accum_offset 168")
    A("  .amdhsa_group_segment_fixed_size 0")
    A("  .amdhsa_kernarg_size 40")
    A("  .amdhsa_user_sgpr_count 2")
    A("  .amdhsa_user_sgpr_kernarg_segment_ptr 1")
    A("  .amdhsa_system_sgpr_workgroup_id_x 1")
    A("  .amdhsa_float_denorm_mode_32 3")
    A(".end_amdhsa_kernel")
    if opt.meta:
        A(f""".amdgpu_metadata
---
amdhsa.version: [1, 2]
amdhsa.kernels:
  - .name: {NAME}
    .symbol: {NAME}.kd
    .kernarg_segment_size: 40
    .kernarg_segment_align: 8
    .group_segment_fixed_size: 0
    .private_segment_fixed_size: 0
    .wavefront_size: 64
    .sgpr_count: 96
    .vgpr_count: 256
    .max_flat_workgroup_size: 512
    .args:
      - {{.name: kernargs, .size: 40, .offset: 0, .value_kind: by_value}}
...
.end_amdgpu_metadata""")
    if opt.verbose: sys.stderr.write(f"loader waits: {Ns}\nloop: {Nl}\n")
    return A.text()

def parse(argv=None):
    ap = argparse.ArgumentParser()
    ap.add_argument("-o", default="/dev/stdout")
    for o in ["meta", "stamp", "dbgstamp", "nods", "nodma", "nodmaw", "nodmax", "nobar", "verbose", "lstamp", "touch"]:
        ap.add_argument("--"+o, action="store_true")
    ap.add_argument("--spin", default="")
    ap.add_argument("--full", type=int, default=0)
    ap.add_argument("--rot", default="")
    ap.add_argument("--order", default="xwx")
    ap.add_argument("--cprio", type=int, default=0)
    ap.add_argument("--lprio", type=int, default=0)
    ap.add_argument("--npre", type=int, default=3)
    ap.add_argument("--wpol", default="")
    ap.add_argument("--xpol", default="")
    ap.add_argument("--spol", default="nt")
    opt = ap.parse_args(argv)
    for k in ["wpol", "xpol", "spol"]:
        v = getattr(opt, k)
        if v: setattr(opt, k, " " + v)
    return opt

if __name__ == "__main__":
    opt = parse()
    open(opt.o, "w").write(gen(opt))
```

```python
import sys, argparse

NAME = "standalone__autoregressive_conv_wavernn__speech_kernel"
XBATCH = 4096000
WBYTES = 5242880
WUNIT = 20480
XBASE = 4 * WUNIT
XBUF = 33792
LDS_BYTES = XBASE + 2 * XBUF

class Asm:
    def __init__(self):
        self.L = []
    def __call__(self, s):
        self.L.append(s)
    def text(self):
        return "\n".join(self.L) + "\n"

class DS:
    def __init__(self, A):
        self.A = A
        self.q = []
    def issue(self, text, regs):
        if len(self.q) >= 14:
            self.wait_n(10)
        self.A(text)
        self.q.append(set(regs))
    def wait_n(self, n):
        if len(self.q) > n:
            self.A(f"s_waitcnt lgkmcnt({n})")
            self.q = self.q[len(self.q)-n:] if n > 0 else []
    def need(self, regs):
        regs = set(regs)
        last = -1
        for i, s in enumerate(self.q):
            if s & regs:
                last = i
        if last >= 0:
            self.wait_n(len(self.q) - 1 - last)
    def drain(self):
        self.A("s_waitcnt lgkmcnt(0)")
        self.q = []

ACC0 = 40
def acc(j, nb): return ACC0 + (j*4 + nb)*4
def areg(n): return f"a[{n}:{n+3}]"
def XF(q): return 4*q
def WF(st, tap): return 48 + st*20 + tap*4
V_W = [1, 2]
V_X0 = 3
V_X1 = [4, 5, 6, 7]
V_OUT = 8
S_K = 30; S_WD = 31; S_XD = 32; S_T = 33

def gen(opt):
    A = Asm()
    A(f"; @launch grid=(256,1,1) block=(512,1,1) lds={LDS_BYTES}")
    A('.amdgcn_target "amdgcn-amd-amdhsa--gfx950"')
    A(".text")
    A(f".globl {NAME}")
    A(".p2align 8")
    A(f".type {NAME},@function")
    A(f"{NAME}:")
    A("s_cmp_ge_u32 s2, 256")
    A("s_cbranch_scc1 L_end")
    A("s_load_dwordx4 s[4:7], s[0:1], 0")
    A("s_load_dwordx2 s[8:9], s[0:1], 16")
    if opt.stamp:
        A("s_load_dwordx2 s[40:41], s[0:1], %d" % (24 if opt.dbgstamp else 32))
        A("s_memtime s[44:45]")
        A("s_memrealtime s[46:47]")
    if opt.spin:
        A("s_memrealtime s[62:63]")
    A("v_lshrrev_b32 v1, 6, v0")
    A("v_and_b32 v0, 63, v0")
    A("s_and_b32 s28, s2, 7")
    A("v_readfirstlane_b32 s24, v1")
    A("s_lshr_b32 s29, s2, 3")
    A("s_lshr_b32 s30, s28, 1")
    A("s_lshl_b32 s30, s30, 3")
    A("s_lshr_b32 s31, s29, 2")
    A("s_add_u32 s30, s30, s31")
    A("s_and_b32 s31, s28, 1")
    A("s_lshl_b32 s31, s31, 2")
    A("s_and_b32 s29, s29, 3")
    A("s_add_u32 s31, s31, s29")
    A("s_lshr_b32 s27, s30, 4")
    A("s_and_b32 s25, s30, 15")
    A("s_lshl_b32 s25, s25, 8")
    A("s_lshl_b32 s26, s31, 6")
    A(f"s_mul_i32 s28, s27, {XBATCH}")
    A("s_cmp_lt_u32 s24, 4")
    A("s_cbranch_scc1 L_compute")

    A("s_sub_u32 s34, s24, 4")
    if opt.lprio: A(f"s_setprio {opt.lprio}")
    A("v_lshrrev_b32 v10, 5, v0")
    A("v_bfe_u32 v11, v0, 2, 3")
    A("v_and_b32 v12, 3, v0")
    A("v_lshrrev_b32 v13, 2, v11")
    A("v_lshlrev_b32 v13, 1, v13")
    A("v_xor_b32 v13, v13, v12")
    A("v_lshlrev_b32 v14, 6, v10")
    A("v_lshl_add_u32 v15, v13, 4, v14")
    A("v_lshl_add_u32 v16, v12, 4, v14")
    A("v_and_b32 v13, 1, v11")
    A("v_lshrrev_b32 v17, 1, v11")
    A("v_lshl_add_u32 v13, v17, 4, v13")
    A("s_lshl_b32 s35, s34, 6")
    A("s_add_u32 s35, s35, s25")
    A("s_sub_u32 s35, s35, 8")
    A("v_add_u32 v13, s35, v13")
    A("v_lshlrev_b32 v17, 10, v13")
    A("v_add_u32 v17, v17, v15")
    A("v_add_u32 v3, 0x2000, v17")
    A("v_bfrev_b32 v18, 1")
    A("v_cmp_gt_i32 vcc, 0, v13")
    A("s_add_u32 s35, s25, 248")
    A("v_add_u32 v11, s35, v11")
    A("v_cndmask_b32 v2, v17, v18, vcc")
    A("v_lshlrev_b32 v11, 10, v11")
    A("v_add_u32 v4, v11, v16")
    A("v_lshrrev_b32 v10, 3, v0")
    A("v_and_b32 v11, 7, v0")
    A("v_lshrrev_b32 v12, 1, v11")
    A("v_bfe_u32 v13, v10, 1, 1")
    A("s_and_b32 s35, s34, 1")
    A("s_lshl_b32 s35, s35, 1")
    A("v_or_b32 v13, s35, v13")
    A("v_xor_b32 v12, v12, v13")
    A("v_lshlrev_b32 v12, 5, v12")
    A("v_and_b32 v11, 1, v11")
    A("v_lshl_add_u32 v12, v11, 4, v12")
    A("s_lshl_b32 s35, s34, 3")
    A("v_add_u32 v10, s35, v10")
    A("v_lshl_add_u32 v12, v10, 11, v12")
    A("s_lshl_b32 s35, s26, 1")
    A("v_add_u32 v1, s35, v12")
    A("s_lshl_b32 s35, s34, 4")
    A("s_mov_b64 s[36:37], 0xffff")
    A("s_lshl_b64 s[36:37], s[36:37], s35")
    A("s_lshl_b32 s38, s34, 10")
    A(f"s_mov_b32 s14, {XBATCH}")
    A("s_mov_b32 s15, 0x20000")
    A(f"s_mov_b32 s18, {WBYTES}")
    A("s_mov_b32 s19, 0x20000")
    if opt.rot:
        if opt.rot == 'xcd': A("s_and_b32 s66, s2, 7")
        elif opt.rot == 'xcd4': A("s_and_b32 s66, s2, 6")
        A("s_lshl_b32 s64, s66, 17")
        A("s_lshl_b32 s66, s66, 7")
    else:
        A("s_mov_b32 s64, 0")
        A("s_mov_b32 s66, 0")
    A("s_mov_b32 s65, s38")
    A(f"s_add_u32 s67, s38, {XBASE}")
    A(f"s_add_u32 s69, s38, {XBASE+XBUF}")
    A("s_xor_b32 s69, s69, s67")
    A("s_waitcnt lgkmcnt(0)")
    A("s_add_u32 s12, s4, s28")
    A("s_addc_u32 s13, s5, 0")
    A("s_mov_b32 s16, s6")
    A("s_mov_b32 s17, s7")

    vq = []
    def w_issue(u):
        if opt.nodmaw and u > 3: return
        for tap in range(5):
            if tap == 0:
                A("s_mov_b32 m0, s65")
                A("s_mov_b32 s68, s64")
            else:
                A("s_add_u32 m0, m0, 4096")
                A("s_add_u32 s68, s68, 0x100000")
            A(f"buffer_load_dwordx4 v1, s[16:19], s68 offen{opt.wpol} lds")
            vq.append(('W', u))
        if u & 1:
            A(f"s_add_u32 s64, s64, {65536-1024}")
            if opt.rot: A("s_and_b32 s64, s64, 0xfffff")
        else: A("s_add_u32 s64, s64, 1024")
        if (u & 3) == 3: A(f"s_sub_u32 s65, s65, {3*WUNIT}")
        else: A(f"s_add_u32 s65, s65, {WUNIT}")
    def x_issue(c, part):
        if opt.nodmax and c > 1: return
        qs = range(0, 4) if part == 0 else range(4, 8)
        for q in qs:
            A(f"s_add_u32 m0, s67, {q*4096}")
            if q < 4:
                A(f"s_add_u32 s68, s66, {2*q*1024}")
                A(f"buffer_load_dwordx4 v2, s[12:15], s68 offen{opt.xpol} lds")
            else:
                A(f"s_add_u32 s68, s66, {(2*q-8)*1024}")
                A(f"buffer_load_dwordx4 v3, s[12:15], s68 offen{opt.xpol} lds")
            vq.append(('X', c))
        if part == 1:
            A(f"s_sub_u32 m0, s67, s38")
            A(f"s_add_u32 m0, m0, 32768")
            A("s_mov_b64 exec, s[36:37]")
            A(f"buffer_load_dwordx4 v4, s[12:15], s66 offen{opt.xpol} lds")
            A("s_mov_b64 exec, -1")
            vq.append(('X', c))
            A("s_add_u32 s66, s66, 128")
            if opt.rot: A("s_and_b32 s66, s66, 0x3ff")
            A("s_xor_b32 s67, s67, s69")
    def need_n(u):
        need = [('W', u)]
        if u % 4 == 0: need.append(('X', u//4))
        last = -1
        for i, t in enumerate(vq):
            if t in need: last = i
        return len(vq) - 1 - last if last >= 0 else None
    def wait_for(u, n=None):
        nn = need_n(u)
        if n is None: n = nn
        assert nn is None or n <= nn
        if n is not None and n <= len(vq):
            A(f"s_waitcnt vmcnt({n})")
            del vq[:len(vq)-n]
    def issues(u):
        r = []
        if u + 3 <= 31 and u + 3 >= opt.npre: r.append(('W', u+3))
        if u == 1: r.append(('X', 1, 0))
        elif u == 2: r.append(('X', 1, 1))
        elif u % 4 == 3 and u//4 + 2 <= 7: r.append(('X', u//4+2, 0))
        elif u % 4 == 0 and u >= 4 and u//4 + 1 <= 7: r.append(('X', u//4+1, 1))
        return r
    def interval(u, nfix=None):
        wait_for(u, nfix)
        if not (opt.nobar and u > 0): A("s_barrier")
        if opt.nodma: return
        for it in issues(u):
            if it[0] == 'W': w_issue(it[1])
            else: x_issue(it[1], it[2])
    def lst(i):
        if opt.lstamp: A(f"s_memtime s[{72+2*i}:{73+2*i}]")
    lst(0)
    if opt.order == 'xwx':
        x_issue(0, 0); lst(1); w_issue(0); lst(2); x_issue(0, 1); lst(3)
    else:
        w_issue(0); lst(1); x_issue(0, 0); lst(2); x_issue(0, 1); lst(3)
    for u in range(1, opt.npre): w_issue(u)
    lst(4)
    if opt.lstamp:
        sv = list(vq)
        wait_for(0)
        lst(5)
        A("s_waitcnt lgkmcnt(0)")
        A("s_mov_b32 s84, s40"); A("s_mov_b32 s85, s41"); A("s_mov_b32 s86, 0x10000000"); A("s_mov_b32 s87, 0x20000")
        A("s_lshl_b32 s43, s2, 2"); A("s_add_u32 s43, s43, s34"); A("s_lshl_b32 s43, s43, 6")
        A("s_add_u32 s43, s43, 0x10000")
        A("v_mov_b32 v9, s43")
        A("s_mov_b64 exec, 1")
        regs = [44,45,46,47,72,73,74,75,76,77,78,79,80,81,82,83]
        for i in range(4):
            for k in range(4): A(f"v_mov_b32 v{20+k}, s{regs[4*i+k]}")
            A(f"buffer_store_dwordx4 v[20:23], v9, s[84:87], 0 offen offset:{16*i}")
            A("s_nop 1")
        A("s_mov_b64 exec, -1")
        A("s_waitcnt vmcnt(0)")
        vq[:] = sv
    saveL = list(A.L); savevq = list(vq)
    Ns = {}
    for u in range(32):
        Ns[u] = need_n(u)
        interval(u)
    A.L = saveL; vq[:] = savevq
    for u in range(0, 3): interval(u)
    Nl = {m: min([Ns[u] for u in range(3, 27) if u % 4 == m and Ns[u] is not None] or [0]) for m in range(4)}
    A("s_mov_b32 s70, 0")
    A("L_lloop:")
    for u in range(3, 7): interval(u, nfix=Nl[u % 4])
    A("s_add_u32 s70, s70, 1")
    A("s_cmp_lt_u32 s70, 6")
    A("s_cbranch_scc1 L_lloop")
    saveL = list(A.L)
    for u in range(7, 27): interval(u, nfix=Nl[u % 4])
    A.L = saveL
    for u in range(27, 32): interval(u)
    A("L_end:")
    A("s_endpgm")

    A(".p2align 6")
    A("L_compute:")
    if opt.cprio: A(f"s_setprio {opt.cprio}")
    A("s_lshr_b32 s34, s24, 1")
    A("s_and_b32 s35, s24, 1")
    A("v_lshrrev_b32 v10, 4, v0")
    A("v_and_b32 v11, 15, v0")
    A("v_lshrrev_b32 v12, 2, v11")
    A("v_lshl_add_u32 v12, v10, 3, v12")
    A("v_lshlrev_b32 v12, 7, v12")
    A("v_and_b32 v13, 3, v11")
    A("v_lshl_add_u32 v12, v13, 3, v12")
    A("v_lshrrev_b32 v13, 3, v11")
    A("v_and_b32 v14, 1, v10")
    A("v_lshl_or_b32 v13, v14, 1, v13")
    A("s_lshl_b32 s36, s35, 1")
    for p in range(2):
        A(f"s_add_u32 s37, s36, {p}")
        A("v_xor_b32 v14, s37, v13")
        A(f"v_lshl_add_u32 v{V_W[p]}, v14, 5, v12")
    A("s_lshl_b32 s36, s34, 4")
    def xaddr(dst, Rreg):
        A(f"v_lshrrev_b32 v15, 3, v{Rreg}")
        A(f"v_lshlrev_b32 v15, 10, v15")
        A(f"v_and_b32 v16, 7, v{Rreg}")
        A(f"v_lshl_add_u32 v15, v16, 6, v15")
        A(f"v_bfe_u32 v16, v{Rreg}, 2, 1")
        A(f"v_lshlrev_b32 v16, 1, v16")
        A(f"v_xor_b32 v16, v16, v10")
        A(f"v_lshl_add_u32 v15, v16, 4, v15")
        A(f"v_add_u32 v{dst}, {XBASE}, v15")
    A("v_add_u32 v13, s36, v11")
    xaddr(V_X0, 13)
    A("v_add_u32 v13, 2, v13")
    xaddr(17, 13)
    A("v_and_b32 v16, 1, v13")
    A("v_lshlrev_b32 v16, 6, v16")
    A("v_lshl_add_u32 v16, v10, 4, v16")
    A(f"v_add_u32 v16, {XBASE+32768}, v16")
    A("v_cmp_le_u32 vcc, 32, v13")
    for q in range(4):
        A(f"v_add_u32 v18, {q*4096}, v17")
        A(f"v_add_u32 v19, {q*128}, v16")
        A(f"v_cndmask_b32 v{V_X1[q]}, v18, v19, vcc")
    A("v_and_b32 v13, 1, v11")
    A("v_lshrrev_b32 v14, 1, v11")
    A("v_lshl_add_u32 v13, v14, 4, v13")
    A("s_lshl_b32 s36, s34, 7")
    A("s_add_u32 s36, s36, s25")
    A("v_add_u32 v13, s36, v13")
    A("v_lshlrev_b32 v13, 10, v13")
    A("v_and_b32 v14, 1, v10")
    A("v_lshlrev_b32 v14, 5, v14")
    A("v_lshrrev_b32 v15, 1, v10")
    A("v_lshl_add_u32 v14, v15, 4, v14")
    A("s_lshl_b32 s36, s35, 5")
    A("s_add_u32 s36, s36, s26")
    A("s_lshl_b32 s36, s36, 1")
    A("v_add_u32 v13, s36, v13")
    A(f"v_add_u32 v{V_OUT}, v13, v14")
    if opt.full:
        A("v_and_b32 v13, 1, v10")
        A("v_lshlrev_b32 v13, 1, v13")
        A("v_lshrrev_b32 v14, 1, v10")
        A("v_or_b32 v13, v13, v14")
        A("s_lshl_b32 s43, s35, 2")
        A("v_add_u32 v13, s43, v13")
        A("v_and_b32 v14, 7, v11")
        A("v_xor_b32 v13, v13, v14")
        A("v_lshlrev_b32 v13, 4, v13")
        A("v_lshl_add_u32 v13, v11, 7, v13")
        A("s_lshl_b32 s43, s34, 14")
        A("v_add_u32 v28, s43, v13")
        A("v_lshrrev_b32 v13, 3, v0")
        A("v_and_b32 v14, 7, v0")
        A("v_xor_b32 v15, v13, v14")
        A("v_lshlrev_b32 v15, 4, v15")
        A("s_lshl_b32 s21, s35, 3")
        A("v_add_u32 v13, s21, v13")
        A("v_lshl_add_u32 v15, v13, 7, v15")
        A("v_add_u32 v29, s43, v15")
        A("v_and_b32 v15, 1, v13")
        A("v_lshrrev_b32 v16, 1, v13")
        A("v_lshl_add_u32 v15, v16, 4, v15")
        A("s_lshl_b32 s43, s34, 7")
        A("s_add_u32 s43, s43, s25")
        A("v_add_u32 v15, s43, v15")
        A("v_lshlrev_b32 v15, 10, v15")
        A("v_lshl_add_u32 v15, v14, 4, v15")
        A("s_lshl_b32 s43, s26, 1")
        A(f"v_add_u32 v{V_OUT}, s43, v15")
    for r in range(128):
        A(f"v_mov_b32 v{ACC0+r}, 0")
    A(f"s_mov_b32 s22, {XBATCH}")
    A("s_mov_b32 s23, 0x20000")
    A(f"s_mov_b32 s{S_K}, 0")
    A(f"s_mov_b32 s{S_WD}, {2*WUNIT}")
    A(f"s_mov_b32 s29, {-(XBUF+512)}")
    A("s_mov_b32 s36, 0x4038aa3b")
    A("s_mov_b32 s37, 0x4038aa3b")
    A("s_mov_b32 s38, 0xbfb8aa3b")
    A("s_mov_b32 s39, 0xbfb8aa3b")
    A("s_mov_b32 s42, 0x7fffffff")
    A("s_waitcnt lgkmcnt(0)")
    A("s_add_u32 s20, s8, s28")
    A("s_addc_u32 s21, s9, 0")
    if opt.touch:
        A(f"buffer_load_dword v9, v{V_OUT}, s[20:23], 0 offen")
    ds = DS(A)
    def wreads(phi_next):
        p = phi_next & 1; half = (phi_next >> 1) & 1; st = phi_next & 1
        out = []
        for tap in range(5):
            for h in range(2):
                r = WF(st, tap) + 2*h
                off = half*WUNIT + tap*4096 + h*512
                out.append((f"ds_read_b64_tr_b16 a[{r}:{r+1}], v{V_W[p]} offset:{off}", [('a', r), ('a', r+1)]))
        return out
    def xread(q):
        r = XF(q)
        regs = [('a', r+i) for i in range(4)]
        if q < 8:
            return (f"ds_read_b128 a[{r}:{r+3}], v{V_X0} offset:{q*4096}", regs)
        return (f"ds_read_b128 a[{r}:{r+3}], v{V_X1[q-8]} offset:0", regs)

    def mfma(a, wf, xf):
        ds.need([('a', wf+i) for i in range(4)] + [('a', xf+i) for i in range(4)])
        A(f"v_mfma_f32_16x16x32_bf16 v[{a}:{a+3}], {areg(wf)}, {areg(xf)}, v[{a}:{a+3}]")

    def phase(phi, wnext=True, xreload=False, barrier=False, extra=None):
        nb = phi & 3; st = phi & 1
        if barrier:
            ds.drain()
            if not opt.nobar: A("s_barrier")
        post = {n: [] for n in range(40)}
        if wnext:
            for i, rd in enumerate(wreads(phi+1)): post[2*i].append(rd)
        if xreload:
            for q in range(8): post[5*q].append(xread(q))
            for q in range(8, 12): post[28+q].append(xread(q))
        for j in range(8):
            for tap in range(5):
                n = 5*j + tap
                mfma(acc(j, nb), WF(st, tap), XF(j+tap))
                for (t, regs) in post[n]:
                    if opt.nods: continue
                    ds.issue(t, regs)
                if extra and n in extra:
                    for t in extra[n]: A(t)

    groups = [int(g) for g in opt.groups.split(',')] if opt.groups else None
    NIT = 14 if groups else 16
    xupd = {3: [f"s_bitcmp1_b32 s{S_K}, 1",
                f"s_cselect_b32 s{S_T}, s29, {XBUF-512}"],
            5: [f"s_bitcmp1_b32 s{S_K}, 0",
                f"s_cselect_b32 s{S_XD}, s{S_T}, 512"],
            21: [f"v_add_u32 v{V_X0}, s{S_XD}, v{V_X0}"],
            23: [f"v_add_u32 v{V_X1[0]}, s{S_XD}, v{V_X1[0]}"],
            25: [f"v_add_u32 v{V_X1[1]}, s{S_XD}, v{V_X1[1]}"],
            27: [f"v_add_u32 v{V_X1[2]}, s{S_XD}, v{V_X1[2]}"],
            29: [f"v_add_u32 v{V_X1[3]}, s{S_XD}, v{V_X1[3]}"]}
    def body():
        phase(0)
        phase(1, barrier=True, extra=xupd)
        phase(2, extra={25: [f"v_add_u32 v{V_W[0]}, s{S_WD}, v{V_W[0]}"]})
        phase(3, barrier=True, xreload=True,
              extra={22: [f"v_add_u32 v{V_W[1]}, s{S_WD}, v{V_W[1]}"],
                     27: [f"s_sub_u32 s{S_WD}, 0, s{S_WD}"], 28: [f"s_add_u32 s{S_K}, s{S_K}, 1"],
                     33: [f"s_cmp_lt_u32 s{S_K}, {NIT if groups else 15}"]})
    saveL = list(A.L)
    ds.q = []; body(); Q1 = [set(x) for x in ds.q]
    body(); Q2 = [set(x) for x in ds.q]
    assert Q1 == Q2, (Q1, Q2)
    A.L = saveL
    A("s_barrier")
    if opt.stamp:
        A("s_memtime s[50:51]")
        A("s_memrealtime s[48:49]")
        A("s_waitcnt lgkmcnt(0)")
    if opt.spin:
        A("s_memrealtime s[66:67]")
        A("s_waitcnt lgkmcnt(0)")
    wr = wreads(0)
    order = []
    for tap in range(5):
        order.append(xread(tap)); order += wr[2*tap:2*tap+2]
    for q in range(5, 12): order.append(xread(q))
    tail = [o for o in order if set(o[1]) in Q1]
    head = [o for o in order if set(o[1]) not in Q1]
    tail.sort(key=lambda o: Q1.index(set(o[1])))
    assert len(tail) == len(Q1)
    ds.q = []
    for (t, regs) in head + tail: ds.issue(t, regs)
    ds.wait_n(len(Q1))
    ds.q = [set(x) for x in Q1]
    A(".p2align 6")
    A("L_cloop:")
    body()
    A("s_cbranch_scc1 L_cloop")
    assert ds.q == Q1

    TB = 10
    def epi_ops(j, PB):
        outs = []
        for p in range(2):
            for i in range(4):
                outs.append((acc(j, p) + i, acc(j, 2+p) + i, TB + 4*p + i))
        ops = []
        for (f, g, t) in outs: ops.append((4, f"v_mul_f32 v{t}, s36, v{f}"))
        for (f, g, t) in outs: ops.append((4, f"v_mul_f32 v{g}, s38, v{g}"))
        for (f, g, t) in outs: ops.append((8, f"v_exp_f32 v{t}, -|v{t}|"))
        for (f, g, t) in outs: ops.append((8, f"v_exp_f32 v{g}, v{g}"))
        for (f, g, t) in outs: ops.append((4, f"v_add_f32 v{g}, 1.0, v{g}"))
        for (f, g, t) in outs: ops.append((4, f"v_fmac_f32 v{g}, v{t}, v{g}"))
        for (f, g, t) in outs: ops.append((8, f"v_rcp_f32 v{g}, v{g}"))
        for (f, g, t) in outs: ops.append((4, f"v_fma_f32 v{t}, -v{t}, v{g}, v{g}"))
        for (f, g, t) in outs: ops.append((4, f"v_bfi_b32 v{t}, s42, v{t}, v{f}"))
        for k in range(4): ops.append((4, f"v_cvt_pk_bf16_f32 v{PB+k}, v{TB+2*k}, v{TB+2*k+1}"))
        fin = [(4, f"v_permlane16_swap_b32 v{PB}, v{PB+2}"), (4, f"v_permlane16_swap_b32 v{PB+1}, v{PB+3}")]
        if j >= 2: fin.append((4, f"s_mov_b32 s43, {4096*(j//2)}"))
        so = "0" if j < 2 else "s43"
        fin.append((4, f"buffer_store_dwordx4 v[{PB}:{PB+3}], v{V_OUT}, s[20:23], {so} offen offset:{2048*(j&1)}{opt.spol}"))
        return ops, fin

    tail_js = list(range(8))
    if not groups:
        phase(60); phase(61, barrier=True); phase(62); phase(63, wnext=False)
    else:
        assert sum(groups) == 8
        VW2 = [30, 31]
        A(f"v_add_u32 v{VW2[0]}, {2*WUNIT}, v{V_W[0]}")
        A(f"v_add_u32 v{VW2[1]}, {2*WUNIT}, v{V_W[1]}")
        subs = []
        j0 = 0
        for gi, gsz in enumerate(groups):
            js = list(range(j0, j0+gsz)); j0 += gsz
            for ks in range(2):
                for nb in range(4):
                    subs.append(dict(g=gi, js=js, ks=ks, nb=nb))
        mf = []
        for si, sb in enumerate(subs):
            sb['start'] = len(mf)
            for j in sb['js']:
                for tap in range(5):
                    mf.append(dict(sub=si, acc=acc(j, sb['nb']), tap=tap, xkey=(sb['g'], sb['ks'], j+tap)))
            sb['end'] = len(mf)
        NM = len(mf)
        post = {n: [] for n in range(NM)}
        for si in range(len(subs)-1):
            nx = subs[si+1]
            p = nx['nb'] & 1; half = nx['nb'] >> 1; st = (si+1) & 1
            vw = V_W[p] if nx['ks'] == 0 else VW2[p]
            L = subs[si]['end'] - subs[si]['start']
            k = 0
            for tap in range(5):
                for h in range(2):
                    r = WF(st, tap) + 2*h
                    off = half*WUNIT + tap*4096 + h*512
                    pos = subs[si]['start'] + (k * max(L-4, 10)) // 10
                    pos = min(pos, subs[si]['end']-1)
                    post[pos].append((f"ds_read_b64_tr_b16 a[{r}:{r+1}], v{vw} offset:{off}", [('a', r), ('a', r+1)]))
                    k += 1
        first = {}; last = {}
        for n, m in enumerate(mf):
            first.setdefault(m['xkey'], n); last[m['xkey']] = n
        slot_of = {}; slot_free = [-1]*12
        init = [k for k in first if k[0] == 0 and k[1] == 0]
        for k in init:
            slot_of[k] = k[2]; slot_free[k[2]] = last[k]
        rest = sorted([k for k in first if k not in slot_of], key=lambda k: first[k])
        for k in rest:
            sl = min(range(12), key=lambda i: slot_free[i])
            pos = slot_free[sl]
            pos = max(pos, first[k]-60, 0)
            assert first[k] - pos >= 14, (k, first[k], pos)
            slot_of[k] = sl; slot_free[sl] = last[k]
            g, ks, q = k
            r = XF(sl); regs = [('a', r+i) for i in range(4)]
            if q < 8: t = f"ds_read_b128 a[{r}:{r+3}], v{V_X0} offset:{q*4096 + ks*512}"
            else: t = f"ds_read_b128 a[{r}:{r+3}], v{V_X1[q-8]} offset:{ks*512}"
            post[pos].append((t, regs))
        bar_at = {}
        for si, sb in enumerate(subs):
            if sb['g'] == 0 and (sb['ks'], sb['nb']) in [(0, 2), (1, 0), (1, 2)]:
                bar_at[subs[si-1]['start']] = True
        fill = {n: [] for n in range(NM)}
        j0 = 0
        for gi, gsz in enumerate(groups[:-1]):
            js = list(range(j0, j0+gsz)); j0 += gsz
            ops = []
            pendfin = []
            for idx, j in enumerate(js):
                o, fin = epi_ops(j, 20 + 4*(j & 1))
                ops += o[:2] + pendfin + o[2:]
                pendfin = fin
            ops += [(4, "s_nop 1")] + pendfin
            g0 = min(sb['start'] for sb in subs if sb['g'] == gi+1) + 2
            g1 = max(sb['end'] for sb in subs if sb['g'] == gi+1)
            total = sum(c for c, _ in ops)
            used = {n: 4*len(post[n]) + (8 if n in bar_at else 0) for n in range(g0, g1)}
            free = sum(max(0, 8-used[n]) for n in range(g0, g1))
            extra = max(0, total - free)
            i = 0; carry = 0.0
            for n in range(g0, g1):
                budget = max(0, 8-used[n]) + extra/(g1-g0) + carry
                while i < len(ops) and ops[i][0] <= budget + 1e-9:
                    fill[n].append(ops[i][1]); budget -= ops[i][0]; i += 1
                carry = min(budget, 8)
            while i < len(ops):
                fill[g1-1].append(ops[i][1]); i += 1
            if opt.verbose: sys.stderr.write(f"group {gi}: valu {total} free {free} extra {extra}\n")
            for j in js: tail_js.remove(j)
        for n, m in enumerate(mf):
            if n in bar_at:
                ds.drain()
                if not opt.nobar: A("s_barrier")
            st = m['sub'] & 1
            mfma(m['acc'], WF(st, m['tap']), XF(slot_of[m['xkey']]))
            for (t, regs) in post[n]: ds.issue(t, regs)
            for t in fill[n]: A(t)
    if opt.stamp:
        ds.drain()
        A("s_memtime s[52:53]")
        A("s_memrealtime s[54:55]")
        A("s_waitcnt lgkmcnt(0)")
    if opt.spin:
        ds.drain()
        A("s_memrealtime s[68:69]")
        A("s_waitcnt lgkmcnt(0)")
    A("; ---- epilogue")
    A("s_nop 7")
    def epi_math(j, PB):
        pairs = []
        for p in range(2):
            for h in range(2):
                f = acc(j, p) + 2*h; g = acc(j, 2+p) + 2*h
                pairs.append((f, g, TB + 2*(2*p+h), PB + 2*p + h))
        for (f, g, t, o) in pairs: A(f"v_pk_mul_f32 v[{t}:{t+1}], v[{f}:{f+1}], s[36:37]")
        for (f, g, t, o) in pairs: A(f"v_pk_mul_f32 v[{g}:{g+1}], v[{g}:{g+1}], s[38:39]")
        for (f, g, t, o) in pairs:
            A(f"v_exp_f32 v{t}, -|v{t}|"); A(f"v_exp_f32 v{t+1}, -|v{t+1}|")
        for (f, g, t, o) in pairs:
            A(f"v_exp_f32 v{g}, v{g}"); A(f"v_exp_f32 v{g+1}, v{g+1}")
        for (f, g, t, o) in pairs: A(f"v_pk_add_f32 v[{g}:{g+1}], v[{g}:{g+1}], 1.0 op_sel_hi:[1,0]")
        for (f, g, t, o) in pairs: A(f"v_pk_fma_f32 v[{g}:{g+1}], v[{t}:{t+1}], v[{g}:{g+1}], v[{g}:{g+1}]")
        for (f, g, t, o) in pairs:
            A(f"v_rcp_f32 v{g}, v{g}"); A(f"v_rcp_f32 v{g+1}, v{g+1}")
        for (f, g, t, o) in pairs: A(f"v_pk_fma_f32 v[{t}:{t+1}], v[{t}:{t+1}], v[{g}:{g+1}], v[{g}:{g+1}] neg_lo:[1,0,0] neg_hi:[1,0,0]")
        for (f, g, t, o) in pairs:
            A(f"v_bfi_b32 v{t}, s42, v{t}, v{f}"); A(f"v_bfi_b32 v{t+1}, s42, v{t+1}, v{f+1}")
        for (f, g, t, o) in pairs: A(f"v_cvt_pk_bf16_f32 v{o}, v{t}, v{t+1}")
        A("s_nop 1")
        A(f"v_permlane16_swap_b32 v{PB}, v{PB+2}")
        A(f"v_permlane16_swap_b32 v{PB+1}, v{PB+3}")
    def gstore(j, PB):
        if j >= 2: A(f"s_mov_b32 s43, {4096*(j//2)}")
        so = "0" if j < 2 else "s43"
        A(f"buffer_store_dwordx4 v[{PB}:{PB+3}], v{V_OUT}, s[20:23], {so} offen offset:{2048*(j&1)}{opt.spol}")
    if not opt.full:
        for j in tail_js:
            PB = 20 + 4*(j & 1)
            epi_math(j, PB)
            gstore(j, PB)
    else:
        gs = opt.full
        pend = []
        for j0 in range(0, 8, gs):
            for j in range(j0, j0+gs):
                PB = 20 + 4*(j & 1)
                epi_math(j, PB)
                A(f"ds_write_b128 v28, v[{PB}:{PB+3}] offset:{j*2048}")
                if pend:
                    jj = pend.pop(0)
                    A("s_waitcnt lgkmcnt(1)")
                    gstore(jj, 32 + 4*(jj & 1))
                    if pend: A(f"ds_read_b128 v[{32+4*(pend[0]&1)}:{35+4*(pend[0]&1)}], v29 offset:{pend[0]*2048}")
            while pend:
                jj = pend.pop(0)
                A("s_waitcnt lgkmcnt(0)")
                gstore(jj, 32 + 4*(jj & 1))
                if pend: A(f"ds_read_b128 v[{32+4*(pend[0]&1)}:{35+4*(pend[0]&1)}], v29 offset:{pend[0]*2048}")
            A("s_waitcnt lgkmcnt(0)")
            A("s_barrier")
            pend = list(range(j0, j0+gs))
            A(f"ds_read_b128 v[{32+4*(pend[0]&1)}:{35+4*(pend[0]&1)}], v29 offset:{pend[0]*2048}")
        while pend:
            jj = pend.pop(0)
            if pend: A(f"ds_read_b128 v[{32+4*(pend[0]&1)}:{35+4*(pend[0]&1)}], v29 offset:{pend[0]*2048}")
            A("s_waitcnt lgkmcnt(%d)" % (1 if pend else 0))
            gstore(jj, 32 + 4*(jj & 1))
            A("s_nop 0")
    if opt.spin:
        A("s_waitcnt vmcnt(0)")
        A("s_memrealtime s[70:71]")
        A("s_waitcnt lgkmcnt(0)")
        which, mult = opt.spin.split(',')
        a, b = {'pro': (62, 66), 'main': (66, 68), 'epi': (68, 70), 'none': (70, 70)}[which]
        A(f"s_sub_u32 s43, s{b}, s{a}")
        A(f"s_mul_i32 s43, s43, {mult}")
        A("s_add_u32 s43, s43, s70")
        A("L_spin:")
        A("s_memrealtime s[60:61]")
        A("s_waitcnt lgkmcnt(0)")
        A("s_sub_u32 s42, s60, s43")
        A("s_cmp_lt_i32 s42, 0")
        A("s_cbranch_scc1 L_spin")
    if opt.stamp:
        A("s_waitcnt vmcnt(0)")
        A("s_memtime s[56:57]")
        A("s_memrealtime s[58:59]")
        A("s_waitcnt lgkmcnt(0)")
        if opt.dbgstamp:
            A("s_sub_u32 s60, s50, s44")
            A("s_sub_u32 s61, s48, s46")
            A("s_sub_u32 s62, s52, s50")
            A("s_sub_u32 s63, s54, s48")
            A("s_sub_u32 s64, s56, s52")
            A("s_sub_u32 s65, s56, s44")
            A("s_sub_u32 s66, s58, s46")
            A("s_mov_b32 s67, s46")
            A("s_cmp_lg_u32 s24, 0")
            A("s_cbranch_scc1 L_nostamp")
            A("s_mov_b32 s43, 0")
            A("s_cmp_eq_u32 s2, 0")
            A("s_cbranch_scc1 L_dostamp")
            A("s_mov_b32 s43, 32")
            A("s_cmp_eq_u32 s2, 133")
            A("s_cbranch_scc0 L_nostamp")
            A("L_dostamp:")
            A("s_mov_b32 s68, s40"); A("s_mov_b32 s69, s41"); A("s_mov_b32 s70, 256"); A("s_mov_b32 s71, 0x20000")
            A("v_mov_b32 v9, s43")
            A("s_mov_b64 exec, 1")
            for i in range(2):
                for k in range(4): A(f"v_mov_b32 v{12+k}, s{60+4*i+k}")
                A(f"buffer_store_dwordx4 v[12:15], v9, s[68:71], 0 offen offset:{16*i}")
                A("s_nop 1")
            A("L_nostamp:")
        else:
            A("s_mov_b32 s60, s40"); A("s_mov_b32 s61, s41"); A("s_mov_b32 s62, 0x10000000"); A("s_mov_b32 s63, 0x20000")
            A("s_lshl_b32 s43, s2, 2"); A("s_add_u32 s43, s43, s24"); A("s_lshl_b32 s43, s43, 6")
            A("v_mov_b32 v9, s43")
            A("s_mov_b64 exec, 1")
            for i in range(4):
                for k in range(4): A(f"v_mov_b32 v{12+k}, s{44+4*i+k}")
                A(f"buffer_store_dwordx4 v[12:15], v9, s[60:63], 0 offen offset:{16*i}")
                A("s_nop 1")
    A("s_endpgm")

    A('.section .rodata,"a"')
    A(".p2align 6")
    A(f".amdhsa_kernel {NAME}")
    A("  .amdhsa_next_free_vgpr 256")
    A("  .amdhsa_next_free_sgpr 96")
    A("  .amdhsa_accum_offset 168")
    A("  .amdhsa_group_segment_fixed_size 0")
    A("  .amdhsa_kernarg_size 40")
    A("  .amdhsa_user_sgpr_count 2")
    A("  .amdhsa_user_sgpr_kernarg_segment_ptr 1")
    A("  .amdhsa_system_sgpr_workgroup_id_x 1")
    A("  .amdhsa_float_denorm_mode_32 3")
    A(".end_amdhsa_kernel")
    if opt.meta:
        A(f""".amdgpu_metadata
---
amdhsa.version: [1, 2]
amdhsa.kernels:
  - .name: {NAME}
    .symbol: {NAME}.kd
    .kernarg_segment_size: 40
    .kernarg_segment_align: 8
    .group_segment_fixed_size: 0
    .private_segment_fixed_size: 0
    .wavefront_size: 64
    .sgpr_count: 96
    .vgpr_count: 256
    .max_flat_workgroup_size: 512
    .args:
      - {{.name: kernargs, .size: 40, .offset: 0, .value_kind: by_value}}
...
.end_amdgpu_metadata""")
    if opt.verbose: sys.stderr.write(f"loader waits: {Ns}\nloop: {Nl}\n")
    return A.text()

def parse(argv=None):
    ap = argparse.ArgumentParser()
    ap.add_argument("-o", default="/dev/stdout")
    for o in ["meta", "stamp", "dbgstamp", "nods", "nodma", "nodmaw", "nodmax", "nobar", "verbose", "lstamp", "touch"]:
        ap.add_argument("--"+o, action="store_true")
    ap.add_argument("--spin", default="")
    ap.add_argument("--groups", default="")
    ap.add_argument("--full", type=int, default=0)
    ap.add_argument("--rot", default="")
    ap.add_argument("--order", default="xwx")
    ap.add_argument("--cprio", type=int, default=0)
    ap.add_argument("--lprio", type=int, default=0)
    ap.add_argument("--npre", type=int, default=3)
    ap.add_argument("--wpol", default="")
    ap.add_argument("--xpol", default="")
    ap.add_argument("--spol", default="nt")
    opt = ap.parse_args(argv)
    for k in ["wpol", "xpol", "spol"]:
        v = getattr(opt, k)
        if v: setattr(opt, k, " " + v)
    return opt

if __name__ == "__main__":
    opt = parse()
    open(opt.o, "w").write(gen(opt))
```

```python
import sys, argparse

NAME = "standalone__autoregressive_conv_wavernn__speech_kernel"
XBATCH = 4096000
WBYTES = 5242880
WUNIT = 20480
XBASE = 4 * WUNIT
XBUF = 33792
LDS_BYTES = XBASE + 2 * XBUF

class Asm:
    def __init__(self):
        self.L = []
    def __call__(self, s):
        self.L.append(s)
    def text(self):
        return "\n".join(self.L) + "\n"

class DS:
    def __init__(self, A):
        self.A = A
        self.q = []
    def issue(self, text, regs):
        if len(self.q) >= 14:
            self.wait_n(10)
        self.A(text)
        self.q.append(set(regs))
    def wait_n(self, n):
        if len(self.q) > n:
            self.A(f"s_waitcnt lgkmcnt({n})")
            self.q = self.q[len(self.q)-n:] if n > 0 else []
    def need(self, regs):
        regs = set(regs)
        last = -1
        for i, s in enumerate(self.q):
            if s & regs:
                last = i
        if last >= 0:
            self.wait_n(len(self.q) - 1 - last)
    def drain(self):
        self.A("s_waitcnt lgkmcnt(0)")
        self.q = []

ACC0 = 40
def acc(j, nb): return ACC0 + (j*4 + nb)*4
def areg(n): return f"a[{n}:{n+3}]"
def XF(q): return 4*q
def WF(st, tap): return 48 + st*20 + tap*4
V_W = [1, 2]
V_X0 = 3
V_X1 = [4, 5, 6, 7]
V_OUT = 8
S_K = 30; S_WD = 31; S_XD = 32; S_T = 33

def gen(opt):
    A = Asm()
    A("; Kernarg layout for this problem (40 bytes, ptrs only, base s[0:1]):")
    A(";   offset   0: d_in[0] x  shape=(2, 4000, 512) dtype=bfloat16")
    A(";   offset   8: d_in[1] w  shape=(5, 512, 1024) dtype=bfloat16")
    A(";   offset  16: d_out     shape=(2, 4000, 512) dtype=bfloat16")
    A("; waves 0-3 MFMA consumers, waves 4-7 LDS-DMA loaders.")
    A(f"; @launch grid=(256,1,1) block=(512,1,1) lds={LDS_BYTES}")
    A('.amdgcn_target "amdgcn-amd-amdhsa--gfx950"')
    A(".text")
    A(f".globl {NAME}")
    A(".p2align 8")
    A(f".type {NAME},@function")
    A(f"{NAME}:")
    A("s_cmp_ge_u32 s2, 256")
    A("s_cbranch_scc1 L_end")
    A("s_load_dwordx4 s[4:7], s[0:1], 0")
    A("s_load_dwordx2 s[8:9], s[0:1], 16")
    if opt.stamp:
        A("s_load_dwordx2 s[40:41], s[0:1], %d" % (24 if opt.dbgstamp else 32))
        A("s_memtime s[44:45]")
        A("s_memrealtime s[46:47]")
    if opt.spin:
        A("s_memrealtime s[62:63]")
    A("v_lshrrev_b32 v1, 6, v0")
    A("v_and_b32 v0, 63, v0")
    A("s_and_b32 s28, s2, 7")
    A("v_readfirstlane_b32 s24, v1")
    A("s_lshr_b32 s29, s2, 3")
    A("s_lshr_b32 s30, s28, 1")
    A("s_lshl_b32 s30, s30, 3")
    A("s_lshr_b32 s31, s29, 2")
    A("s_add_u32 s30, s30, s31")
    A("s_and_b32 s31, s28, 1")
    A("s_lshl_b32 s31, s31, 2")
    A("s_and_b32 s29, s29, 3")
    A("s_add_u32 s31, s31, s29")
    A("s_lshr_b32 s27, s30, 4")
    A("s_and_b32 s25, s30, 15")
    A("s_lshl_b32 s25, s25, 8")
    A("s_lshl_b32 s26, s31, 6")
    A(f"s_mul_i32 s28, s27, {XBATCH}")
    A("s_cmp_lt_u32 s24, 4")
    A("s_cbranch_scc1 L_compute")

    A("s_sub_u32 s34, s24, 4")
    if opt.lprio: A(f"s_setprio {opt.lprio}")
    A("v_lshrrev_b32 v10, 5, v0")
    A("v_bfe_u32 v11, v0, 2, 3")
    A("v_and_b32 v12, 3, v0")
    A("v_lshrrev_b32 v13, 2, v11")
    A("v_lshlrev_b32 v13, 1, v13")
    A("v_xor_b32 v13, v13, v12")
    A("v_lshlrev_b32 v14, 6, v10")
    A("v_lshl_add_u32 v15, v13, 4, v14")
    A("v_lshl_add_u32 v16, v12, 4, v14")
    A("v_and_b32 v13, 1, v11")
    A("v_lshrrev_b32 v17, 1, v11")
    A("v_lshl_add_u32 v13, v17, 4, v13")
    A("s_lshl_b32 s35, s34, 6")
    A("s_add_u32 s35, s35, s25")
    A("s_sub_u32 s35, s35, 8")
    A("v_add_u32 v13, s35, v13")
    A("v_lshlrev_b32 v17, 10, v13")
    A("v_add_u32 v17, v17, v15")
    A("v_add_u32 v3, 0x2000, v17")
    A("v_bfrev_b32 v18, 1")
    A("v_cmp_gt_i32 vcc, 0, v13")
    A("s_add_u32 s35, s25, 248")
    A("v_add_u32 v11, s35, v11")
    A("v_cndmask_b32 v2, v17, v18, vcc")
    A("v_lshlrev_b32 v11, 10, v11")
    A("v_add_u32 v4, v11, v16")
    A("v_lshrrev_b32 v10, 3, v0")
    A("v_and_b32 v11, 7, v0")
    A("v_lshrrev_b32 v12, 1, v11")
    A("v_bfe_u32 v13, v10, 1, 1")
    A("s_and_b32 s35, s34, 1")
    A("s_lshl_b32 s35, s35, 1")
    A("v_or_b32 v13, s35, v13")
    A("v_xor_b32 v12, v12, v13")
    A("v_lshlrev_b32 v12, 5, v12")
    A("v_and_b32 v11, 1, v11")
    A("v_lshl_add_u32 v12, v11, 4, v12")
    A("s_lshl_b32 s35, s34, 3")
    A("v_add_u32 v10, s35, v10")
    A("v_lshl_add_u32 v12, v10, 11, v12")
    A("s_lshl_b32 s35, s26, 1")
    A("v_add_u32 v1, s35, v12")
    A("s_lshl_b32 s35, s34, 4")
    A("s_mov_b64 s[36:37], 0xffff")
    A("s_lshl_b64 s[36:37], s[36:37], s35")
    A("s_lshl_b32 s38, s34, 10")
    A(f"s_mov_b32 s14, {XBATCH}")
    A("s_mov_b32 s15, 0x20000")
    A(f"s_mov_b32 s18, {WBYTES}")
    A("s_mov_b32 s19, 0x20000")
    if opt.rot:
        if opt.rot == 'xcd': A("s_and_b32 s66, s2, 7")
        elif opt.rot == 'xcd4': A("s_and_b32 s66, s2, 6")
        A("s_lshl_b32 s64, s66, 17")
        A("s_lshl_b32 s66, s66, 7")
    else:
        A("s_mov_b32 s64, 0")
        A("s_mov_b32 s66, 0")
    A("s_mov_b32 s65, s38")
    A(f"s_add_u32 s67, s38, {XBASE}")
    A(f"s_add_u32 s69, s38, {XBASE+XBUF}")
    A("s_xor_b32 s69, s69, s67")
    A("s_waitcnt lgkmcnt(0)")
    A("s_add_u32 s12, s4, s28")
    A("s_addc_u32 s13, s5, 0")
    A("s_mov_b32 s16, s6")
    A("s_mov_b32 s17, s7")

    vq = []
    def w_issue(u):
        if opt.nodmaw and u > 3: return
        for tap in range(5):
            if tap == 0:
                A("s_mov_b32 m0, s65")
                A("s_mov_b32 s68, s64")
            else:
                A("s_add_u32 m0, m0, 4096")
                A("s_add_u32 s68, s68, 0x100000")
            A(f"buffer_load_dwordx4 v1, s[16:19], s68 offen{opt.wpol} lds")
            vq.append(('W', u))
        if u & 1:
            A(f"s_add_u32 s64, s64, {65536-1024}")
            if opt.rot: A("s_and_b32 s64, s64, 0xfffff")
        else: A("s_add_u32 s64, s64, 1024")
        if (u & 3) == 3: A(f"s_sub_u32 s65, s65, {3*WUNIT}")
        else: A(f"s_add_u32 s65, s65, {WUNIT}")
    def x_issue(c, part, half=None):
        if opt.nodmax and c > 1: return
        qs = range(0, 4) if part == 0 else range(4, 8)
        tag = ('XH', c) if half == 'hi' else ('X', c)
        if half == 'lo': A("s_mov_b32 exec_hi, 0")
        if half == 'hi': A("s_mov_b32 exec_lo, 0")
        for q in qs:
            A(f"s_add_u32 m0, s67, {q*4096}")
            if q < 4:
                A(f"s_add_u32 s68, s66, {2*q*1024}")
                A(f"buffer_load_dwordx4 v2, s[12:15], s68 offen{opt.xpol} lds")
            else:
                A(f"s_add_u32 s68, s66, {(2*q-8)*1024}")
                A(f"buffer_load_dwordx4 v3, s[12:15], s68 offen{opt.xpol} lds")
            vq.append(tag)
        if half: A("s_mov_b64 exec, -1")
        if part == 1 and half != 'hi':
            A(f"s_sub_u32 m0, s67, s38")
            A(f"s_add_u32 m0, m0, 32768")
            A("s_mov_b64 exec, s[36:37]")
            A(f"buffer_load_dwordx4 v4, s[12:15], s66 offen{opt.xpol} lds")
            A("s_mov_b64 exec, -1")
            vq.append(tag)
        if part == 1 and half != 'lo':
            A("s_add_u32 s66, s66, 128")
            if opt.rot: A("s_and_b32 s66, s66, 0x3ff")
            A("s_xor_b32 s67, s67, s69")
    def need_n(u):
        need = [('W', u)]
        if u % 4 == 0: need.append(('X', u//4))
        if u == 2: need.append(('XH', 0))
        last = -1
        for i, t in enumerate(vq):
            if t in need: last = i
        return len(vq) - 1 - last if last >= 0 else None
    def wait_for(u, n=None):
        nn = need_n(u)
        if n is None: n = nn
        assert nn is None or n <= nn
        if n is not None and n <= len(vq):
            A(f"s_waitcnt vmcnt({n})")
            del vq[:len(vq)-n]
    sched = {}
    if opt.sched:
        for part in opt.sched.split(';'):
            k, v = part.split(':')
            sched[k] = v.split(',') if v else []
    U0 = 3 if not opt.sched else max(int(k) for k in sched if k != 'pre') + 1
    while U0 % 4 != 3: U0 += 1
    def do_item(it):
        if it[0] == 'w': w_issue(int(it[1:]))
        elif it == 'xl': x_issue(0, 0, 'lo'); x_issue(0, 1, 'lo')
        elif it == 'xla': x_issue(0, 0, 'lo')
        elif it == 'xlb': x_issue(0, 1, 'lo')
        elif it == 'xh': x_issue(0, 0, 'hi'); x_issue(0, 1, 'hi')
        elif it[0] == 'x': x_issue(int(it[1]), 0 if it[2] == 'a' else 1)
    def issues(u):
        if str(u) in sched: return sched[str(u)]
        r = []
        if u + 3 <= 31 and u + 3 >= opt.npre: r.append(f'w{u+3}')
        if u == 1: r.append('x1a')
        elif u == 2: r.append('x1b')
        elif u % 4 == 3 and u//4 + 2 <= 7: r.append(f'x{u//4+2}a')
        elif u % 4 == 0 and u >= 4 and u//4 + 1 <= 7: r.append(f'x{u//4+1}b')
        return r
    def interval(u, nfix=None):
        wait_for(u, nfix)
        if not (opt.nobar and u > 0): A("s_barrier")
        if opt.nodma: return
        for it in issues(u): do_item(it)
    def lst(i):
        if opt.lstamp: A(f"s_memtime s[{72+2*i}:{73+2*i}]")
    lst(0)
    pre = sched.get('pre', ['x0a', 'w0', 'x0b'] + [f'w{u}' for u in range(1, opt.npre)])
    for it in pre: do_item(it)
    lst(4)
    if opt.lstamp:
        sv = list(vq)
        wait_for(0)
        lst(5)
        A("s_waitcnt lgkmcnt(0)")
        A("s_mov_b32 s84, s40"); A("s_mov_b32 s85, s41"); A("s_mov_b32 s86, 0x10000000"); A("s_mov_b32 s87, 0x20000")
        A("s_lshl_b32 s43, s2, 2"); A("s_add_u32 s43, s43, s34"); A("s_lshl_b32 s43, s43, 6")
        A("s_add_u32 s43, s43, 0x10000")
        A("v_mov_b32 v9, s43")
        A("s_mov_b64 exec, 1")
        regs = [44,45,46,47,72,73,74,75,76,77,78,79,80,81,82,83]
        for i in range(4):
            for k in range(4): A(f"v_mov_b32 v{20+k}, s{regs[4*i+k]}")
            A(f"buffer_store_dwordx4 v[20:23], v9, s[84:87], 0 offen offset:{16*i}")
            A("s_nop 1")
        A("s_mov_b64 exec, -1")
        A("s_waitcnt vmcnt(0)")
        vq[:] = sv
    saveL = list(A.L); savevq = list(vq)
    Ns = {}
    for u in range(32):
        Ns[u] = need_n(u)
        interval(u)
    A.L = saveL; vq[:] = savevq
    for u in range(0, U0): interval(u)
    Nl = {m: min([Ns[u] for u in range(U0, 27) if u % 4 == m and Ns[u] is not None] or [0]) for m in range(4)}
    A("s_mov_b32 s70, 0")
    A("L_lloop:")
    for u in range(U0, U0+4): interval(u, nfix=Nl[u % 4])
    A("s_add_u32 s70, s70, 1")
    A(f"s_cmp_lt_u32 s70, {(27-U0)//4}")
    A("s_cbranch_scc1 L_lloop")
    saveL = list(A.L)
    for u in range(U0+4, 27): interval(u, nfix=Nl[u % 4])
    A.L = saveL
    for u in range(27, 32): interval(u)
    A("L_end:")
    A("s_endpgm")

    A(".p2align 6")
    A("L_compute:")
    if opt.cprio: A(f"s_setprio {opt.cprio}")
    A("s_lshr_b32 s34, s24, 1")
    A("s_and_b32 s35, s24, 1")
    A("v_lshrrev_b32 v10, 4, v0")
    A("v_and_b32 v11, 15, v0")
    A("v_lshrrev_b32 v12, 2, v11")
    A("v_lshl_add_u32 v12, v10, 3, v12")
    A("v_lshlrev_b32 v12, 7, v12")
    A("v_and_b32 v13, 3, v11")
    A("v_lshl_add_u32 v12, v13, 3, v12")
    A("v_lshrrev_b32 v13, 3, v11")
    A("v_and_b32 v14, 1, v10")
    A("v_lshl_or_b32 v13, v14, 1, v13")
    A("s_lshl_b32 s36, s35, 1")
    for p in range(2):
        A(f"s_add_u32 s37, s36, {p}")
        A("v_xor_b32 v14, s37, v13")
        A(f"v_lshl_add_u32 v{V_W[p]}, v14, 5, v12")
    A("s_lshl_b32 s36, s34, 4")
    def xaddr(dst, Rreg):
        A(f"v_lshrrev_b32 v15, 3, v{Rreg}")
        A(f"v_lshlrev_b32 v15, 10, v15")
        A(f"v_and_b32 v16, 7, v{Rreg}")
        A(f"v_lshl_add_u32 v15, v16, 6, v15")
        A(f"v_bfe_u32 v16, v{Rreg}, 2, 1")
        A(f"v_lshlrev_b32 v16, 1, v16")
        A(f"v_xor_b32 v16, v16, v10")
        A(f"v_lshl_add_u32 v15, v16, 4, v15")
        A(f"v_add_u32 v{dst}, {XBASE}, v15")
    A("v_add_u32 v13, s36, v11")
    xaddr(V_X0, 13)
    A("v_add_u32 v13, 2, v13")
    xaddr(17, 13)
    A("v_and_b32 v16, 1, v13")
    A("v_lshlrev_b32 v16, 6, v16")
    A("v_lshl_add_u32 v16, v10, 4, v16")
    A(f"v_add_u32 v16, {XBASE+32768}, v16")
    A("v_cmp_le_u32 vcc, 32, v13")
    for q in range(4):
        A(f"v_add_u32 v18, {q*4096}, v17")
        A(f"v_add_u32 v19, {q*128}, v16")
        A(f"v_cndmask_b32 v{V_X1[q]}, v18, v19, vcc")
    A("v_and_b32 v13, 1, v11")
    A("v_lshrrev_b32 v14, 1, v11")
    A("v_lshl_add_u32 v13, v14, 4, v13")
    A("s_lshl_b32 s36, s34, 7")
    A("s_add_u32 s36, s36, s25")
    A("v_add_u32 v13, s36, v13")
    A("v_lshlrev_b32 v13, 10, v13")
    A("v_and_b32 v14, 1, v10")
    A("v_lshlrev_b32 v14, 5, v14")
    A("v_lshrrev_b32 v15, 1, v10")
    A("v_lshl_add_u32 v14, v15, 4, v14")
    A("s_lshl_b32 s36, s35, 5")
    A("s_add_u32 s36, s36, s26")
    A("s_lshl_b32 s36, s36, 1")
    A("v_add_u32 v13, s36, v13")
    A(f"v_add_u32 v{V_OUT}, v13, v14")
    if opt.full:
        A("v_and_b32 v13, 1, v10")
        A("v_lshlrev_b32 v13, 1, v13")
        A("v_lshrrev_b32 v14, 1, v10")
        A("v_or_b32 v13, v13, v14")
        A("s_lshl_b32 s43, s35, 2")
        A("v_add_u32 v13, s43, v13")
        A("v_and_b32 v14, 7, v11")
        A("v_xor_b32 v13, v13, v14")
        A("v_lshlrev_b32 v13, 4, v13")
        A("v_lshl_add_u32 v13, v11, 7, v13")
        A("s_lshl_b32 s43, s34, 14")
        A("v_add_u32 v28, s43, v13")
        A("v_lshrrev_b32 v13, 3, v0")
        A("v_and_b32 v14, 7, v0")
        A("v_xor_b32 v15, v13, v14")
        A("v_lshlrev_b32 v15, 4, v15")
        A("s_lshl_b32 s21, s35, 3")
        A("v_add_u32 v13, s21, v13")
        A("v_lshl_add_u32 v15, v13, 7, v15")
        A("v_add_u32 v29, s43, v15")
        A("v_and_b32 v15, 1, v13")
        A("v_lshrrev_b32 v16, 1, v13")
        A("v_lshl_add_u32 v15, v16, 4, v15")
        A("s_lshl_b32 s43, s34, 7")
        A("s_add_u32 s43, s43, s25")
        A("v_add_u32 v15, s43, v15")
        A("v_lshlrev_b32 v15, 10, v15")
        A("v_lshl_add_u32 v15, v14, 4, v15")
        A("s_lshl_b32 s43, s26, 1")
        A(f"v_add_u32 v{V_OUT}, s43, v15")
    for r in range(128):
        A(f"v_mov_b32 v{ACC0+r}, 0")
    A(f"s_mov_b32 s22, {XBATCH}")
    A("s_mov_b32 s23, 0x20000")
    A(f"s_mov_b32 s{S_K}, 0")
    A(f"s_mov_b32 s{S_WD}, {2*WUNIT}")
    A(f"s_mov_b32 s29, {-(XBUF+512)}")
    A("s_mov_b32 s36, 0x4038aa3b")
    A("s_mov_b32 s37, 0x4038aa3b")
    A("s_mov_b32 s38, 0xbfb8aa3b")
    A("s_mov_b32 s39, 0xbfb8aa3b")
    A("s_mov_b32 s42, 0x7fffffff")
    A("s_waitcnt lgkmcnt(0)")
    A("s_add_u32 s20, s8, s28")
    A("s_addc_u32 s21, s9, 0")
    if opt.touch:
        A(f"buffer_load_dword v9, v{V_OUT}, s[20:23], 0 offen")
    ds = DS(A)
    def wreads(phi_next):
        p = phi_next & 1; half = (phi_next >> 1) & 1; st = phi_next & 1
        out = []
        for tap in range(5):
            for h in range(2):
                r = WF(st, tap) + 2*h
                off = half*WUNIT + tap*4096 + h*512
                out.append((f"ds_read_b64_tr_b16 a[{r}:{r+1}], v{V_W[p]} offset:{off}", [('a', r), ('a', r+1)]))
        return out
    def xread(q):
        r = XF(q)
        regs = [('a', r+i) for i in range(4)]
        if q < 8:
            return (f"ds_read_b128 a[{r}:{r+3}], v{V_X0} offset:{q*4096}", regs)
        return (f"ds_read_b128 a[{r}:{r+3}], v{V_X1[q-8]} offset:0", regs)

    def mfma(a, wf, xf):
        ds.need([('a', wf+i) for i in range(4)] + [('a', xf+i) for i in range(4)])
        A(f"v_mfma_f32_16x16x32_bf16 v[{a}:{a+3}], {areg(wf)}, {areg(xf)}, v[{a}:{a+3}]")

    def phase(phi, wnext=True, xreload=False, barrier=False, extra=None):
        nb = phi & 3; st = phi & 1
        A(f"; ---- phase {phi}")
        if barrier:
            ds.drain()
            if not opt.nobar: A("s_barrier")
        post = {n: [] for n in range(40)}
        if wnext:
            for i, rd in enumerate(wreads(phi+1)): post[2*i].append(rd)
        if xreload:
            for q in range(8): post[5*q].append(xread(q))
            for q in range(8, 12): post[28+q].append(xread(q))
        for j in range(8):
            for tap in range(5):
                n = 5*j + tap
                mfma(acc(j, nb), WF(st, tap), XF(j+tap))
                for (t, regs) in post[n]:
                    if opt.nods: continue
                    ds.issue(t, regs)
                if extra and n in extra:
                    for t in extra[n]: A(t)

    groups = [int(g) for g in opt.groups.split(',')] if opt.groups else None
    NIT = 14 if groups else 16
    xupd = {3: [f"s_bitcmp1_b32 s{S_K}, 1",
                f"s_cselect_b32 s{S_T}, s29, {XBUF-512}"],
            5: [f"s_bitcmp1_b32 s{S_K}, 0",
                f"s_cselect_b32 s{S_XD}, s{S_T}, 512"],
            21: [f"v_add_u32 v{V_X0}, s{S_XD}, v{V_X0}"],
            23: [f"v_add_u32 v{V_X1[0]}, s{S_XD}, v{V_X1[0]}"],
            25: [f"v_add_u32 v{V_X1[1]}, s{S_XD}, v{V_X1[1]}"],
            27: [f"v_add_u32 v{V_X1[2]}, s{S_XD}, v{V_X1[2]}"],
            29: [f"v_add_u32 v{V_X1[3]}, s{S_XD}, v{V_X1[3]}"]}
    def body():
        phase(0)
        phase(1, barrier=True, extra=xupd)
        phase(2, extra={25: [f"v_add_u32 v{V_W[0]}, s{S_WD}, v{V_W[0]}"]})
        phase(3, barrier=True, xreload=True,
              extra={22: [f"v_add_u32 v{V_W[1]}, s{S_WD}, v{V_W[1]}"],
                     27: [f"s_sub_u32 s{S_WD}, 0, s{S_WD}"], 28: [f"s_add_u32 s{S_K}, s{S_K}, 1"],
                     33: [f"s_cmp_lt_u32 s{S_K}, {NIT if groups else 15}"]})
    saveL = list(A.L)
    ds.q = []; body(); Q1 = [set(x) for x in ds.q]
    body(); Q2 = [set(x) for x in ds.q]
    assert Q1 == Q2, (Q1, Q2)
    A.L = saveL
    A("s_barrier")
    if opt.stamp:
        A("s_memtime s[50:51]")
        A("s_memrealtime s[48:49]")
        A("s_waitcnt lgkmcnt(0)")
    if opt.spin:
        A("s_memrealtime s[66:67]")
        A("s_waitcnt lgkmcnt(0)")
    wr = wreads(0)
    order = []
    for tap in range(5):
        order.append(xread(tap)); order += wr[2*tap:2*tap+2]
    for q in range(5, 12): order.append(xread(q))
    tail = [o for o in order if set(o[1]) in Q1]
    head = [o for o in order if set(o[1]) not in Q1]
    tail.sort(key=lambda o: Q1.index(set(o[1])))
    assert len(tail) == len(Q1)
    ds.q = []
    for (t, regs) in head + tail: ds.issue(t, regs)
    ds.wait_n(len(Q1))
    ds.q = [set(x) for x in Q1]
    A(".p2align 6")
    A("L_cloop:")
    body()
    A("s_cbranch_scc1 L_cloop")
    assert ds.q == Q1

    TB = 10
    def epi_ops(j, PB):
        outs = []
        for p in range(2):
            for i in range(4):
                outs.append((acc(j, p) + i, acc(j, 2+p) + i, TB + 4*p + i))
        ops = []
        for (f, g, t) in outs: ops.append((4, f"v_mul_f32 v{t}, s36, v{f}"))
        for (f, g, t) in outs: ops.append((4, f"v_mul_f32 v{g}, s38, v{g}"))
        for (f, g, t) in outs: ops.append((8, f"v_exp_f32 v{t}, -|v{t}|"))
        for (f, g, t) in outs: ops.append((8, f"v_exp_f32 v{g}, v{g}"))
        for (f, g, t) in outs: ops.append((4, f"v_add_f32 v{g}, 1.0, v{g}"))
        for (f, g, t) in outs: ops.append((4, f"v_fmac_f32 v{g}, v{t}, v{g}"))
        for (f, g, t) in outs: ops.append((8, f"v_rcp_f32 v{g}, v{g}"))
        for (f, g, t) in outs: ops.append((4, f"v_fma_f32 v{t}, -v{t}, v{g}, v{g}"))
        for (f, g, t) in outs: ops.append((4, f"v_bfi_b32 v{t}, s42, v{t}, v{f}"))
        for k in range(4): ops.append((4, f"v_cvt_pk_bf16_f32 v{PB+k}, v{TB+2*k}, v{TB+2*k+1}"))
        fin = [(4, f"v_permlane16_swap_b32 v{PB}, v{PB+2}"), (4, f"v_permlane16_swap_b32 v{PB+1}, v{PB+3}")]
        if j >= 2: fin.append((4, f"s_mov_b32 s43, {4096*(j//2)}"))
        so = "0" if j < 2 else "s43"
        fin.append((4, f"buffer_store_dwordx4 v[{PB}:{PB+3}], v{V_OUT}, s[20:23], {so} offen offset:{2048*(j&1)}{opt.spol}"))
        return ops, fin

    tail_js = list(range(8))
    if not groups:
        phase(60); phase(61, barrier=True); phase(62); phase(63, wnext=False)
    else:
        assert sum(groups) == 8
        VW2 = [30, 31]
        A(f"v_add_u32 v{VW2[0]}, {2*WUNIT}, v{V_W[0]}")
        A(f"v_add_u32 v{VW2[1]}, {2*WUNIT}, v{V_W[1]}")
        subs = []
        j0 = 0
        for gi, gsz in enumerate(groups):
            js = list(range(j0, j0+gsz)); j0 += gsz
            for ks in range(2):
                for nb in range(4):
                    subs.append(dict(g=gi, js=js, ks=ks, nb=nb))
        mf = []
        for si, sb in enumerate(subs):
            sb['start'] = len(mf)
            for j in sb['js']:
                for tap in range(5):
                    mf.append(dict(sub=si, acc=acc(j, sb['nb']), tap=tap, xkey=(sb['g'], sb['ks'], j+tap)))
            sb['end'] = len(mf)
        NM = len(mf)
        post = {n: [] for n in range(NM)}
        for si in range(len(subs)-1):
            nx = subs[si+1]
            p = nx['nb'] & 1; half = nx['nb'] >> 1; st = (si+1) & 1
            vw = V_W[p] if nx['ks'] == 0 else VW2[p]
            L = subs[si]['end'] - subs[si]['start']
            k = 0
            for tap in range(5):
                for h in range(2):
                    r = WF(st, tap) + 2*h
                    off = half*WUNIT + tap*4096 + h*512
                    pos = subs[si]['start'] + (k * max(L-4, 10)) // 10
                    pos = min(pos, subs[si]['end']-1)
                    post[pos].append((f"ds_read_b64_tr_b16 a[{r}:{r+1}], v{vw} offset:{off}", [('a', r), ('a', r+1)]))
                    k += 1
        first = {}; last = {}
        for n, m in enumerate(mf):
            first.setdefault(m['xkey'], n); last[m['xkey']] = n
        slot_of = {}; slot_free = [-1]*12
        init = [k for k in first if k[0] == 0 and k[1] == 0]
        for k in init:
            slot_of[k] = k[2]; slot_free[k[2]] = last[k]
        rest = sorted([k for k in first if k not in slot_of], key=lambda k: first[k])
        for k in rest:
            sl = min(range(12), key=lambda i: slot_free[i])
            pos = slot_free[sl]
            pos = max(pos, first[k]-60, 0)
            assert first[k] - pos >= 14, (k, first[k], pos)
            slot_of[k] = sl; slot_free[sl] = last[k]
            g, ks, q = k
            r = XF(sl); regs = [('a', r+i) for i in range(4)]
            if q < 8: t = f"ds_read_b128 a[{r}:{r+3}], v{V_X0} offset:{q*4096 + ks*512}"
            else: t = f"ds_read_b128 a[{r}:{r+3}], v{V_X1[q-8]} offset:{ks*512}"
            post[pos].append((t, regs))
        bar_at = {}
        for si, sb in enumerate(subs):
            if sb['g'] == 0 and (sb['ks'], sb['nb']) in [(0, 2), (1, 0), (1, 2)]:
                bar_at[subs[si-1]['start']] = True
        fill = {n: [] for n in range(NM)}
        j0 = 0
        for gi, gsz in enumerate(groups[:-1]):
            js = list(range(j0, j0+gsz)); j0 += gsz
            ops = []
            pendfin = []
            for idx, j in enumerate(js):
                o, fin = epi_ops(j, 20 + 4*(j & 1))
                ops += o[:2] + pendfin + o[2:]
                pendfin = fin
            ops += [(4, "s_nop 1")] + pendfin
            g0 = min(sb['start'] for sb in subs if sb['g'] == gi+1) + 2
            g1 = max(sb['end'] for sb in subs if sb['g'] == gi+1)
            total = sum(c for c, _ in ops)
            used = {n: 4*len(post[n]) + (8 if n in bar_at else 0) for n in range(g0, g1)}
            free = sum(max(0, 8-used[n]) for n in range(g0, g1))
            extra = max(0, total - free)
            i = 0; carry = 0.0
            for n in range(g0, g1):
                budget = max(0, 8-used[n]) + extra/(g1-g0) + carry
                while i < len(ops) and ops[i][0] <= budget + 1e-9:
                    fill[n].append(ops[i][1]); budget -= ops[i][0]; i += 1
                carry = min(budget, 8)
            while i < len(ops):
                fill[g1-1].append(ops[i][1]); i += 1
            if opt.verbose: sys.stderr.write(f"group {gi}: valu {total} free {free} extra {extra}\n")
            for j in js: tail_js.remove(j)
        for n, m in enumerate(mf):
            if n in bar_at:
                ds.drain()
                if not opt.nobar: A("s_barrier")
            st = m['sub'] & 1
            mfma(m['acc'], WF(st, m['tap']), XF(slot_of[m['xkey']]))
            for (t, regs) in post[n]: ds.issue(t, regs)
            for t in fill[n]: A(t)
    if opt.stamp:
        ds.drain()
        A("s_memtime s[52:53]")
        A("s_memrealtime s[54:55]")
        A("s_waitcnt lgkmcnt(0)")
    if opt.spin:
        ds.drain()
        A("s_memrealtime s[68:69]")
        A("s_waitcnt lgkmcnt(0)")
    A("; ---- epilogue")
    A("s_nop 7")
    def epi_math(j, PB):
        pairs = []
        for p in range(2):
            for h in range(2):
                f = acc(j, p) + 2*h; g = acc(j, 2+p) + 2*h
                pairs.append((f, g, TB + 2*(2*p+h), PB + 2*p + h))
        for (f, g, t, o) in pairs: A(f"v_pk_mul_f32 v[{t}:{t+1}], v[{f}:{f+1}], s[36:37]")
        for (f, g, t, o) in pairs: A(f"v_pk_mul_f32 v[{g}:{g+1}], v[{g}:{g+1}], s[38:39]")
        for (f, g, t, o) in pairs:
            A(f"v_exp_f32 v{t}, -|v{t}|"); A(f"v_exp_f32 v{t+1}, -|v{t+1}|")
        for (f, g, t, o) in pairs:
            A(f"v_exp_f32 v{g}, v{g}"); A(f"v_exp_f32 v{g+1}, v{g+1}")
        for (f, g, t, o) in pairs: A(f"v_pk_add_f32 v[{g}:{g+1}], v[{g}:{g+1}], 1.0 op_sel_hi:[1,0]")
        for (f, g, t, o) in pairs: A(f"v_pk_fma_f32 v[{g}:{g+1}], v[{t}:{t+1}], v[{g}:{g+1}], v[{g}:{g+1}]")
        for (f, g, t, o) in pairs:
            A(f"v_rcp_f32 v{g}, v{g}"); A(f"v_rcp_f32 v{g+1}, v{g+1}")
        for (f, g, t, o) in pairs: A(f"v_pk_fma_f32 v[{t}:{t+1}], v[{t}:{t+1}], v[{g}:{g+1}], v[{g}:{g+1}] neg_lo:[1,0,0] neg_hi:[1,0,0]")
        for (f, g, t, o) in pairs:
            A(f"v_bfi_b32 v{t}, s42, v{t}, v{f}"); A(f"v_bfi_b32 v{t+1}, s42, v{t+1}, v{f+1}")
        for (f, g, t, o) in pairs: A(f"v_cvt_pk_bf16_f32 v{o}, v{t}, v{t+1}")
        A("s_nop 1")
        A(f"v_permlane16_swap_b32 v{PB}, v{PB+2}")
        A(f"v_permlane16_swap_b32 v{PB+1}, v{PB+3}")
    def gstore(j, PB):
        if j >= 2: A(f"s_mov_b32 s43, {4096*(j//2)}")
        so = "0" if j < 2 else "s43"
        A(f"buffer_store_dwordx4 v[{PB}:{PB+3}], v{V_OUT}, s[20:23], {so} offen offset:{2048*(j&1)}{opt.spol}")
    if not opt.full:
        for j in tail_js:
            PB = 20 + 4*(j & 1)
            epi_math(j, PB)
            gstore(j, PB)
    else:
        gs = opt.full
        pend = []
        for j0 in range(0, 8, gs):
            for j in range(j0, j0+gs):
                PB = 20 + 4*(j & 1)
                epi_math(j, PB)
                A(f"ds_write_b128 v28, v[{PB}:{PB+3}] offset:{j*2048}")
                if pend:
                    jj = pend.pop(0)
                    A("s_waitcnt lgkmcnt(1)")
                    gstore(jj, 32 + 4*(jj & 1))
                    if pend: A(f"ds_read_b128 v[{32+4*(pend[0]&1)}:{35+4*(pend[0]&1)}], v29 offset:{pend[0]*2048}")
            while pend:
                jj = pend.pop(0)
                A("s_waitcnt lgkmcnt(0)")
                gstore(jj, 32 + 4*(jj & 1))
                if pend: A(f"ds_read_b128 v[{32+4*(pend[0]&1)}:{35+4*(pend[0]&1)}], v29 offset:{pend[0]*2048}")
            A("s_waitcnt lgkmcnt(0)")
            A("s_barrier")
            pend = list(range(j0, j0+gs))
            A(f"ds_read_b128 v[{32+4*(pend[0]&1)}:{35+4*(pend[0]&1)}], v29 offset:{pend[0]*2048}")
        while pend:
            jj = pend.pop(0)
            if pend: A(f"ds_read_b128 v[{32+4*(pend[0]&1)}:{35+4*(pend[0]&1)}], v29 offset:{pend[0]*2048}")
            A("s_waitcnt lgkmcnt(%d)" % (1 if pend else 0))
            gstore(jj, 32 + 4*(jj & 1))
            A("s_nop 0")
    if opt.spin:
        A("s_waitcnt vmcnt(0)")
        A("s_memrealtime s[70:71]")
        A("s_waitcnt lgkmcnt(0)")
        which, mult = opt.spin.split(',')
        a, b = {'pro': (62, 66), 'main': (66, 68), 'epi': (68, 70), 'none': (70, 70)}[which]
        A(f"s_sub_u32 s43, s{b}, s{a}")
        A(f"s_mul_i32 s43, s43, {mult}")
        A("s_add_u32 s43, s43, s70")
        A("L_spin:")
        A("s_memrealtime s[60:61]")
        A("s_waitcnt lgkmcnt(0)")
        A("s_sub_u32 s42, s60, s43")
        A("s_cmp_lt_i32 s42, 0")
        A("s_cbranch_scc1 L_spin")
    if opt.stamp:
        A("s_waitcnt vmcnt(0)")
        A("s_memtime s[56:57]")
        A("s_memrealtime s[58:59]")
        A("s_waitcnt lgkmcnt(0)")
        if opt.dbgstamp:
            A("s_sub_u32 s60, s50, s44")
            A("s_sub_u32 s61, s48, s46")
            A("s_sub_u32 s62, s52, s50")
            A("s_sub_u32 s63, s54, s48")
            A("s_sub_u32 s64, s56, s52")
            A("s_sub_u32 s65, s56, s44")
            A("s_sub_u32 s66, s58, s46")
            A("s_mov_b32 s67, s46")
            A("s_cmp_lg_u32 s24, 0")
            A("s_cbranch_scc1 L_nostamp")
            A("s_mov_b32 s43, 0")
            A("s_cmp_eq_u32 s2, 0")
            A("s_cbranch_scc1 L_dostamp")
            A("s_mov_b32 s43, 32")
            A("s_cmp_eq_u32 s2, 133")
            A("s_cbranch_scc0 L_nostamp")
            A("L_dostamp:")
            A("s_mov_b32 s68, s40"); A("s_mov_b32 s69, s41"); A("s_mov_b32 s70, 256"); A("s_mov_b32 s71, 0x20000")
            A("v_mov_b32 v9, s43")
            A("s_mov_b64 exec, 1")
            for i in range(2):
                for k in range(4): A(f"v_mov_b32 v{12+k}, s{60+4*i+k}")
                A(f"buffer_store_dwordx4 v[12:15], v9, s[68:71], 0 offen offset:{16*i}")
                A("s_nop 1")
            A("L_nostamp:")
        else:
            A("s_mov_b32 s60, s40"); A("s_mov_b32 s61, s41"); A("s_mov_b32 s62, 0x10000000"); A("s_mov_b32 s63, 0x20000")
            A("s_lshl_b32 s43, s2, 2"); A("s_add_u32 s43, s43, s24"); A("s_lshl_b32 s43, s43, 6")
            A("v_mov_b32 v9, s43")
            A("s_mov_b64 exec, 1")
            for i in range(4):
                for k in range(4): A(f"v_mov_b32 v{12+k}, s{44+4*i+k}")
                A(f"buffer_store_dwordx4 v[12:15], v9, s[60:63], 0 offen offset:{16*i}")
                A("s_nop 1")
    A("s_endpgm")

    A('.section .rodata,"a"')
    A(".p2align 6")
    A(f".amdhsa_kernel {NAME}")
    A("  .amdhsa_next_free_vgpr 256")
    A("  .amdhsa_next_free_sgpr 96")
    A("  .amdhsa_accum_offset 168")
    A("  .amdhsa_group_segment_fixed_size 0")
    A("  .amdhsa_kernarg_size 40")
    A("  .amdhsa_user_sgpr_count 2")
    A("  .amdhsa_user_sgpr_kernarg_segment_ptr 1")
    A("  .amdhsa_system_sgpr_workgroup_id_x 1")
    A("  .amdhsa_float_denorm_mode_32 3")
    A(".end_amdhsa_kernel")
    if opt.meta:
        A(f""".amdgpu_metadata
---
amdhsa.version: [1, 2]
amdhsa.kernels:
  - .name: {NAME}
    .symbol: {NAME}.kd
    .kernarg_segment_size: 40
    .kernarg_segment_align: 8
    .group_segment_fixed_size: 0
    .private_segment_fixed_size: 0
    .wavefront_size: 64
    .sgpr_count: 96
    .vgpr_count: 256
    .max_flat_workgroup_size: 512
    .args:
      - {{.name: kernargs, .size: 40, .offset: 0, .value_kind: by_value}}
...
.end_amdgpu_metadata""")
    if opt.verbose: sys.stderr.write(f"loader waits: {Ns}\nloop: {Nl}\n")
    return A.text()

def parse(argv=None):
    ap = argparse.ArgumentParser()
    ap.add_argument("-o", default="/dev/stdout")
    for o in ["meta", "stamp", "dbgstamp", "nods", "nodma", "nodmaw", "nodmax", "nobar", "verbose", "lstamp", "touch"]:
        ap.add_argument("--"+o, action="store_true")
    ap.add_argument("--spin", default="")
    ap.add_argument("--sched", default="")
    ap.add_argument("--groups", default="")
    ap.add_argument("--full", type=int, default=0)
    ap.add_argument("--rot", default="")
    ap.add_argument("--order", default="xwx")
    ap.add_argument("--cprio", type=int, default=0)
    ap.add_argument("--lprio", type=int, default=0)
    ap.add_argument("--npre", type=int, default=3)
    ap.add_argument("--wpol", default="")
    ap.add_argument("--xpol", default="")
    ap.add_argument("--spol", default="nt")
    opt = ap.parse_args(argv)
    for k in ["wpol", "xpol", "spol"]:
        v = getattr(opt, k)
        if v: setattr(opt, k, " " + v)
    return opt

if __name__ == "__main__":
    opt = parse()
    open(opt.o, "w").write(gen(opt))
```

```python
import sys, argparse

NAME = "standalone__autoregressive_conv_wavernn__speech_kernel"
XBATCH = 4096000
WBYTES = 5242880
WUNIT = 20480
XBASE = 4 * WUNIT
XBUF = 33792
LDS_BYTES = XBASE + 2 * XBUF

class Asm:
    def __init__(self):
        self.L = []
    def __call__(self, s):
        self.L.append(s)
    def text(self):
        return "\n".join(self.L) + "\n"

class DS:
    def __init__(self, A):
        self.A = A
        self.q = []
    def issue(self, text, regs):
        if len(self.q) >= 14:
            self.wait_n(10)
        self.A(text)
        self.q.append(set(regs))
    def wait_n(self, n):
        if len(self.q) > n:
            self.A(f"s_waitcnt lgkmcnt({n})")
            self.q = self.q[len(self.q)-n:] if n > 0 else []
    def need(self, regs):
        regs = set(regs)
        last = -1
        for i, s in enumerate(self.q):
            if s & regs:
                last = i
        if last >= 0:
            self.wait_n(len(self.q) - 1 - last)
    def drain(self):
        self.A("s_waitcnt lgkmcnt(0)")
        self.q = []

ACC0 = 40
def acc(j, nb): return ACC0 + (j*4 + nb)*4
def areg(n): return f"a[{n}:{n+3}]"
def XF(q): return 4*q
def WF(st, tap): return 48 + st*20 + tap*4
V_W = [1, 2]
V_X0 = 3
V_X1 = [4, 5, 6, 7]
V_OUT = 8
S_K = 30; S_WD = 31; S_XD = 32; S_T = 33

def gen(opt):
    A = Asm()
    A("; Kernarg layout for this problem (40 bytes, ptrs only, base s[0:1]):")
    A(";   offset   0: d_in[0] x  shape=(2, 4000, 512) dtype=bfloat16")
    A(";   offset   8: d_in[1] w  shape=(5, 512, 1024) dtype=bfloat16")
    A(";   offset  16: d_out     shape=(2, 4000, 512) dtype=bfloat16")
    A("; waves 0-3 MFMA consumers, waves 4-7 LDS-DMA loaders.")
    A(f"; @launch grid=(256,1,1) block=(512,1,1) lds={LDS_BYTES}")
    A('.amdgcn_target "amdgcn-amd-amdhsa--gfx950"')
    A(".text")
    A(f".globl {NAME}")
    A(".p2align 8")
    A(f".type {NAME},@function")
    A(f"{NAME}:")
    A("s_cmp_ge_u32 s2, 256")
    A("s_cbranch_scc1 L_end")
    A("s_load_dwordx4 s[4:7], s[0:1], 0")
    A("s_load_dwordx2 s[8:9], s[0:1], 16")
    if opt.stamp:
        A("s_load_dwordx2 s[40:41], s[0:1], %d" % (24 if opt.dbgstamp else 32))
        A("s_memtime s[44:45]")
        A("s_memrealtime s[46:47]")
    if opt.spin:
        A("s_memrealtime s[62:63]")
    A("v_lshrrev_b32 v1, 6, v0")
    A("v_and_b32 v0, 63, v0")
    A("s_and_b32 s28, s2, 7")
    A("v_readfirstlane_b32 s24, v1")
    A("s_lshr_b32 s29, s2, 3")
    A("s_lshr_b32 s30, s28, 1")
    A("s_lshl_b32 s30, s30, 3")
    A("s_lshr_b32 s31, s29, 2")
    A("s_add_u32 s30, s30, s31")
    A("s_and_b32 s31, s28, 1")
    A("s_lshl_b32 s31, s31, 2")
    A("s_and_b32 s29, s29, 3")
    A("s_add_u32 s31, s31, s29")
    A("s_lshr_b32 s27, s30, 4")
    A("s_and_b32 s25, s30, 15")
    A("s_lshl_b32 s25, s25, 8")
    A("s_lshl_b32 s26, s31, 6")
    A(f"s_mul_i32 s28, s27, {XBATCH}")
    A("s_cmp_lt_u32 s24, 4")
    A("s_cbranch_scc1 L_compute")

    A("s_sub_u32 s34, s24, 4")
    if opt.lprio: A(f"s_setprio {opt.lprio}")
    A("v_lshrrev_b32 v10, 5, v0")
    A("v_bfe_u32 v11, v0, 2, 3")
    A("v_and_b32 v12, 3, v0")
    A("v_lshrrev_b32 v13, 2, v11")
    A("v_lshlrev_b32 v13, 1, v13")
    A("v_xor_b32 v13, v13, v12")
    A("v_lshlrev_b32 v14, 6, v10")
    A("v_lshl_add_u32 v15, v13, 4, v14")
    A("v_lshl_add_u32 v16, v12, 4, v14")
    A("v_and_b32 v13, 1, v11")
    A("v_lshrrev_b32 v17, 1, v11")
    A("v_lshl_add_u32 v13, v17, 4, v13")
    A("s_lshl_b32 s35, s34, 6")
    A("s_add_u32 s35, s35, s25")
    A("s_sub_u32 s35, s35, 8")
    A("v_add_u32 v13, s35, v13")
    A("v_lshlrev_b32 v17, 10, v13")
    A("v_add_u32 v17, v17, v15")
    A("v_add_u32 v3, 0x2000, v17")
    A("v_bfrev_b32 v18, 1")
    A("v_cmp_gt_i32 vcc, 0, v13")
    A("s_add_u32 s35, s25, 248")
    A("v_add_u32 v11, s35, v11")
    A("v_cndmask_b32 v2, v17, v18, vcc")
    A("v_lshlrev_b32 v11, 10, v11")
    A("v_add_u32 v4, v11, v16")
    A("v_lshrrev_b32 v10, 3, v0")
    A("v_and_b32 v11, 7, v0")
    A("v_lshrrev_b32 v12, 1, v11")
    A("v_bfe_u32 v13, v10, 1, 1")
    A("s_and_b32 s35, s34, 1")
    A("s_lshl_b32 s35, s35, 1")
    A("v_or_b32 v13, s35, v13")
    A("v_xor_b32 v12, v12, v13")
    A("v_lshlrev_b32 v12, 5, v12")
    A("v_and_b32 v11, 1, v11")
    A("v_lshl_add_u32 v12, v11, 4, v12")
    A("s_lshl_b32 s35, s34, 3")
    A("v_add_u32 v10, s35, v10")
    A("v_lshl_add_u32 v12, v10, 11, v12")
    A("s_lshl_b32 s35, s26, 1")
    A("v_add_u32 v1, s35, v12")
    A("s_lshl_b32 s35, s34, 4")
    A("s_mov_b64 s[36:37], 0xffff")
    A("s_lshl_b64 s[36:37], s[36:37], s35")
    A("s_lshl_b32 s38, s34, 10")
    A(f"s_mov_b32 s14, {XBATCH}")
    A("s_mov_b32 s15, 0x20000")
    A(f"s_mov_b32 s18, {WBYTES}")
    A("s_mov_b32 s19, 0x20000")
    if opt.rot:
        if opt.rot == 'xcd': A("s_and_b32 s66, s2, 7")
        elif opt.rot == 'xcd4': A("s_and_b32 s66, s2, 6")
        A("s_lshl_b32 s64, s66, 17")
        A("s_lshl_b32 s66, s66, 7")
    else:
        A("s_mov_b32 s64, 0")
        A("s_mov_b32 s66, 0")
    A("s_mov_b32 s65, s38")
    A(f"s_add_u32 s67, s38, {XBASE}")
    A(f"s_add_u32 s69, s38, {XBASE+XBUF}")
    A("s_xor_b32 s69, s69, s67")
    A("s_waitcnt lgkmcnt(0)")
    A("s_add_u32 s12, s4, s28")
    A("s_addc_u32 s13, s5, 0")
    A("s_mov_b32 s16, s6")
    A("s_mov_b32 s17, s7")

    vq = []
    def w_issue(u):
        if opt.nodmaw and u > 3: return
        for tap in range(5):
            if tap == 0:
                A("s_mov_b32 m0, s65")
                A("s_mov_b32 s68, s64")
            else:
                A("s_add_u32 m0, m0, 4096")
                A("s_add_u32 s68, s68, 0x100000")
            A(f"buffer_load_dwordx4 v1, s[16:19], s68 offen{opt.wpol} lds")
            vq.append(('W', u))
        if u & 1:
            A(f"s_add_u32 s64, s64, {65536-1024}")
            if opt.rot: A("s_and_b32 s64, s64, 0xfffff")
        else: A("s_add_u32 s64, s64, 1024")
        if (u & 3) == 3: A(f"s_sub_u32 s65, s65, {3*WUNIT}")
        else: A(f"s_add_u32 s65, s65, {WUNIT}")
    def x_issue(c, part, half=None):
        if opt.nodmax and c > 1: return
        qs = range(0, 4) if part == 0 else range(4, 8)
        tag = ('XH', c) if half == 'hi' else ('X', c)
        if half == 'lo': A("s_mov_b32 exec_hi, 0")
        if half == 'hi': A("s_mov_b32 exec_lo, 0")
        for q in qs:
            A(f"s_add_u32 m0, s67, {q*4096}")
            if q < 4:
                A(f"s_add_u32 s68, s66, {2*q*1024}")
                A(f"buffer_load_dwordx4 v2, s[12:15], s68 offen{opt.xpol} lds")
            else:
                A(f"s_add_u32 s68, s66, {(2*q-8)*1024}")
                A(f"buffer_load_dwordx4 v3, s[12:15], s68 offen{opt.xpol} lds")
            vq.append(tag)
        if half: A("s_mov_b64 exec, -1")
        if part == 1 and half != 'hi':
            A(f"s_sub_u32 m0, s67, s38")
            A(f"s_add_u32 m0, m0, 32768")
            A("s_mov_b64 exec, s[36:37]")
            A(f"buffer_load_dwordx4 v4, s[12:15], s66 offen{opt.xpol} lds")
            A("s_mov_b64 exec, -1")
            vq.append(tag)
        if part == 1 and half != 'lo':
            A("s_add_u32 s66, s66, 128")
            if opt.rot: A("s_and_b32 s66, s66, 0x3ff")
            A("s_xor_b32 s67, s67, s69")
    def need_n(u):
        need = [('W', u)]
        if u % 4 == 0: need.append(('X', u//4))
        if u == 2: need.append(('XH', 0))
        last = -1
        for i, t in enumerate(vq):
            if t in need: last = i
        return len(vq) - 1 - last if last >= 0 else None
    def wait_for(u, n=None):
        nn = need_n(u)
        if n is None: n = nn
        assert nn is None or n <= nn
        if n is not None and n <= len(vq):
            A(f"s_waitcnt vmcnt({n})")
            del vq[:len(vq)-n]
    sched = {}
    if opt.sched:
        for part in opt.sched.split(';'):
            k, v = part.split(':')
            sched[k] = v.split(',') if v else []
    U0 = 3 if not opt.sched else max(int(k) for k in sched if k != 'pre') + 1
    while U0 % 4 != 3: U0 += 1
    def do_item(it):
        if it[0] == 'w': w_issue(int(it[1:]))
        elif it == 'xl': x_issue(0, 0, 'lo'); x_issue(0, 1, 'lo')
        elif it == 'xla': x_issue(0, 0, 'lo')
        elif it == 'xlb': x_issue(0, 1, 'lo')
        elif it == 'xh': x_issue(0, 0, 'hi'); x_issue(0, 1, 'hi')
        elif it[0] == 'x': x_issue(int(it[1]), 0 if it[2] == 'a' else 1)
    def issues(u):
        if str(u) in sched: return sched[str(u)]
        r = []
        if u + 3 <= 31 and u + 3 >= opt.npre: r.append(f'w{u+3}')
        if u == 1: r.append('x1a')
        elif u == 2: r.append('x1b')
        elif u % 4 == 3 and u//4 + 2 <= 7: r.append(f'x{u//4+2}a')
        elif u % 4 == 0 and u >= 4 and u//4 + 1 <= 7: r.append(f'x{u//4+1}b')
        return r
    def interval(u, nfix=None):
        wait_for(u, nfix)
        if not (opt.nobar and u > 0): A("s_barrier")
        if opt.nodma: return
        for it in issues(u): do_item(it)
    def lst(i):
        if opt.lstamp: A(f"s_memtime s[{72+2*i}:{73+2*i}]")
    lst(0)
    pre = sched.get('pre', ['x0a', 'w0', 'x0b'] + [f'w{u}' for u in range(1, opt.npre)])
    for ii, it in enumerate(pre):
        do_item(it)
        if ii < 3: lst(1+ii)
    lst(4)
    if opt.lstamp:
        sv = list(vq)
        wait_for(0)
        lst(5)
        A("s_waitcnt lgkmcnt(0)")
        A("s_mov_b32 s84, s40"); A("s_mov_b32 s85, s41"); A("s_mov_b32 s86, 0x10000000"); A("s_mov_b32 s87, 0x20000")
        A("s_lshl_b32 s43, s2, 2"); A("s_add_u32 s43, s43, s34"); A("s_lshl_b32 s43, s43, 6")
        A("s_add_u32 s43, s43, 0x10000")
        A("v_mov_b32 v9, s43")
        A("s_mov_b64 exec, 1")
        regs = [44,45,46,47,72,73,74,75,76,77,78,79,80,81,82,83]
        for i in range(4):
            for k in range(4): A(f"v_mov_b32 v{20+k}, s{regs[4*i+k]}")
            A(f"buffer_store_dwordx4 v[20:23], v9, s[84:87], 0 offen offset:{16*i}")
            A("s_nop 1")
        A("s_mov_b64 exec, -1")
        A("s_waitcnt vmcnt(0)")
        vq[:] = sv
    saveL = list(A.L); savevq = list(vq)
    Ns = {}
    for u in range(32):
        Ns[u] = need_n(u)
        interval(u)
    A.L = saveL; vq[:] = savevq
    for u in range(0, U0): interval(u)
    Nl = {m: min([Ns[u] for u in range(U0, 27) if u % 4 == m and Ns[u] is not None] or [0]) for m in range(4)}
    A("s_mov_b32 s70, 0")
    A("L_lloop:")
    for u in range(U0, U0+4): interval(u, nfix=Nl[u % 4])
    A("s_add_u32 s70, s70, 1")
    A(f"s_cmp_lt_u32 s70, {(27-U0)//4}")
    A("s_cbranch_scc1 L_lloop")
    saveL = list(A.L)
    for u in range(U0+4, 27): interval(u, nfix=Nl[u % 4])
    A.L = saveL
    for u in range(27, 32): interval(u)
    A("L_end:")
    A("s_endpgm")

    A(".p2align 6")
    A("L_compute:")
    if opt.cprio: A(f"s_setprio {opt.cprio}")
    if opt.cpf:
        A("s_getpc_b64 s[60:61]")
        A("L_pc:")
        A("v_lshlrev_b32 v28, 7, v0")
        A("s_lshl_b32 s62, s24, 13")
        A("v_add_u32 v28, s62, v28")
        A("s_mov_b32 s62, L_codeend-L_pc-4")
        A("v_min_u32 v28, s62, v28")
        A("v_mov_b32 v29, s61")
        A("v_add_co_u32 v28, vcc, s60, v28")
        A("s_nop 1")
        A("v_addc_co_u32 v29, vcc, 0, v29, vcc")
        A("global_load_dword v9, v[28:29], off")
    A("s_lshr_b32 s34, s24, 1")
    A("s_and_b32 s35, s24, 1")
    A("v_lshrrev_b32 v10, 4, v0")
    A("v_and_b32 v11, 15, v0")
    A("v_lshrrev_b32 v12, 2, v11")
    A("v_lshl_add_u32 v12, v10, 3, v12")
    A("v_lshlrev_b32 v12, 7, v12")
    A("v_and_b32 v13, 3, v11")
    A("v_lshl_add_u32 v12, v13, 3, v12")
    A("v_lshrrev_b32 v13, 3, v11")
    A("v_and_b32 v14, 1, v10")
    A("v_lshl_or_b32 v13, v14, 1, v13")
    A("s_lshl_b32 s36, s35, 1")
    for p in range(2):
        A(f"s_add_u32 s37, s36, {p}")
        A("v_xor_b32 v14, s37, v13")
        A(f"v_lshl_add_u32 v{V_W[p]}, v14, 5, v12")
    A("s_lshl_b32 s36, s34, 4")
    def xaddr(dst, Rreg):
        A(f"v_lshrrev_b32 v15, 3, v{Rreg}")
        A(f"v_lshlrev_b32 v15, 10, v15")
        A(f"v_and_b32 v16, 7, v{Rreg}")
        A(f"v_lshl_add_u32 v15, v16, 6, v15")
        A(f"v_bfe_u32 v16, v{Rreg}, 2, 1")
        A(f"v_lshlrev_b32 v16, 1, v16")
        A(f"v_xor_b32 v16, v16, v10")
        A(f"v_lshl_add_u32 v15, v16, 4, v15")
        A(f"v_add_u32 v{dst}, {XBASE}, v15")
    A("v_add_u32 v13, s36, v11")
    xaddr(V_X0, 13)
    A("v_add_u32 v13, 2, v13")
    xaddr(17, 13)
    A("v_and_b32 v16, 1, v13")
    A("v_lshlrev_b32 v16, 6, v16")
    A("v_lshl_add_u32 v16, v10, 4, v16")
    A(f"v_add_u32 v16, {XBASE+32768}, v16")
    A("v_cmp_le_u32 vcc, 32, v13")
    for q in range(4):
        A(f"v_add_u32 v18, {q*4096}, v17")
        A(f"v_add_u32 v19, {q*128}, v16")
        A(f"v_cndmask_b32 v{V_X1[q]}, v18, v19, vcc")
    A("v_and_b32 v13, 1, v11")
    A("v_lshrrev_b32 v14, 1, v11")
    A("v_lshl_add_u32 v13, v14, 4, v13")
    A("s_lshl_b32 s36, s34, 7")
    A("s_add_u32 s36, s36, s25")
    A("v_add_u32 v13, s36, v13")
    A("v_lshlrev_b32 v13, 10, v13")
    A("v_and_b32 v14, 1, v10")
    A("v_lshlrev_b32 v14, 5, v14")
    A("v_lshrrev_b32 v15, 1, v10")
    A("v_lshl_add_u32 v14, v15, 4, v14")
    A("s_lshl_b32 s36, s35, 5")
    A("s_add_u32 s36, s36, s26")
    A("s_lshl_b32 s36, s36, 1")
    A("v_add_u32 v13, s36, v13")
    A(f"v_add_u32 v{V_OUT}, v13, v14")
    if opt.full:
        A("v_and_b32 v13, 1, v10")
        A("v_lshlrev_b32 v13, 1, v13")
        A("v_lshrrev_b32 v14, 1, v10")
        A("v_or_b32 v13, v13, v14")
        A("s_lshl_b32 s43, s35, 2")
        A("v_add_u32 v13, s43, v13")
        A("v_and_b32 v14, 7, v11")
        A("v_xor_b32 v13, v13, v14")
        A("v_lshlrev_b32 v13, 4, v13")
        A("v_lshl_add_u32 v13, v11, 7, v13")
        A("s_lshl_b32 s43, s34, 14")
        A("v_add_u32 v28, s43, v13")
        A("v_lshrrev_b32 v13, 3, v0")
        A("v_and_b32 v14, 7, v0")
        A("v_xor_b32 v15, v13, v14")
        A("v_lshlrev_b32 v15, 4, v15")
        A("s_lshl_b32 s21, s35, 3")
        A("v_add_u32 v13, s21, v13")
        A("v_lshl_add_u32 v15, v13, 7, v15")
        A("v_add_u32 v29, s43, v15")
        A("v_and_b32 v15, 1, v13")
        A("v_lshrrev_b32 v16, 1, v13")
        A("v_lshl_add_u32 v15, v16, 4, v15")
        A("s_lshl_b32 s43, s34, 7")
        A("s_add_u32 s43, s43, s25")
        A("v_add_u32 v15, s43, v15")
        A("v_lshlrev_b32 v15, 10, v15")
        A("v_lshl_add_u32 v15, v14, 4, v15")
        A("s_lshl_b32 s43, s26, 1")
        A(f"v_add_u32 v{V_OUT}, s43, v15")
    for r in range(128):
        A(f"v_mov_b32 v{ACC0+r}, 0")
    A(f"s_mov_b32 s22, {XBATCH}")
    A("s_mov_b32 s23, 0x20000")
    A(f"s_mov_b32 s{S_K}, 0")
    A(f"s_mov_b32 s{S_WD}, {2*WUNIT}")
    A(f"s_mov_b32 s29, {-(XBUF+512)}")
    A("s_mov_b32 s36, 0x4038aa3b")
    A("s_mov_b32 s37, 0x4038aa3b")
    A("s_mov_b32 s38, 0xbfb8aa3b")
    A("s_mov_b32 s39, 0xbfb8aa3b")
    A("s_mov_b32 s42, 0x7fffffff")
    A("s_waitcnt lgkmcnt(0)")
    A("s_add_u32 s20, s8, s28")
    A("s_addc_u32 s21, s9, 0")
    if opt.touch:
        A(f"buffer_load_dword v9, v{V_OUT}, s[20:23], 0 offen")
    ds = DS(A)
    def wreads(phi_next):
        p = phi_next & 1; half = (phi_next >> 1) & 1; st = phi_next & 1
        out = []
        for tap in range(5):
            for h in range(2):
                r = WF(st, tap) + 2*h
                off = half*WUNIT + tap*4096 + h*512
                out.append((f"ds_read_b64_tr_b16 a[{r}:{r+1}], v{V_W[p]} offset:{off}", [('a', r), ('a', r+1)]))
        return out
    def xread(q):
        r = XF(q)
        regs = [('a', r+i) for i in range(4)]
        if q < 8:
            return (f"ds_read_b128 a[{r}:{r+3}], v{V_X0} offset:{q*4096}", regs)
        return (f"ds_read_b128 a[{r}:{r+3}], v{V_X1[q-8]} offset:0", regs)

    def mfma(a, wf, xf):
        ds.need([('a', wf+i) for i in range(4)] + [('a', xf+i) for i in range(4)])
        A(f"v_mfma_f32_16x16x32_bf16 v[{a}:{a+3}], {areg(wf)}, {areg(xf)}, v[{a}:{a+3}]")

    def phase(phi, wnext=True, xreload=False, barrier=False, extra=None):
        nb = phi & 3; st = phi & 1
        A(f"; ---- phase {phi}")
        if barrier:
            if opt.kstamp:
                A("s_memtime s[60:61]")
            ds.drain()
            if opt.kstamp:
                A(f"s_lshl_b32 s62, s{S_K}, 1")
                A(f"s_add_u32 m0, s62, {(phi & 3) >> 1}")
                A("s_nop 0")
                A("v_writelane_b32 v9, s60, m0")
            if not opt.nobar: A("s_barrier")
            if opt.kstamp:
                A("s_memtime s[60:61]")
                A("s_waitcnt lgkmcnt(0)")
                A("s_add_u32 m0, m0, 32")
                A("s_nop 0")
                A("v_writelane_b32 v9, s60, m0")
        post = {n: [] for n in range(40)}
        if wnext:
            for i, rd in enumerate(wreads(phi+1)): post[2*i].append(rd)
        if xreload:
            for q in range(8): post[5*q].append(xread(q))
            for q in range(8, 12): post[28+q].append(xread(q))
        for j in range(8):
            for tap in range(5):
                n = 5*j + tap
                mfma(acc(j, nb), WF(st, tap), XF(j+tap))
                for (t, regs) in post[n]:
                    if opt.nods: continue
                    ds.issue(t, regs)
                if extra and n in extra:
                    for t in extra[n]: A(t)

    groups = [int(g) for g in opt.groups.split(',')] if opt.groups else None
    NIT = 14 if groups else 16
    xupd = {3: [f"s_bitcmp1_b32 s{S_K}, 1",
                f"s_cselect_b32 s{S_T}, s29, {XBUF-512}"],
            5: [f"s_bitcmp1_b32 s{S_K}, 0",
                f"s_cselect_b32 s{S_XD}, s{S_T}, 512"],
            21: [f"v_add_u32 v{V_X0}, s{S_XD}, v{V_X0}"],
            23: [f"v_add_u32 v{V_X1[0]}, s{S_XD}, v{V_X1[0]}"],
            25: [f"v_add_u32 v{V_X1[1]}, s{S_XD}, v{V_X1[1]}"],
            27: [f"v_add_u32 v{V_X1[2]}, s{S_XD}, v{V_X1[2]}"],
            29: [f"v_add_u32 v{V_X1[3]}, s{S_XD}, v{V_X1[3]}"]}
    def body():
        phase(0)
        phase(1, barrier=True, extra=xupd)
        phase(2, extra={25: [f"v_add_u32 v{V_W[0]}, s{S_WD}, v{V_W[0]}"]})
        phase(3, barrier=True, xreload=True,
              extra={22: [f"v_add_u32 v{V_W[1]}, s{S_WD}, v{V_W[1]}"],
                     27: [f"s_sub_u32 s{S_WD}, 0, s{S_WD}"], 28: [f"s_add_u32 s{S_K}, s{S_K}, 1"],
                     33: [f"s_cmp_lt_u32 s{S_K}, {NIT if groups else 15}"]})
    saveL = list(A.L)
    ds.q = []; body(); Q1 = [set(x) for x in ds.q]
    body(); Q2 = [set(x) for x in ds.q]
    assert Q1 == Q2, (Q1, Q2)
    A.L = saveL
    A("s_barrier")
    if opt.stamp:
        A("s_memtime s[50:51]")
        A("s_memrealtime s[48:49]")
        A("s_waitcnt lgkmcnt(0)")
    if opt.spin:
        A("s_memrealtime s[66:67]")
        A("s_waitcnt lgkmcnt(0)")
    wr = wreads(0)
    order = []
    for tap in range(5):
        order.append(xread(tap)); order += wr[2*tap:2*tap+2]
    for q in range(5, 12): order.append(xread(q))
    tail = [o for o in order if set(o[1]) in Q1]
    head = [o for o in order if set(o[1]) not in Q1]
    tail.sort(key=lambda o: Q1.index(set(o[1])))
    assert len(tail) == len(Q1)
    ds.q = []
    for (t, regs) in head + tail: ds.issue(t, regs)
    ds.wait_n(len(Q1))
    ds.q = [set(x) for x in Q1]
    A(".p2align 6")
    A("L_cloop:")
    body()
    A("s_cbranch_scc1 L_cloop")
    assert ds.q == Q1

    TB = 10
    def epi_ops(j, PB):
        outs = []
        for p in range(2):
            for i in range(4):
                outs.append((acc(j, p) + i, acc(j, 2+p) + i, TB + 4*p + i))
        ops = []
        for (f, g, t) in outs: ops.append((4, f"v_mul_f32 v{t}, s36, v{f}"))
        for (f, g, t) in outs: ops.append((4, f"v_mul_f32 v{g}, s38, v{g}"))
        for (f, g, t) in outs: ops.append((8, f"v_exp_f32 v{t}, -|v{t}|"))
        for (f, g, t) in outs: ops.append((8, f"v_exp_f32 v{g}, v{g}"))
        for (f, g, t) in outs: ops.append((4, f"v_add_f32 v{g}, 1.0, v{g}"))
        for (f, g, t) in outs: ops.append((4, f"v_fmac_f32 v{g}, v{t}, v{g}"))
        for (f, g, t) in outs: ops.append((8, f"v_rcp_f32 v{g}, v{g}"))
        for (f, g, t) in outs: ops.append((4, f"v_fma_f32 v{t}, -v{t}, v{g}, v{g}"))
        for (f, g, t) in outs: ops.append((4, f"v_bfi_b32 v{t}, s42, v{t}, v{f}"))
        for k in range(4): ops.append((4, f"v_cvt_pk_bf16_f32 v{PB+k}, v{TB+2*k}, v{TB+2*k+1}"))
        fin = [(4, f"v_permlane16_swap_b32 v{PB}, v{PB+2}"), (4, f"v_permlane16_swap_b32 v{PB+1}, v{PB+3}")]
        if j >= 2: fin.append((4, f"s_mov_b32 s43, {4096*(j//2)}"))
        so = "0" if j < 2 else "s43"
        fin.append((4, f"buffer_store_dwordx4 v[{PB}:{PB+3}], v{V_OUT}, s[20:23], {so} offen offset:{2048*(j&1)}{opt.spol}"))
        return ops, fin

    tail_js = list(range(8))
    if not groups:
        phase(60); phase(61, barrier=True); phase(62); phase(63, wnext=False)
    else:
        assert sum(groups) == 8
        VW2 = [30, 31]
        A(f"v_add_u32 v{VW2[0]}, {2*WUNIT}, v{V_W[0]}")
        A(f"v_add_u32 v{VW2[1]}, {2*WUNIT}, v{V_W[1]}")
        subs = []
        j0 = 0
        for gi, gsz in enumerate(groups):
            js = list(range(j0, j0+gsz)); j0 += gsz
            for ks in range(2):
                for nb in range(4):
                    subs.append(dict(g=gi, js=js, ks=ks, nb=nb))
        mf = []
        for si, sb in enumerate(subs):
            sb['start'] = len(mf)
            for j in sb['js']:
                for tap in range(5):
                    mf.append(dict(sub=si, acc=acc(j, sb['nb']), tap=tap, xkey=(sb['g'], sb['ks'], j+tap)))
            sb['end'] = len(mf)
        NM = len(mf)
        post = {n: [] for n in range(NM)}
        for si in range(len(subs)-1):
            nx = subs[si+1]
            p = nx['nb'] & 1; half = nx['nb'] >> 1; st = (si+1) & 1
            vw = V_W[p] if nx['ks'] == 0 else VW2[p]
            L = subs[si]['end'] - subs[si]['start']
            k = 0
            for tap in range(5):
                for h in range(2):
                    r = WF(st, tap) + 2*h
                    off = half*WUNIT + tap*4096 + h*512
                    pos = subs[si]['start'] + (k * max(L-4, 10)) // 10
                    pos = min(pos, subs[si]['end']-1)
                    post[pos].append((f"ds_read_b64_tr_b16 a[{r}:{r+1}], v{vw} offset:{off}", [('a', r), ('a', r+1)]))
                    k += 1
        first = {}; last = {}
        for n, m in enumerate(mf):
            first.setdefault(m['xkey'], n); last[m['xkey']] = n
        slot_of = {}; slot_free = [-1]*12
        init = [k for k in first if k[0] == 0 and k[1] == 0]
        for k in init:
            slot_of[k] = k[2]; slot_free[k[2]] = last[k]
        rest = sorted([k for k in first if k not in slot_of], key=lambda k: first[k])
        for k in rest:
            sl = min(range(12), key=lambda i: slot_free[i])
            pos = slot_free[sl]
            pos = max(pos, first[k]-60, 0)
            assert first[k] - pos >= 14, (k, first[k], pos)
            slot_of[k] = sl; slot_free[sl] = last[k]
            g, ks, q = k
            r = XF(sl); regs = [('a', r+i) for i in range(4)]
            if q < 8: t = f"ds_read_b128 a[{r}:{r+3}], v{V_X0} offset:{q*4096 + ks*512}"
            else: t = f"ds_read_b128 a[{r}:{r+3}], v{V_X1[q-8]} offset:{ks*512}"
            post[pos].append((t, regs))
        bar_at = {}
        for si, sb in enumerate(subs):
            if sb['g'] == 0 and (sb['ks'], sb['nb']) in [(0, 2), (1, 0), (1, 2)]:
                bar_at[subs[si-1]['start']] = True
        fill = {n: [] for n in range(NM)}
        j0 = 0
        for gi, gsz in enumerate(groups[:-1]):
            js = list(range(j0, j0+gsz)); j0 += gsz
            ops = []
            pendfin = []
            for idx, j in enumerate(js):
                o, fin = epi_ops(j, 20 + 4*(j & 1))
                ops += o[:2] + pendfin + o[2:]
                pendfin = fin
            ops += [(4, "s_nop 1")] + pendfin
            g0 = min(sb['start'] for sb in subs if sb['g'] == gi+1) + 2
            g1 = max(sb['end'] for sb in subs if sb['g'] == gi+1)
            total = sum(c for c, _ in ops)
            used = {n: 4*len(post[n]) + (8 if n in bar_at else 0) for n in range(g0, g1)}
            free = sum(max(0, 8-used[n]) for n in range(g0, g1))
            extra = max(0, total - free)
            i = 0; carry = 0.0
            for n in range(g0, g1):
                budget = max(0, 8-used[n]) + extra/(g1-g0) + carry
                while i < len(ops) and ops[i][0] <= budget + 1e-9:
                    fill[n].append(ops[i][1]); budget -= ops[i][0]; i += 1
                carry = min(budget, 8)
            while i < len(ops):
                fill[g1-1].append(ops[i][1]); i += 1
            if opt.verbose: sys.stderr.write(f"group {gi}: valu {total} free {free} extra {extra}\n")
            for j in js: tail_js.remove(j)
        for n, m in enumerate(mf):
            if n in bar_at:
                ds.drain()
                if not opt.nobar: A("s_barrier")
            st = m['sub'] & 1
            mfma(m['acc'], WF(st, m['tap']), XF(slot_of[m['xkey']]))
            for (t, regs) in post[n]: ds.issue(t, regs)
            for t in fill[n]: A(t)
    if opt.stamp:
        ds.drain()
        A("s_memtime s[52:53]")
        A("s_memrealtime s[54:55]")
        A("s_waitcnt lgkmcnt(0)")
    if opt.spin:
        ds.drain()
        A("s_memrealtime s[68:69]")
        A("s_waitcnt lgkmcnt(0)")
    A("; ---- epilogue")
    A("s_nop 7")
    def epi_math(j, PB):
        pairs = []
        for p in range(2):
            for h in range(2):
                f = acc(j, p) + 2*h; g = acc(j, 2+p) + 2*h
                pairs.append((f, g, TB + 2*(2*p+h), PB + 2*p + h))
        for (f, g, t, o) in pairs: A(f"v_pk_mul_f32 v[{t}:{t+1}], v[{f}:{f+1}], s[36:37]")
        for (f, g, t, o) in pairs: A(f"v_pk_mul_f32 v[{g}:{g+1}], v[{g}:{g+1}], s[38:39]")
        for (f, g, t, o) in pairs:
            A(f"v_exp_f32 v{t}, -|v{t}|"); A(f"v_exp_f32 v{t+1}, -|v{t+1}|")
        for (f, g, t, o) in pairs:
            A(f"v_exp_f32 v{g}, v{g}"); A(f"v_exp_f32 v{g+1}, v{g+1}")
        for (f, g, t, o) in pairs: A(f"v_pk_add_f32 v[{g}:{g+1}], v[{g}:{g+1}], 1.0 op_sel_hi:[1,0]")
        for (f, g, t, o) in pairs: A(f"v_pk_fma_f32 v[{g}:{g+1}], v[{t}:{t+1}], v[{g}:{g+1}], v[{g}:{g+1}]")
        for (f, g, t, o) in pairs:
            A(f"v_rcp_f32 v{g}, v{g}"); A(f"v_rcp_f32 v{g+1}, v{g+1}")
        for (f, g, t, o) in pairs: A(f"v_pk_fma_f32 v[{t}:{t+1}], v[{t}:{t+1}], v[{g}:{g+1}], v[{g}:{g+1}] neg_lo:[1,0,0] neg_hi:[1,0,0]")
        for (f, g, t, o) in pairs:
            A(f"v_bfi_b32 v{t}, s42, v{t}, v{f}"); A(f"v_bfi_b32 v{t+1}, s42, v{t+1}, v{f+1}")
        for (f, g, t, o) in pairs: A(f"v_cvt_pk_bf16_f32 v{o}, v{t}, v{t+1}")
        A("s_nop 1")
        A(f"v_permlane16_swap_b32 v{PB}, v{PB+2}")
        A(f"v_permlane16_swap_b32 v{PB+1}, v{PB+3}")
    def gstore(j, PB):
        if j >= 2: A(f"s_mov_b32 s43, {4096*(j//2)}")
        so = "0" if j < 2 else "s43"
        A(f"buffer_store_dwordx4 v[{PB}:{PB+3}], v{V_OUT}, s[20:23], {so} offen offset:{2048*(j&1)}{opt.spol}")
    if not opt.full:
        for j in tail_js:
            PB = 20 + 4*(j & 1)
            epi_math(j, PB)
            gstore(j, PB)
    else:
        gs = opt.full
        pend = []
        for j0 in range(0, 8, gs):
            for j in range(j0, j0+gs):
                PB = 20 + 4*(j & 1)
                epi_math(j, PB)
                A(f"ds_write_b128 v28, v[{PB}:{PB+3}] offset:{j*2048}")
                if pend:
                    jj = pend.pop(0)
                    A("s_waitcnt lgkmcnt(1)")
                    gstore(jj, 32 + 4*(jj & 1))
                    if pend: A(f"ds_read_b128 v[{32+4*(pend[0]&1)}:{35+4*(pend[0]&1)}], v29 offset:{pend[0]*2048}")
            while pend:
                jj = pend.pop(0)
                A("s_waitcnt lgkmcnt(0)")
                gstore(jj, 32 + 4*(jj & 1))
                if pend: A(f"ds_read_b128 v[{32+4*(pend[0]&1)}:{35+4*(pend[0]&1)}], v29 offset:{pend[0]*2048}")
            A("s_waitcnt lgkmcnt(0)")
            A("s_barrier")
            pend = list(range(j0, j0+gs))
            A(f"ds_read_b128 v[{32+4*(pend[0]&1)}:{35+4*(pend[0]&1)}], v29 offset:{pend[0]*2048}")
        while pend:
            jj = pend.pop(0)
            if pend: A(f"ds_read_b128 v[{32+4*(pend[0]&1)}:{35+4*(pend[0]&1)}], v29 offset:{pend[0]*2048}")
            A("s_waitcnt lgkmcnt(%d)" % (1 if pend else 0))
            gstore(jj, 32 + 4*(jj & 1))
            A("s_nop 0")
    if opt.spin:
        A("s_waitcnt vmcnt(0)")
        A("s_memrealtime s[70:71]")
        A("s_waitcnt lgkmcnt(0)")
        which, mult = opt.spin.split(',')
        a, b = {'pro': (62, 66), 'main': (66, 68), 'epi': (68, 70), 'none': (70, 70)}[which]
        A(f"s_sub_u32 s43, s{b}, s{a}")
        A(f"s_mul_i32 s43, s43, {mult}")
        A("s_add_u32 s43, s43, s70")
        A("L_spin:")
        A("s_memrealtime s[60:61]")
        A("s_waitcnt lgkmcnt(0)")
        A("s_sub_u32 s42, s60, s43")
        A("s_cmp_lt_i32 s42, 0")
        A("s_cbranch_scc1 L_spin")
    if opt.stamp:
        A("s_waitcnt vmcnt(0)")
        A("s_memtime s[56:57]")
        A("s_memrealtime s[58:59]")
        A("s_waitcnt lgkmcnt(0)")
        if opt.dbgstamp:
            A("s_sub_u32 s60, s50, s44")
            A("s_sub_u32 s61, s48, s46")
            A("s_sub_u32 s62, s52, s50")
            A("s_sub_u32 s63, s54, s48")
            A("s_sub_u32 s64, s56, s52")
            A("s_sub_u32 s65, s56, s44")
            A("s_sub_u32 s66, s58, s46")
            A("s_mov_b32 s67, s46")
            A("s_cmp_lg_u32 s24, 0")
            A("s_cbranch_scc1 L_nostamp")
            A("s_mov_b32 s43, 0")
            A("s_cmp_eq_u32 s2, 0")
            A("s_cbranch_scc1 L_dostamp")
            A("s_mov_b32 s43, 32")
            A("s_cmp_eq_u32 s2, 133")
            A("s_cbranch_scc0 L_nostamp")
            A("L_dostamp:")
            A("s_mov_b32 s68, s40"); A("s_mov_b32 s69, s41"); A("s_mov_b32 s70, 256"); A("s_mov_b32 s71, 0x20000")
            A("v_mov_b32 v9, s43")
            A("s_mov_b64 exec, 1")
            for i in range(2):
                for k in range(4): A(f"v_mov_b32 v{12+k}, s{60+4*i+k}")
                A(f"buffer_store_dwordx4 v[12:15], v9, s[68:71], 0 offen offset:{16*i}")
                A("s_nop 1")
            A("L_nostamp:")
        else:
            A("s_mov_b32 s60, s40"); A("s_mov_b32 s61, s41"); A("s_mov_b32 s62, 0x10000000"); A("s_mov_b32 s63, 0x20000")
            if opt.kstamp:
                A("s_lshl_b32 s43, s2, 2"); A("s_add_u32 s43, s43, s24"); A("s_lshl_b32 s43, s43, 8")
                A("s_add_u32 s43, s43, 0x20000")
                A("v_lshlrev_b32 v12, 2, v0")
                A("v_add_u32 v12, s43, v12")
                A("buffer_store_dword v9, v12, s[60:63], 0 offen")
                A("s_nop 1")
            A("s_lshl_b32 s43, s2, 2"); A("s_add_u32 s43, s43, s24"); A("s_lshl_b32 s43, s43, 6")
            A("v_mov_b32 v9, s43")
            A("s_mov_b64 exec, 1")
            for i in range(4):
                for k in range(4): A(f"v_mov_b32 v{12+k}, s{44+4*i+k}")
                A(f"buffer_store_dwordx4 v[12:15], v9, s[60:63], 0 offen offset:{16*i}")
                A("s_nop 1")
    A("s_endpgm")
    A("L_codeend:")

    A('.section .rodata,"a"')
    A(".p2align 6")
    A(f".amdhsa_kernel {NAME}")
    A("  .amdhsa_next_free_vgpr 256")
    A("  .amdhsa_next_free_sgpr 96")
    A("  .amdhsa_accum_offset 168")
    A("  .amdhsa_group_segment_fixed_size 0")
    A("  .amdhsa_kernarg_size 40")
    A("  .amdhsa_user_sgpr_count 2")
    A("  .amdhsa_user_sgpr_kernarg_segment_ptr 1")
    A("  .amdhsa_system_sgpr_workgroup_id_x 1")
    A("  .amdhsa_float_denorm_mode_32 3")
    A(".end_amdhsa_kernel")
    if opt.meta:
        A(f""".amdgpu_metadata
---
amdhsa.version: [1, 2]
amdhsa.kernels:
  - .name: {NAME}
    .symbol: {NAME}.kd
    .kernarg_segment_size: 40
    .kernarg_segment_align: 8
    .group_segment_fixed_size: 0
    .private_segment_fixed_size: 0
    .wavefront_size: 64
    .sgpr_count: 96
    .vgpr_count: 256
    .max_flat_workgroup_size: 512
    .args:
      - {{.name: kernargs, .size: 40, .offset: 0, .value_kind: by_value}}
...
.end_amdgpu_metadata""")
    if opt.verbose: sys.stderr.write(f"loader waits: {Ns}\nloop: {Nl}\n")
    return A.text()

def parse(argv=None):
    ap = argparse.ArgumentParser()
    ap.add_argument("-o", default="/dev/stdout")
    for o in ["meta", "stamp", "dbgstamp", "nods", "nodma", "nodmaw", "nodmax", "nobar", "verbose", "lstamp", "touch", "cpf", "kstamp"]:
        ap.add_argument("--"+o, action="store_true")
    ap.add_argument("--spin", default="")
    ap.add_argument("--sched", default="")
    ap.add_argument("--groups", default="")
    ap.add_argument("--full", type=int, default=0)
    ap.add_argument("--rot", default="")
    ap.add_argument("--order", default="xwx")
    ap.add_argument("--cprio", type=int, default=0)
    ap.add_argument("--lprio", type=int, default=0)
    ap.add_argument("--npre", type=int, default=3)
    ap.add_argument("--wpol", default="")
    ap.add_argument("--xpol", default="")
    ap.add_argument("--spol", default="nt")
    opt = ap.parse_args(argv)
    for k in ["wpol", "xpol", "spol"]:
        v = getattr(opt, k)
        if v: setattr(opt, k, " " + v)
    return opt

if __name__ == "__main__":
    opt = parse()
    open(opt.o, "w").write(gen(opt))
```

```python
import sys, argparse

NAME = "standalone__autoregressive_conv_wavernn__speech_kernel"
XBATCH = 4096000
WBYTES = 5242880
WUNIT = 20480
XBASE = 4 * WUNIT
XBUF = 33792
LDS_BYTES = XBASE + 2 * XBUF

class Asm:
    def __init__(self):
        self.L = []
    def __call__(self, s):
        self.L.append(s)
    def text(self):
        return "\n".join(self.L) + "\n"

class DS:
    def __init__(self, A):
        self.A = A
        self.q = []
    def issue(self, text, regs):
        if len(self.q) >= 14:
            self.wait_n(10)
        self.A(text)
        self.q.append(set(regs))
    def wait_n(self, n):
        if len(self.q) > n:
            self.A(f"s_waitcnt lgkmcnt({n})")
            self.q = self.q[len(self.q)-n:] if n > 0 else []
    def need(self, regs):
        regs = set(regs)
        last = -1
        for i, s in enumerate(self.q):
            if s & regs:
                last = i
        if last >= 0:
            self.wait_n(len(self.q) - 1 - last)
    def drain(self):
        self.A("s_waitcnt lgkmcnt(0)")
        self.q = []

ACC0 = 40
def acc(j, nb): return ACC0 + (j*4 + nb)*4
def areg(n): return f"a[{n}:{n+3}]"
def XF(q): return 4*q
def WF(st, tap): return 48 + st*20 + tap*4
V_W = [1, 2]
V_X0 = 3
V_X1 = [4, 5, 6, 7]
V_OUT = 8
S_K = 30; S_WD = 31; S_XD = 32; S_T = 33

def gen(opt):
    A = Asm()
    A("; Kernarg layout for this problem (40 bytes, ptrs only, base s[0:1]):")
    A(";   offset   0: d_in[0] x  shape=(2, 4000, 512) dtype=bfloat16")
    A(";   offset   8: d_in[1] w  shape=(5, 512, 1024) dtype=bfloat16")
    A(";   offset  16: d_out     shape=(2, 4000, 512) dtype=bfloat16")
    A("; waves 0-3 MFMA consumers, waves 4-7 LDS-DMA loaders.")
    A(f"; @launch grid=(256,1,1) block=(512,1,1) lds={LDS_BYTES}")
    A('.amdgcn_target "amdgcn-amd-amdhsa--gfx950"')
    A(".text")
    A(f".globl {NAME}")
    A(".p2align 8")
    A(f".type {NAME},@function")
    A(f"{NAME}:")
    A("s_cmp_ge_u32 s2, 256")
    A("s_cbranch_scc1 L_end")
    A("s_load_dwordx4 s[4:7], s[0:1], 0")
    A("s_load_dwordx2 s[8:9], s[0:1], 16")
    if opt.stamp:
        A("s_load_dwordx2 s[40:41], s[0:1], %d" % (24 if opt.dbgstamp else 32))
        A("s_memtime s[44:45]")
        A("s_memrealtime s[46:47]")
    if opt.spin:
        A("s_memrealtime s[62:63]")
    A("v_lshrrev_b32 v1, 6, v0")
    A("v_and_b32 v0, 63, v0")
    A("s_and_b32 s28, s2, 7")
    A("v_readfirstlane_b32 s24, v1")
    A("s_lshr_b32 s29, s2, 3")
    A("s_lshr_b32 s30, s28, 1")
    A("s_lshl_b32 s30, s30, 3")
    A("s_lshr_b32 s31, s29, 2")
    A("s_add_u32 s30, s30, s31")
    A("s_and_b32 s31, s28, 1")
    A("s_lshl_b32 s31, s31, 2")
    A("s_and_b32 s29, s29, 3")
    A("s_add_u32 s31, s31, s29")
    A("s_lshr_b32 s27, s30, 4")
    A("s_and_b32 s25, s30, 15")
    A("s_lshl_b32 s25, s25, 8")
    A("s_lshl_b32 s26, s31, 6")
    A(f"s_mul_i32 s28, s27, {XBATCH}")
    A("s_cmp_lt_u32 s24, 4")
    A("s_cbranch_scc1 L_compute")

    A("s_sub_u32 s34, s24, 4")
    if opt.lprio: A(f"s_setprio {opt.lprio}")
    A("v_lshrrev_b32 v10, 5, v0")
    A("v_bfe_u32 v11, v0, 2, 3")
    A("v_and_b32 v12, 3, v0")
    A("v_lshrrev_b32 v13, 2, v11")
    A("v_lshlrev_b32 v13, 1, v13")
    A("v_xor_b32 v13, v13, v12")
    A("v_lshlrev_b32 v14, 6, v10")
    A("v_lshl_add_u32 v15, v13, 4, v14")
    A("v_lshl_add_u32 v16, v12, 4, v14")
    A("v_and_b32 v13, 1, v11")
    A("v_lshrrev_b32 v17, 1, v11")
    A("v_lshl_add_u32 v13, v17, 4, v13")
    A("s_lshl_b32 s35, s34, 6")
    A("s_add_u32 s35, s35, s25")
    A("s_sub_u32 s35, s35, 8")
    A("v_add_u32 v13, s35, v13")
    A("v_lshlrev_b32 v17, 10, v13")
    A("v_add_u32 v17, v17, v15")
    A("v_add_u32 v3, 0x2000, v17")
    A("v_bfrev_b32 v18, 1")
    A("v_cmp_gt_i32 vcc, 0, v13")
    A("s_add_u32 s35, s25, 248")
    A("v_add_u32 v11, s35, v11")
    A("v_cndmask_b32 v2, v17, v18, vcc")
    A("v_lshlrev_b32 v11, 10, v11")
    A("v_add_u32 v4, v11, v16")
    A("v_lshrrev_b32 v10, 3, v0")
    A("v_and_b32 v11, 7, v0")
    A("v_lshrrev_b32 v12, 1, v11")
    A("v_bfe_u32 v13, v10, 1, 1")
    A("s_and_b32 s35, s34, 1")
    A("s_lshl_b32 s35, s35, 1")
    A("v_or_b32 v13, s35, v13")
    A("v_xor_b32 v12, v12, v13")
    A("v_lshlrev_b32 v12, 5, v12")
    A("v_and_b32 v11, 1, v11")
    A("v_lshl_add_u32 v12, v11, 4, v12")
    A("s_lshl_b32 s35, s34, 3")
    A("v_add_u32 v10, s35, v10")
    A("v_lshl_add_u32 v12, v10, 11, v12")
    A("s_lshl_b32 s35, s26, 1")
    A("v_add_u32 v1, s35, v12")
    A("s_lshl_b32 s35, s34, 4")
    A("s_mov_b64 s[36:37], 0xffff")
    A("s_lshl_b64 s[36:37], s[36:37], s35")
    A("s_lshl_b32 s38, s34, 10")
    A(f"s_mov_b32 s14, {XBATCH}")
    A("s_mov_b32 s15, 0x20000")
    A(f"s_mov_b32 s18, {WBYTES}")
    A("s_mov_b32 s19, 0x20000")
    if opt.rot:
        if opt.rot == 'xcd': A("s_and_b32 s66, s2, 7")
        elif opt.rot == 'xcd4': A("s_and_b32 s66, s2, 6")
        A("s_lshl_b32 s64, s66, 17")
        A("s_lshl_b32 s66, s66, 7")
    else:
        A("s_mov_b32 s64, 0")
        A("s_mov_b32 s66, 0")
    A("s_mov_b32 s65, s38")
    A(f"s_add_u32 s67, s38, {XBASE}")
    A(f"s_add_u32 s69, s38, {XBASE+XBUF}")
    A("s_xor_b32 s69, s69, s67")
    A("s_waitcnt lgkmcnt(0)")
    A("s_add_u32 s12, s4, s28")
    A("s_addc_u32 s13, s5, 0")
    A("s_mov_b32 s16, s6")
    A("s_mov_b32 s17, s7")

    vq = []
    def w_issue(u):
        if opt.nodmaw and u > 3: return
        for tap in range(5):
            if tap == 0:
                A("s_mov_b32 m0, s65")
                A("s_mov_b32 s68, s64")
            else:
                A("s_add_u32 m0, m0, 4096")
                A("s_add_u32 s68, s68, 0x100000")
            A(f"buffer_load_dwordx4 v1, s[16:19], s68 offen{opt.wpol} lds")
            vq.append(('W', u))
        if u & 1:
            A(f"s_add_u32 s64, s64, {65536-1024}")
            if opt.rot: A("s_and_b32 s64, s64, 0xfffff")
        else: A("s_add_u32 s64, s64, 1024")
        if (u & 3) == 3: A(f"s_sub_u32 s65, s65, {3*WUNIT}")
        else: A(f"s_add_u32 s65, s65, {WUNIT}")
    def x_issue(c, part, half=None):
        if opt.nodmax and c > 1: return
        qs = range(0, 4) if part == 0 else range(4, 8)
        tag = ('XH', c) if half == 'hi' else ('X', c)
        if half == 'lo': A("s_mov_b32 exec_hi, 0")
        if half == 'hi': A("s_mov_b32 exec_lo, 0")
        for q in qs:
            A(f"s_add_u32 m0, s67, {q*4096}")
            if q < 4:
                A(f"s_add_u32 s68, s66, {2*q*1024}")
                A(f"buffer_load_dwordx4 v2, s[12:15], s68 offen{opt.xpol} lds")
            else:
                A(f"s_add_u32 s68, s66, {(2*q-8)*1024}")
                A(f"buffer_load_dwordx4 v3, s[12:15], s68 offen{opt.xpol} lds")
            vq.append(tag)
        if half: A("s_mov_b64 exec, -1")
        if part == 1 and half != 'hi':
            A(f"s_sub_u32 m0, s67, s38")
            A(f"s_add_u32 m0, m0, 32768")
            A("s_mov_b64 exec, s[36:37]")
            A(f"buffer_load_dwordx4 v4, s[12:15], s66 offen{opt.xpol} lds")
            A("s_mov_b64 exec, -1")
            vq.append(tag)
        if part == 1 and half != 'lo':
            A("s_add_u32 s66, s66, 128")
            if opt.rot: A("s_and_b32 s66, s66, 0x3ff")
            A("s_xor_b32 s67, s67, s69")
    def need_n(u):
        need = [('W', u)]
        if u % 4 == 0: need.append(('X', u//4))
        if u == 2: need.append(('XH', 0))
        last = -1
        for i, t in enumerate(vq):
            if t in need: last = i
        return len(vq) - 1 - last if last >= 0 else None
    def wait_for(u, n=None):
        nn = need_n(u)
        if n is None: n = nn
        assert nn is None or n <= nn
        if n is not None and n <= len(vq):
            A(f"s_waitcnt vmcnt({n})")
            del vq[:len(vq)-n]
    sched = {}
    if opt.sched:
        for part in opt.sched.split(';'):
            k, v = part.split(':')
            sched[k] = v.split(',') if v else []
    U0 = 3 if not opt.sched else max(int(k) for k in sched if k != 'pre') + 1
    while U0 % 4 != 3: U0 += 1
    def do_item(it):
        if it[0] == 'w': w_issue(int(it[1:]))
        elif it == 'xl': x_issue(0, 0, 'lo'); x_issue(0, 1, 'lo')
        elif it == 'xla': x_issue(0, 0, 'lo')
        elif it == 'xlb': x_issue(0, 1, 'lo')
        elif it == 'xh': x_issue(0, 0, 'hi'); x_issue(0, 1, 'hi')
        elif it[0] == 'x': x_issue(int(it[1]), 0 if it[2] == 'a' else 1)
    def issues(u):
        if str(u) in sched: return sched[str(u)]
        r = []
        if u + 3 <= 31 and u + 3 >= opt.npre: r.append(f'w{u+3}')
        if u == 1: r.append('x1a')
        elif u == 2: r.append('x1b')
        elif u % 4 == 3 and u//4 + 2 <= 7: r.append(f'x{u//4+2}a')
        elif u % 4 == 0 and u >= 4 and u//4 + 1 <= 7: r.append(f'x{u//4+1}b')
        return r
    def interval(u, nfix=None):
        wait_for(u, nfix)
        if not (opt.nobar and u > 0): A("s_barrier")
        if opt.nodma: return
        for it in issues(u): do_item(it)
    def lst(i):
        if opt.lstamp: A(f"s_memtime s[{72+2*i}:{73+2*i}]")
    lst(0)
    pre = sched.get('pre', ['x0a', 'w0', 'x0b'] + [f'w{u}' for u in range(1, opt.npre)])
    for ii, it in enumerate(pre):
        do_item(it)
        if ii < 3: lst(1+ii)
    lst(4)
    if opt.lstamp:
        sv = list(vq)
        wait_for(0)
        lst(5)
        A("s_waitcnt lgkmcnt(0)")
        A("s_mov_b32 s84, s40"); A("s_mov_b32 s85, s41"); A("s_mov_b32 s86, 0x10000000"); A("s_mov_b32 s87, 0x20000")
        A("s_lshl_b32 s43, s2, 2"); A("s_add_u32 s43, s43, s34"); A("s_lshl_b32 s43, s43, 6")
        A("s_add_u32 s43, s43, 0x10000")
        A("v_mov_b32 v9, s43")
        A("s_mov_b64 exec, 1")
        regs = [44,45,46,47,72,73,74,75,76,77,78,79,80,81,82,83]
        for i in range(4):
            for k in range(4): A(f"v_mov_b32 v{20+k}, s{regs[4*i+k]}")
            A(f"buffer_store_dwordx4 v[20:23], v9, s[84:87], 0 offen offset:{16*i}")
            A("s_nop 1")
        A("s_mov_b64 exec, -1")
        A("s_waitcnt vmcnt(0)")
        vq[:] = sv
    saveL = list(A.L); savevq = list(vq)
    Ns = {}
    for u in range(32):
        Ns[u] = need_n(u)
        interval(u)
    A.L = saveL; vq[:] = savevq
    for u in range(0, U0): interval(u)
    Nl = {m: min([Ns[u] for u in range(U0, 27) if u % 4 == m and Ns[u] is not None] or [0]) for m in range(4)}
    A("s_mov_b32 s70, 0")
    A("L_lloop:")
    for u in range(U0, U0+4): interval(u, nfix=Nl[u % 4])
    A("s_add_u32 s70, s70, 1")
    A(f"s_cmp_lt_u32 s70, {(27-U0)//4}")
    A("s_cbranch_scc1 L_lloop")
    saveL = list(A.L)
    for u in range(U0+4, 27): interval(u, nfix=Nl[u % 4])
    A.L = saveL
    for u in range(27, 32): interval(u)
    A("L_end:")
    A("s_endpgm")

    A(".p2align 6")
    A("L_compute:")
    if opt.cprio: A(f"s_setprio {opt.cprio}")
    if opt.cpf:
        A("s_getpc_b64 s[60:61]")
        A("L_pc:")
        A("v_lshlrev_b32 v28, 7, v0")
        A("s_lshl_b32 s62, s24, 13")
        A("v_add_u32 v28, s62, v28")
        A("s_mov_b32 s62, L_codeend-L_pc-4")
        A("v_min_u32 v28, s62, v28")
        A("v_mov_b32 v29, s61")
        A("v_add_co_u32 v28, vcc, s60, v28")
        A("s_nop 1")
        A("v_addc_co_u32 v29, vcc, 0, v29, vcc")
        A("global_load_dword v9, v[28:29], off")
    A("s_lshr_b32 s34, s24, 1")
    A("s_and_b32 s35, s24, 1")
    A("v_lshrrev_b32 v10, 4, v0")
    A("v_and_b32 v11, 15, v0")
    A("v_lshrrev_b32 v12, 2, v11")
    A("v_lshl_add_u32 v12, v10, 3, v12")
    A("v_lshlrev_b32 v12, 7, v12")
    A("v_and_b32 v13, 3, v11")
    A("v_lshl_add_u32 v12, v13, 3, v12")
    A("v_lshrrev_b32 v13, 3, v11")
    A("v_and_b32 v14, 1, v10")
    A("v_lshl_or_b32 v13, v14, 1, v13")
    A("s_lshl_b32 s36, s35, 1")
    for p in range(2):
        A(f"s_add_u32 s37, s36, {p}")
        A("v_xor_b32 v14, s37, v13")
        A(f"v_lshl_add_u32 v{V_W[p]}, v14, 5, v12")
    A("s_lshl_b32 s36, s34, 4")
    def xaddr(dst, Rreg):
        A(f"v_lshrrev_b32 v15, 3, v{Rreg}")
        A(f"v_lshlrev_b32 v15, 10, v15")
        A(f"v_and_b32 v16, 7, v{Rreg}")
        A(f"v_lshl_add_u32 v15, v16, 6, v15")
        A(f"v_bfe_u32 v16, v{Rreg}, 2, 1")
        A(f"v_lshlrev_b32 v16, 1, v16")
        A(f"v_xor_b32 v16, v16, v10")
        A(f"v_lshl_add_u32 v15, v16, 4, v15")
        A(f"v_add_u32 v{dst}, {XBASE}, v15")
    A("v_add_u32 v13, s36, v11")
    xaddr(V_X0, 13)
    A("v_add_u32 v13, 2, v13")
    xaddr(17, 13)
    A("v_and_b32 v16, 1, v13")
    A("v_lshlrev_b32 v16, 6, v16")
    A("v_lshl_add_u32 v16, v10, 4, v16")
    A(f"v_add_u32 v16, {XBASE+32768}, v16")
    A("v_cmp_le_u32 vcc, 32, v13")
    for q in range(4):
        A(f"v_add_u32 v18, {q*4096}, v17")
        A(f"v_add_u32 v19, {q*128}, v16")
        A(f"v_cndmask_b32 v{V_X1[q]}, v18, v19, vcc")
    A("v_and_b32 v13, 1, v11")
    A("v_lshrrev_b32 v14, 1, v11")
    A("v_lshl_add_u32 v13, v14, 4, v13")
    A("s_lshl_b32 s36, s34, 7")
    A("s_add_u32 s36, s36, s25")
    A("v_add_u32 v13, s36, v13")
    A("v_lshlrev_b32 v13, 10, v13")
    A("v_and_b32 v14, 1, v10")
    A("v_lshlrev_b32 v14, 5, v14")
    A("v_lshrrev_b32 v15, 1, v10")
    A("v_lshl_add_u32 v14, v15, 4, v14")
    A("s_lshl_b32 s36, s35, 5")
    A("s_add_u32 s36, s36, s26")
    A("s_lshl_b32 s36, s36, 1")
    A("v_add_u32 v13, s36, v13")
    A(f"v_add_u32 v{V_OUT}, v13, v14")
    if opt.full:
        A("v_and_b32 v13, 1, v10")
        A("v_lshlrev_b32 v13, 1, v13")
        A("v_lshrrev_b32 v14, 1, v10")
        A("v_or_b32 v13, v13, v14")
        A("s_lshl_b32 s43, s35, 2")
        A("v_add_u32 v13, s43, v13")
        A("v_and_b32 v14, 7, v11")
        A("v_xor_b32 v13, v13, v14")
        A("v_lshlrev_b32 v13, 4, v13")
        A("v_lshl_add_u32 v13, v11, 7, v13")
        A("s_lshl_b32 s43, s34, 14")
        A("v_add_u32 v28, s43, v13")
        A("v_lshrrev_b32 v13, 3, v0")
        A("v_and_b32 v14, 7, v0")
        A("v_xor_b32 v15, v13, v14")
        A("v_lshlrev_b32 v15, 4, v15")
        A("s_lshl_b32 s21, s35, 3")
        A("v_add_u32 v13, s21, v13")
        A("v_lshl_add_u32 v15, v13, 7, v15")
        A("v_add_u32 v29, s43, v15")
        A("v_and_b32 v15, 1, v13")
        A("v_lshrrev_b32 v16, 1, v13")
        A("v_lshl_add_u32 v15, v16, 4, v15")
        A("s_lshl_b32 s43, s34, 7")
        A("s_add_u32 s43, s43, s25")
        A("v_add_u32 v15, s43, v15")
        A("v_lshlrev_b32 v15, 10, v15")
        A("v_lshl_add_u32 v15, v14, 4, v15")
        A("s_lshl_b32 s43, s26, 1")
        A(f"v_add_u32 v{V_OUT}, s43, v15")
    if opt.mzero:
        for r in range(4): A(f"v_mov_b32 v{32+r}, 0")
        A("s_nop 1")
        for b in range(8):
            A(f"v_mfma_f32_32x32x16_bf16 v[{ACC0+16*b}:{ACC0+16*b+15}], v[32:35], v[32:35], 0")
    else:
        for r in range(128):
            A(f"v_mov_b32 v{ACC0+r}, 0")
    A(f"s_mov_b32 s22, {XBATCH}")
    A("s_mov_b32 s23, 0x20000")
    A(f"s_mov_b32 s{S_K}, 0")
    A(f"s_mov_b32 s{S_WD}, {2*WUNIT}")
    A(f"s_mov_b32 s29, {-(XBUF+512)}")
    A("s_mov_b32 s36, 0x4038aa3b")
    A("s_mov_b32 s37, 0x4038aa3b")
    A("s_mov_b32 s38, 0xbfb8aa3b")
    A("s_mov_b32 s39, 0xbfb8aa3b")
    A("s_mov_b32 s42, 0x7fffffff")
    A("s_waitcnt lgkmcnt(0)")
    A("s_add_u32 s20, s8, s28")
    A("s_addc_u32 s21, s9, 0")
    if opt.touch:
        A(f"buffer_load_dword v9, v{V_OUT}, s[20:23], 0 offen")
    ds = DS(A)
    def wreads(phi_next):
        p = phi_next & 1; half = (phi_next >> 1) & 1; st = phi_next & 1
        out = []
        for tap in range(5):
            for h in range(2):
                r = WF(st, tap) + 2*h
                off = half*WUNIT + tap*4096 + h*512
                out.append((f"ds_read_b64_tr_b16 a[{r}:{r+1}], v{V_W[p]} offset:{off}", [('a', r), ('a', r+1)]))
        return out
    def xread(q):
        r = XF(q)
        regs = [('a', r+i) for i in range(4)]
        if q < 8:
            return (f"ds_read_b128 a[{r}:{r+3}], v{V_X0} offset:{q*4096}", regs)
        return (f"ds_read_b128 a[{r}:{r+3}], v{V_X1[q-8]} offset:0", regs)

    def mfma(a, wf, xf):
        ds.need([('a', wf+i) for i in range(4)] + [('a', xf+i) for i in range(4)])
        A(f"v_mfma_f32_16x16x32_bf16 v[{a}:{a+3}], {areg(wf)}, {areg(xf)}, v[{a}:{a+3}]")

    def phase(phi, wnext=True, xreload=False, barrier=False, extra=None):
        nb = phi & 3; st = phi & 1
        A(f"; ---- phase {phi}")
        if barrier:
            if opt.kstamp:
                A("s_memtime s[60:61]")
            ds.drain()
            if opt.kstamp:
                A(f"s_lshl_b32 s62, s{S_K}, 1")
                A(f"s_add_u32 m0, s62, {(phi & 3) >> 1}")
                A("s_nop 0")
                A("v_writelane_b32 v9, s60, m0")
            if not opt.nobar: A("s_barrier")
            if opt.kstamp:
                A("s_memtime s[60:61]")
                A("s_waitcnt lgkmcnt(0)")
                A("s_add_u32 m0, m0, 32")
                A("s_nop 0")
                A("v_writelane_b32 v9, s60, m0")
        post = {n: [] for n in range(40)}
        order = []
        for j in range(8):
            taps = list(range(5))
            if opt.snake and j % 2 == 1: taps.reverse()
            for tap in taps: order.append((j, tap))
        if wnext:
            for i, rd in enumerate(wreads(phi+1)):
                post[(5*(i//2)+4) if opt.dsb else 2*i].append(rd)
        if xreload:
            for q in range(12):
                lastn = max(n for n, (j, tap) in enumerate(order) if j + tap == q)
                if opt.dsb: lastn = 5*(lastn//5) + 4
                post[lastn].append(xread(q))
        if opt.dsb and extra:
            ex2 = {}
            for n, v in extra.items(): ex2.setdefault(min(5*(n//5)+4, 39) if opt.dsb > 1 else n, []).extend(v)
            extra = ex2
        for n, (j, tap) in enumerate(order):
            mfma(acc(j, nb), WF(st, tap), XF(j+tap))
            for (t, regs) in post[n]:
                if opt.nods: continue
                ds.issue(t, regs)
            if extra and n in extra:
                for t in extra[n]: A(t)

    groups = [int(g) for g in opt.groups.split(',')] if opt.groups else None
    NIT = 14 if groups else 16
    xupd = {3: [f"s_bitcmp1_b32 s{S_K}, 1",
                f"s_cselect_b32 s{S_T}, s29, {XBUF-512}"],
            5: [f"s_bitcmp1_b32 s{S_K}, 0",
                f"s_cselect_b32 s{S_XD}, s{S_T}, 512"],
            21: [f"v_add_u32 v{V_X0}, s{S_XD}, v{V_X0}"],
            23: [f"v_add_u32 v{V_X1[0]}, s{S_XD}, v{V_X1[0]}"],
            25: [f"v_add_u32 v{V_X1[1]}, s{S_XD}, v{V_X1[1]}"],
            27: [f"v_add_u32 v{V_X1[2]}, s{S_XD}, v{V_X1[2]}"],
            29: [f"v_add_u32 v{V_X1[3]}, s{S_XD}, v{V_X1[3]}"]}
    def body():
        phase(0)
        phase(1, barrier=True, extra=xupd)
        phase(2, extra={25: [f"v_add_u32 v{V_W[0]}, s{S_WD}, v{V_W[0]}"]})
        phase(3, barrier=True, xreload=True,
              extra={22: [f"v_add_u32 v{V_W[1]}, s{S_WD}, v{V_W[1]}"],
                     27: [f"s_sub_u32 s{S_WD}, 0, s{S_WD}"], 28: [f"s_add_u32 s{S_K}, s{S_K}, 1"],
                     33: [f"s_cmp_lt_u32 s{S_K}, {NIT if groups else 15}"]})
    saveL = list(A.L)
    ds.q = []; body(); Q1 = [set(x) for x in ds.q]
    body(); Q2 = [set(x) for x in ds.q]
    assert Q1 == Q2, (Q1, Q2)
    A.L = saveL
    A("s_barrier")
    if opt.stamp:
        A("s_memtime s[50:51]")
        A("s_memrealtime s[48:49]")
        A("s_waitcnt lgkmcnt(0)")
    if opt.spin:
        A("s_memrealtime s[66:67]")
        A("s_waitcnt lgkmcnt(0)")
    wr = wreads(0)
    order = []
    for tap in range(5):
        order.append(xread(tap)); order += wr[2*tap:2*tap+2]
    for q in range(5, 12): order.append(xread(q))
    tail = [o for o in order if set(o[1]) in Q1]
    head = [o for o in order if set(o[1]) not in Q1]
    tail.sort(key=lambda o: Q1.index(set(o[1])))
    assert len(tail) == len(Q1)
    ds.q = []
    for (t, regs) in head + tail: ds.issue(t, regs)
    ds.wait_n(len(Q1))
    ds.q = [set(x) for x in Q1]
    A(".p2align 6")
    A("L_cloop:")
    body()
    A("s_cbranch_scc1 L_cloop")
    assert ds.q == Q1

    TB = 10
    def epi_ops(j, PB):
        outs = []
        for p in range(2):
            for i in range(4):
                outs.append((acc(j, p) + i, acc(j, 2+p) + i, TB + 4*p + i))
        ops = []
        for (f, g, t) in outs: ops.append((4, f"v_mul_f32 v{t}, s36, v{f}"))
        for (f, g, t) in outs: ops.append((4, f"v_mul_f32 v{g}, s38, v{g}"))
        for (f, g, t) in outs: ops.append((8, f"v_exp_f32 v{t}, -|v{t}|"))
        for (f, g, t) in outs: ops.append((8, f"v_exp_f32 v{g}, v{g}"))
        for (f, g, t) in outs: ops.append((4, f"v_add_f32 v{g}, 1.0, v{g}"))
        for (f, g, t) in outs: ops.append((4, f"v_fmac_f32 v{g}, v{t}, v{g}"))
        for (f, g, t) in outs: ops.append((8, f"v_rcp_f32 v{g}, v{g}"))
        for (f, g, t) in outs: ops.append((4, f"v_fma_f32 v{t}, -v{t}, v{g}, v{g}"))
        for (f, g, t) in outs: ops.append((4, f"v_bfi_b32 v{t}, s42, v{t}, v{f}"))
        for k in range(4): ops.append((4, f"v_cvt_pk_bf16_f32 v{PB+k}, v{TB+2*k}, v{TB+2*k+1}"))
        fin = [(4, f"v_permlane16_swap_b32 v{PB}, v{PB+2}"), (4, f"v_permlane16_swap_b32 v{PB+1}, v{PB+3}")]
        if j >= 2: fin.append((4, f"s_mov_b32 s43, {4096*(j//2)}"))
        so = "0" if j < 2 else "s43"
        fin.append((4, f"buffer_store_dwordx4 v[{PB}:{PB+3}], v{V_OUT}, s[20:23], {so} offen offset:{2048*(j&1)}{opt.spol}"))
        return ops, fin

    tail_js = list(range(8))
    if not groups:
        phase(60); phase(61, barrier=True); phase(62); phase(63, wnext=False)
    else:
        assert sum(groups) == 8
        VW2 = [30, 31]
        A(f"v_add_u32 v{VW2[0]}, {2*WUNIT}, v{V_W[0]}")
        A(f"v_add_u32 v{VW2[1]}, {2*WUNIT}, v{V_W[1]}")
        subs = []
        j0 = 0
        for gi, gsz in enumerate(groups):
            js = list(range(j0, j0+gsz)); j0 += gsz
            for ks in range(2):
                for nb in range(4):
                    subs.append(dict(g=gi, js=js, ks=ks, nb=nb))
        mf = []
        for si, sb in enumerate(subs):
            sb['start'] = len(mf)
            for ji, j in enumerate(sb['js']):
                for tap in (range(4, -1, -1) if (opt.snake and ji % 2 == 1) else range(5)):
                    mf.append(dict(sub=si, acc=acc(j, sb['nb']), tap=tap, xkey=(sb['g'], sb['ks'], j+tap)))
            sb['end'] = len(mf)
        NM = len(mf)
        post = {n: [] for n in range(NM)}
        for si in range(len(subs)-1):
            nx = subs[si+1]
            p = nx['nb'] & 1; half = nx['nb'] >> 1; st = (si+1) & 1
            vw = V_W[p] if nx['ks'] == 0 else VW2[p]
            L = subs[si]['end'] - subs[si]['start']
            k = 0
            for tap in range(5):
                for h in range(2):
                    r = WF(st, tap) + 2*h
                    off = half*WUNIT + tap*4096 + h*512
                    pos = subs[si]['start'] + (k * max(L-4, 10)) // 10
                    pos = min(pos, subs[si]['end']-1)
                    post[pos].append((f"ds_read_b64_tr_b16 a[{r}:{r+1}], v{vw} offset:{off}", [('a', r), ('a', r+1)]))
                    k += 1
        first = {}; last = {}
        for n, m in enumerate(mf):
            first.setdefault(m['xkey'], n); last[m['xkey']] = n
        slot_of = {}; slot_free = [-1]*12
        init = [k for k in first if k[0] == 0 and k[1] == 0]
        for k in init:
            slot_of[k] = k[2]; slot_free[k[2]] = last[k]
        rest = sorted([k for k in first if k not in slot_of], key=lambda k: first[k])
        for k in rest:
            sl = min(range(12), key=lambda i: slot_free[i])
            pos = slot_free[sl]
            pos = max(pos, first[k]-60, 0)
            assert first[k] - pos >= 14, (k, first[k], pos)
            slot_of[k] = sl; slot_free[sl] = last[k]
            g, ks, q = k
            r = XF(sl); regs = [('a', r+i) for i in range(4)]
            if q < 8: t = f"ds_read_b128 a[{r}:{r+3}], v{V_X0} offset:{q*4096 + ks*512}"
            else: t = f"ds_read_b128 a[{r}:{r+3}], v{V_X1[q-8]} offset:{ks*512}"
            post[pos].append((t, regs))
        bar_at = {}
        for si, sb in enumerate(subs):
            if sb['g'] == 0 and (sb['ks'], sb['nb']) in [(0, 2), (1, 0), (1, 2)]:
                bar_at[subs[si-1]['start']] = True
        fill = {n: [] for n in range(NM)}
        j0 = 0
        for gi, gsz in enumerate(groups[:-1]):
            js = list(range(j0, j0+gsz)); j0 += gsz
            ops = []
            pendfin = []
            for idx, j in enumerate(js):
                o, fin = epi_ops(j, 20 + 4*(j & 1))
                ops += o[:2] + pendfin + o[2:]
                pendfin = fin
            ops += [(4, "s_nop 1")] + pendfin
            g0 = min(sb['start'] for sb in subs if sb['g'] == gi+1) + 2
            g1 = max(sb['end'] for sb in subs if sb['g'] == gi+1)
            total = sum(c for c, _ in ops)
            used = {n: 4*len(post[n]) + (8 if n in bar_at else 0) for n in range(g0, g1)}
            free = sum(max(0, 8-used[n]) for n in range(g0, g1))
            extra = max(0, total - free)
            i = 0; carry = 0.0
            for n in range(g0, g1):
                budget = max(0, 8-used[n]) + extra/(g1-g0) + carry
                while i < len(ops) and ops[i][0] <= budget + 1e-9:
                    fill[n].append(ops[i][1]); budget -= ops[i][0]; i += 1
                carry = min(budget, 8)
            while i < len(ops):
                fill[g1-1].append(ops[i][1]); i += 1
            if opt.verbose: sys.stderr.write(f"group {gi}: valu {total} free {free} extra {extra}\n")
            for j in js: tail_js.remove(j)
        for n, m in enumerate(mf):
            if n in bar_at:
                ds.drain()
                if not opt.nobar: A("s_barrier")
            st = m['sub'] & 1
            mfma(m['acc'], WF(st, m['tap']), XF(slot_of[m['xkey']]))
            for (t, regs) in post[n]: ds.issue(t, regs)
            for t in fill[n]: A(t)
    if opt.stamp:
        ds.drain()
        A("s_memtime s[52:53]")
        A("s_memrealtime s[54:55]")
        A("s_waitcnt lgkmcnt(0)")
    if opt.spin:
        ds.drain()
        A("s_memrealtime s[68:69]")
        A("s_waitcnt lgkmcnt(0)")
    A("; ---- epilogue")
    A("s_nop 7")
    def epi_math(j, PB):
        pairs = []
        for p in range(2):
            for h in range(2):
                f = acc(j, p) + 2*h; g = acc(j, 2+p) + 2*h
                pairs.append((f, g, TB + 2*(2*p+h), PB + 2*p + h))
        for (f, g, t, o) in pairs: A(f"v_pk_mul_f32 v[{t}:{t+1}], v[{f}:{f+1}], s[36:37]")
        for (f, g, t, o) in pairs: A(f"v_pk_mul_f32 v[{g}:{g+1}], v[{g}:{g+1}], s[38:39]")
        for (f, g, t, o) in pairs:
            A(f"v_exp_f32 v{t}, -|v{t}|"); A(f"v_exp_f32 v{t+1}, -|v{t+1}|")
        for (f, g, t, o) in pairs:
            A(f"v_exp_f32 v{g}, v{g}"); A(f"v_exp_f32 v{g+1}, v{g+1}")
        for (f, g, t, o) in pairs: A(f"v_pk_add_f32 v[{g}:{g+1}], v[{g}:{g+1}], 1.0 op_sel_hi:[1,0]")
        for (f, g, t, o) in pairs: A(f"v_pk_fma_f32 v[{g}:{g+1}], v[{t}:{t+1}], v[{g}:{g+1}], v[{g}:{g+1}]")
        for (f, g, t, o) in pairs:
            A(f"v_rcp_f32 v{g}, v{g}"); A(f"v_rcp_f32 v{g+1}, v{g+1}")
        for (f, g, t, o) in pairs: A(f"v_pk_fma_f32 v[{t}:{t+1}], v[{t}:{t+1}], v[{g}:{g+1}], v[{g}:{g+1}] neg_lo:[1,0,0] neg_hi:[1,0,0]")
        for (f, g, t, o) in pairs:
            A(f"v_bfi_b32 v{t}, s42, v{t}, v{f}"); A(f"v_bfi_b32 v{t+1}, s42, v{t+1}, v{f+1}")
        for (f, g, t, o) in pairs: A(f"v_cvt_pk_bf16_f32 v{o}, v{t}, v{t+1}")
        A("s_nop 1")
        A(f"v_permlane16_swap_b32 v{PB}, v{PB+2}")
        A(f"v_permlane16_swap_b32 v{PB+1}, v{PB+3}")
    def gstore(j, PB):
        if j >= 2: A(f"s_mov_b32 s43, {4096*(j//2)}")
        so = "0" if j < 2 else "s43"
        A(f"buffer_store_dwordx4 v[{PB}:{PB+3}], v{V_OUT}, s[20:23], {so} offen offset:{2048*(j&1)}{opt.spol}")
    if not opt.full:
        for j in tail_js:
            PB = 20 + 4*(j & 1)
            epi_math(j, PB)
            gstore(j, PB)
    else:
        gs = opt.full
        pend = []
        for j0 in range(0, 8, gs):
            for j in range(j0, j0+gs):
                PB = 20 + 4*(j & 1)
                epi_math(j, PB)
                A(f"ds_write_b128 v28, v[{PB}:{PB+3}] offset:{j*2048}")
                if pend:
                    jj = pend.pop(0)
                    A("s_waitcnt lgkmcnt(1)")
                    gstore(jj, 32 + 4*(jj & 1))
                    if pend: A(f"ds_read_b128 v[{32+4*(pend[0]&1)}:{35+4*(pend[0]&1)}], v29 offset:{pend[0]*2048}")
            while pend:
                jj = pend.pop(0)
                A("s_waitcnt lgkmcnt(0)")
                gstore(jj, 32 + 4*(jj & 1))
                if pend: A(f"ds_read_b128 v[{32+4*(pend[0]&1)}:{35+4*(pend[0]&1)}], v29 offset:{pend[0]*2048}")
            A("s_waitcnt lgkmcnt(0)")
            A("s_barrier")
            pend = list(range(j0, j0+gs))
            A(f"ds_read_b128 v[{32+4*(pend[0]&1)}:{35+4*(pend[0]&1)}], v29 offset:{pend[0]*2048}")
        while pend:
            jj = pend.pop(0)
            if pend: A(f"ds_read_b128 v[{32+4*(pend[0]&1)}:{35+4*(pend[0]&1)}], v29 offset:{pend[0]*2048}")
            A("s_waitcnt lgkmcnt(%d)" % (1 if pend else 0))
            gstore(jj, 32 + 4*(jj & 1))
            A("s_nop 0")
    if opt.spin:
        A("s_waitcnt vmcnt(0)")
        A("s_memrealtime s[70:71]")
        A("s_waitcnt lgkmcnt(0)")
        which, mult = opt.spin.split(',')
        a, b = {'pro': (62, 66), 'main': (66, 68), 'epi': (68, 70), 'none': (70, 70)}[which]
        A(f"s_sub_u32 s43, s{b}, s{a}")
        A(f"s_mul_i32 s43, s43, {mult}")
        A("s_add_u32 s43, s43, s70")
        A("L_spin:")
        A("s_memrealtime s[60:61]")
        A("s_waitcnt lgkmcnt(0)")
        A("s_sub_u32 s42, s60, s43")
        A("s_cmp_lt_i32 s42, 0")
        A("s_cbranch_scc1 L_spin")
    if opt.stamp:
        A("s_waitcnt vmcnt(0)")
        A("s_memtime s[56:57]")
        A("s_memrealtime s[58:59]")
        A("s_waitcnt lgkmcnt(0)")
        if opt.dbgstamp:
            A("s_sub_u32 s60, s50, s44")
            A("s_sub_u32 s61, s48, s46")
            A("s_sub_u32 s62, s52, s50")
            A("s_sub_u32 s63, s54, s48")
            A("s_sub_u32 s64, s56, s52")
            A("s_sub_u32 s65, s56, s44")
            A("s_sub_u32 s66, s58, s46")
            A("s_mov_b32 s67, s46")
            A("s_cmp_lg_u32 s24, 0")
            A("s_cbranch_scc1 L_nostamp")
            A("s_mov_b32 s43, 0")
            A("s_cmp_eq_u32 s2, 0")
            A("s_cbranch_scc1 L_dostamp")
            A("s_mov_b32 s43, 32")
            A("s_cmp_eq_u32 s2, 133")
            A("s_cbranch_scc0 L_nostamp")
            A("L_dostamp:")
            A("s_mov_b32 s68, s40"); A("s_mov_b32 s69, s41"); A("s_mov_b32 s70, 256"); A("s_mov_b32 s71, 0x20000")
            A("v_mov_b32 v9, s43")
            A("s_mov_b64 exec, 1")
            for i in range(2):
                for k in range(4): A(f"v_mov_b32 v{12+k}, s{60+4*i+k}")
                A(f"buffer_store_dwordx4 v[12:15], v9, s[68:71], 0 offen offset:{16*i}")
                A("s_nop 1")
            A("L_nostamp:")
        else:
            A("s_mov_b32 s60, s40"); A("s_mov_b32 s61, s41"); A("s_mov_b32 s62, 0x10000000"); A("s_mov_b32 s63, 0x20000")
            if opt.kstamp:
                A("s_lshl_b32 s43, s2, 2"); A("s_add_u32 s43, s43, s24"); A("s_lshl_b32 s43, s43, 8")
                A("s_add_u32 s43, s43, 0x20000")
                A("v_lshlrev_b32 v12, 2, v0")
                A("v_add_u32 v12, s43, v12")
                A("buffer_store_dword v9, v12, s[60:63], 0 offen")
                A("s_nop 1")
            A("s_lshl_b32 s43, s2, 2"); A("s_add_u32 s43, s43, s24"); A("s_lshl_b32 s43, s43, 6")
            A("v_mov_b32 v9, s43")
            A("s_mov_b64 exec, 1")
            for i in range(4):
                for k in range(4): A(f"v_mov_b32 v{12+k}, s{44+4*i+k}")
                A(f"buffer_store_dwordx4 v[12:15], v9, s[60:63], 0 offen offset:{16*i}")
                A("s_nop 1")
    A("s_endpgm")
    A("L_codeend:")

    A('.section .rodata,"a"')
    A(".p2align 6")
    A(f".amdhsa_kernel {NAME}")
    A("  .amdhsa_next_free_vgpr 256")
    A("  .amdhsa_next_free_sgpr 96")
    A("  .amdhsa_accum_offset 168")
    A("  .amdhsa_group_segment_fixed_size 0")
    A("  .amdhsa_kernarg_size 40")
    A("  .amdhsa_user_sgpr_count 2")
    A("  .amdhsa_user_sgpr_kernarg_segment_ptr 1")
    A("  .amdhsa_system_sgpr_workgroup_id_x 1")
    A("  .amdhsa_float_denorm_mode_32 3")
    A(".end_amdhsa_kernel")
    if opt.meta:
        A(f""".amdgpu_metadata
---
amdhsa.version: [1, 2]
amdhsa.kernels:
  - .name: {NAME}
    .symbol: {NAME}.kd
    .kernarg_segment_size: 40
    .kernarg_segment_align: 8
    .group_segment_fixed_size: 0
    .private_segment_fixed_size: 0
    .wavefront_size: 64
    .sgpr_count: 96
    .vgpr_count: 256
    .max_flat_workgroup_size: 512
    .args:
      - {{.name: kernargs, .size: 40, .offset: 0, .value_kind: by_value}}
...
.end_amdgpu_metadata""")
    if opt.verbose: sys.stderr.write(f"loader waits: {Ns}\nloop: {Nl}\n")
    return A.text()

def parse(argv=None):
    ap = argparse.ArgumentParser()
    ap.add_argument("-o", default="/dev/stdout")
    for o in ["meta", "stamp", "dbgstamp", "nods", "nodma", "nodmaw", "nodmax", "nobar", "verbose", "lstamp", "touch", "cpf", "kstamp", "mzero", "snake"]:
        ap.add_argument("--"+o, action="store_true")
    ap.add_argument("--spin", default="")
    ap.add_argument("--sched", default="")
    ap.add_argument("--dsb", type=int, default=0)
    ap.add_argument("--groups", default="")
    ap.add_argument("--full", type=int, default=0)
    ap.add_argument("--rot", default="")
    ap.add_argument("--order", default="xwx")
    ap.add_argument("--cprio", type=int, default=0)
    ap.add_argument("--lprio", type=int, default=0)
    ap.add_argument("--npre", type=int, default=3)
    ap.add_argument("--wpol", default="")
    ap.add_argument("--xpol", default="")
    ap.add_argument("--spol", default="nt")
    opt = ap.parse_args(argv)
    for k in ["wpol", "xpol", "spol"]:
        v = getattr(opt, k)
        if v: setattr(opt, k, " " + v)
    return opt

if __name__ == "__main__":
    opt = parse()
    open(opt.o, "w").write(gen(opt))
```

```python
import sys, argparse

NAME = "standalone__autoregressive_conv_wavernn__speech_kernel"
XBATCH = 4096000
WBYTES = 5242880
WUNIT = 20480
XBASE = 4 * WUNIT
XBUF = 33792
LDS_BYTES = XBASE + 2 * XBUF

class Asm:
    def __init__(self):
        self.L = []
    def __call__(self, s):
        self.L.append(s)
    def text(self):
        return "\n".join(self.L) + "\n"

class DS:
    def __init__(self, A, T=0):
        self.A = A
        self.q = []
        self.t = []
        self.now = 0
        self.T = T
    def issue(self, text, regs):
        if self.T == 0 and len(self.q) >= 14:
            self.wait_n(10)
        self.A(text)
        self.q.append(set(regs)); self.t.append(self.now)
    def wait_n(self, n):
        n = min(n, 15)
        if len(self.q) > n:
            self.A(f"s_waitcnt lgkmcnt({n})")
            self.q = self.q[len(self.q)-n:] if n > 0 else []
            self.t = self.t[len(self.t)-n:] if n > 0 else []
    def need(self, regs):
        regs = set(regs)
        last = -1
        for i, s in enumerate(self.q):
            if s & regs:
                last = i
        if last >= 0:
            if self.T:
                while last + 1 < len(self.q) and self.t[last+1] <= self.now - self.T: last += 1
            self.wait_n(len(self.q) - 1 - last)
    def drain(self):
        self.A("s_waitcnt lgkmcnt(0)")
        self.q = []; self.t = []
    def setq(self, q, t):
        self.q = [set(x) for x in q]; self.t = [self.now + x for x in t]
    def getq(self):
        return [set(x) for x in self.q], [x - self.now for x in self.t]

ACC0 = 40
def acc(j, nb): return ACC0 + (j*4 + nb)*4
def areg(n): return f"a[{n}:{n+3}]"
def XF(q): return 4*q
def WF(st, tap): return 48 + st*20 + tap*4
V_W = [1, 2]
V_X0 = 3
V_X1 = [4, 5, 6, 7]
V_OUT = 8
S_K = 30; S_WD = 31; S_XD = 32; S_T = 33

NPADS = 3
def gen(opt):
    A = Asm()
    A("; Kernarg layout for this problem (40 bytes, ptrs only, base s[0:1]):")
    A(";   offset   0: d_in[0] x  shape=(2, 4000, 512) dtype=bfloat16")
    A(";   offset   8: d_in[1] w  shape=(5, 512, 1024) dtype=bfloat16")
    A(";   offset  16: d_out     shape=(2, 4000, 512) dtype=bfloat16")
    A("; waves 0-3 MFMA consumers, waves 4-7 LDS-DMA loaders.")
    A(f"; @launch grid=(256,1,1) block=(512,1,1) lds={LDS_BYTES}")
    A('.amdgcn_target "amdgcn-amd-amdhsa--gfx950"')
    A(".text")
    A(f".globl {NAME}")
    A(".p2align 8")
    A(f".type {NAME},@function")
    A(f"{NAME}:")
    A("s_cmp_ge_u32 s2, 256")
    A("s_cbranch_scc1 L_end")
    A("s_load_dwordx4 s[4:7], s[0:1], 0")
    A("s_load_dwordx2 s[8:9], s[0:1], 16")
    if opt.stamp:
        A("s_load_dwordx2 s[40:41], s[0:1], %d" % (24 if opt.dbgstamp else 32))
        A("s_memtime s[44:45]")
        A("s_memrealtime s[46:47]")
    if opt.spin:
        A("s_memrealtime s[62:63]")
    A("v_lshrrev_b32 v1, 6, v0")
    A("v_and_b32 v0, 63, v0")
    A("s_and_b32 s28, s2, 7")
    A("v_readfirstlane_b32 s24, v1")
    A("s_lshr_b32 s29, s2, 3")
    A("s_lshr_b32 s30, s28, 1")
    A("s_lshl_b32 s30, s30, 3")
    A("s_lshr_b32 s31, s29, 2")
    A("s_add_u32 s30, s30, s31")
    A("s_and_b32 s31, s28, 1")
    A("s_lshl_b32 s31, s31, 2")
    A("s_and_b32 s29, s29, 3")
    A("s_add_u32 s31, s31, s29")
    A("s_lshr_b32 s27, s30, 4")
    A("s_and_b32 s25, s30, 15")
    A("s_lshl_b32 s25, s25, 8")
    A("s_lshl_b32 s26, s31, 6")
    A(f"s_mul_i32 s28, s27, {XBATCH}")
    A("s_cmp_lt_u32 s24, 4")
    A("s_cbranch_scc1 L_compute")

    A("s_sub_u32 s34, s24, 4")
    if opt.lprio: A(f"s_setprio {opt.lprio}")
    A("v_lshrrev_b32 v10, 5, v0")
    A("v_bfe_u32 v11, v0, 2, 3")
    A("v_and_b32 v12, 3, v0")
    A("v_lshrrev_b32 v13, 2, v11")
    A("v_lshlrev_b32 v13, 1, v13")
    A("v_xor_b32 v13, v13, v12")
    A("v_lshlrev_b32 v14, 6, v10")
    A("v_lshl_add_u32 v15, v13, 4, v14")
    A("v_lshl_add_u32 v16, v12, 4, v14")
    A("v_and_b32 v13, 1, v11")
    A("v_lshrrev_b32 v17, 1, v11")
    A("v_lshl_add_u32 v13, v17, 4, v13")
    A("s_lshl_b32 s35, s34, 6")
    A("s_add_u32 s35, s35, s25")
    A("s_sub_u32 s35, s35, 8")
    A("v_add_u32 v13, s35, v13")
    A("v_lshlrev_b32 v17, 10, v13")
    A("v_add_u32 v17, v17, v15")
    A("v_add_u32 v3, 0x2000, v17")
    A("v_bfrev_b32 v18, 1")
    A("v_cmp_gt_i32 vcc, 0, v13")
    A("s_add_u32 s35, s25, 248")
    A("v_add_u32 v11, s35, v11")
    A("v_cndmask_b32 v2, v17, v18, vcc")
    A("v_lshlrev_b32 v11, 10, v11")
    A("v_add_u32 v4, v11, v16")
    A("v_lshrrev_b32 v10, 3, v0")
    A("v_and_b32 v11, 7, v0")
    A("v_lshrrev_b32 v12, 1, v11")
    A("v_bfe_u32 v13, v10, 1, 1")
    A("s_and_b32 s35, s34, 1")
    A("s_lshl_b32 s35, s35, 1")
    A("v_or_b32 v13, s35, v13")
    A("v_xor_b32 v12, v12, v13")
    A("v_lshlrev_b32 v12, 5, v12")
    A("v_and_b32 v11, 1, v11")
    A("v_lshl_add_u32 v12, v11, 4, v12")
    A("s_lshl_b32 s35, s34, 3")
    A("v_add_u32 v10, s35, v10")
    A("v_lshl_add_u32 v12, v10, 11, v12")
    A("s_lshl_b32 s35, s26, 1")
    A("v_add_u32 v1, s35, v12")
    A("s_lshl_b32 s35, s34, 4")
    A("s_mov_b64 s[36:37], 0xffff")
    A("s_lshl_b64 s[36:37], s[36:37], s35")
    A("s_lshl_b32 s38, s34, 10")
    A(f"s_mov_b32 s14, {XBATCH}")
    A("s_mov_b32 s15, 0x20000")
    A(f"s_mov_b32 s18, {WBYTES}")
    A("s_mov_b32 s19, 0x20000")
    if opt.rot:
        if opt.rot == 'xcd': A("s_and_b32 s66, s2, 7")
        elif opt.rot == 'xcd4': A("s_and_b32 s66, s2, 6")
        A("s_lshl_b32 s64, s66, 17")
        A("s_lshl_b32 s66, s66, 7")
    else:
        A("s_mov_b32 s64, 0")
        A("s_mov_b32 s66, 0")
    A("s_mov_b32 s65, s38")
    A(f"s_add_u32 s67, s38, {XBASE}")
    A(f"s_add_u32 s69, s38, {XBASE+XBUF}")
    A("s_xor_b32 s69, s69, s67")
    A("s_waitcnt lgkmcnt(0)")
    A("s_add_u32 s12, s4, s28")
    A("s_addc_u32 s13, s5, 0")
    A("s_mov_b32 s16, s6")
    A("s_mov_b32 s17, s7")

    vq = []
    def w_issue(u):
        if opt.nodmaw and u > 3: return
        for tap in range(5):
            if tap == 0:
                A("s_mov_b32 m0, s65")
                A("s_mov_b32 s68, s64")
            else:
                A("s_add_u32 m0, m0, 4096")
                A("s_add_u32 s68, s68, 0x100000")
            A(f"buffer_load_dwordx4 v1, s[16:19], s68 offen{opt.wpol} lds")
            vq.append(('W', u))
        if u & 1:
            A(f"s_add_u32 s64, s64, {65536-1024}")
            if opt.rot: A("s_and_b32 s64, s64, 0xfffff")
        else: A("s_add_u32 s64, s64, 1024")
        if (u & 3) == 3: A(f"s_sub_u32 s65, s65, {3*WUNIT}")
        else: A(f"s_add_u32 s65, s65, {WUNIT}")
    def x_issue(c, part, half=None):
        if opt.nodmax and c > 1: return
        qs = range(0, 4) if part == 0 else range(4, 8)
        tag = ('XH', c) if half == 'hi' else ('X', c)
        if half == 'lo': A("s_mov_b32 exec_hi, 0")
        if half == 'hi': A("s_mov_b32 exec_lo, 0")
        for q in qs:
            A(f"s_add_u32 m0, s67, {q*4096}")
            if q < 4:
                A(f"s_add_u32 s68, s66, {2*q*1024}")
                A(f"buffer_load_dwordx4 v2, s[12:15], s68 offen{opt.xpol} lds")
            else:
                A(f"s_add_u32 s68, s66, {(2*q-8)*1024}")
                A(f"buffer_load_dwordx4 v3, s[12:15], s68 offen{opt.xpol} lds")
            vq.append(tag)
        if half: A("s_mov_b64 exec, -1")
        if part == 1 and half != 'hi':
            A(f"s_sub_u32 m0, s67, s38")
            A(f"s_add_u32 m0, m0, 32768")
            A("s_mov_b64 exec, s[36:37]")
            A(f"buffer_load_dwordx4 v4, s[12:15], s66 offen{opt.xpol} lds")
            A("s_mov_b64 exec, -1")
            vq.append(tag)
        if part == 1 and half != 'lo':
            A("s_add_u32 s66, s66, 128")
            if opt.rot: A("s_and_b32 s66, s66, 0x3ff")
            A("s_xor_b32 s67, s67, s69")
    def need_n(u):
        need = [('W', u)]
        if u % 4 == 0: need.append(('X', u//4))
        if u == 2: need.append(('XH', 0))
        last = -1
        for i, t in enumerate(vq):
            if t in need: last = i
        return len(vq) - 1 - last if last >= 0 else None
    def wait_for(u, n=None):
        nn = need_n(u)
        if n is None: n = nn
        assert nn is None or n <= nn
        if n is not None and n <= len(vq):
            A(f"s_waitcnt vmcnt({n})")
            del vq[:len(vq)-n]
    sched = {}
    if opt.sched:
        for part in opt.sched.split(';'):
            k, v = part.split(':')
            sched[k] = v.split(',') if v else []
    U0 = 3 if not opt.sched else max(int(k) for k in sched if k != 'pre') + 1
    while U0 % 4 != 3: U0 += 1
    def do_item(it):
        if it[0] == 'w': w_issue(int(it[1:]))
        elif it == 'xl': x_issue(0, 0, 'lo'); x_issue(0, 1, 'lo')
        elif it == 'xla': x_issue(0, 0, 'lo')
        elif it == 'xlb': x_issue(0, 1, 'lo')
        elif it == 'xh': x_issue(0, 0, 'hi'); x_issue(0, 1, 'hi')
        elif it[0] == 'x': x_issue(int(it[1]), 0 if it[2] == 'a' else 1)
    def issues(u):
        if str(u) in sched: return sched[str(u)]
        r = []
        if u + 3 <= 31 and u + 3 >= opt.npre: r.append(f'w{u+3}')
        if u == 1: r.append('x1a')
        elif u == 2: r.append('x1b')
        elif u % 4 == 3 and u//4 + 2 <= 7: r.append(f'x{u//4+2}a')
        elif u % 4 == 0 and u >= 4 and u//4 + 1 <= 7: r.append(f'x{u//4+1}b')
        return r
    def interval(u, nfix=None):
        wait_for(u, nfix)
        if not (opt.nobar and u > 0): A("s_barrier")
        if opt.nodma: return
        for it in issues(u): do_item(it)
    def lst(i):
        if opt.lstamp: A(f"s_memtime s[{72+2*i}:{73+2*i}]")
    lst(0)
    pre = sched.get('pre', ['x0a', 'w0', 'x0b'] + [f'w{u}' for u in range(1, opt.npre)])
    for ii, it in enumerate(pre):
        do_item(it)
        if ii < 3: lst(1+ii)
    lst(4)
    if opt.lstamp:
        sv = list(vq)
        wait_for(0)
        lst(5)
        A("s_waitcnt lgkmcnt(0)")
        A("s_mov_b32 s84, s40"); A("s_mov_b32 s85, s41"); A("s_mov_b32 s86, 0x10000000"); A("s_mov_b32 s87, 0x20000")
        A("s_lshl_b32 s43, s2, 2"); A("s_add_u32 s43, s43, s34"); A("s_lshl_b32 s43, s43, 6")
        A("s_add_u32 s43, s43, 0x10000")
        A("v_mov_b32 v9, s43")
        A("s_mov_b64 exec, 1")
        regs = [44,45,46,47,72,73,74,75,76,77,78,79,80,81,82,83]
        for i in range(4):
            for k in range(4): A(f"v_mov_b32 v{20+k}, s{regs[4*i+k]}")
            A(f"buffer_store_dwordx4 v[20:23], v9, s[84:87], 0 offen offset:{16*i}")
            A("s_nop 1")
        A("s_mov_b64 exec, -1")
        A("s_waitcnt vmcnt(0)")
        vq[:] = sv
    saveL = list(A.L); savevq = list(vq)
    Ns = {}
    for u in range(32):
        Ns[u] = need_n(u)
        interval(u)
    A.L = saveL; vq[:] = savevq
    for u in range(0, U0): interval(u)
    Nl = {m: min([Ns[u] for u in range(U0, 27) if u % 4 == m and Ns[u] is not None] or [0]) for m in range(4)}
    A("s_mov_b32 s70, 0")
    A("L_lloop:")
    for u in range(U0, U0+4): interval(u, nfix=Nl[u % 4])
    A("s_add_u32 s70, s70, 1")
    A(f"s_cmp_lt_u32 s70, {(27-U0)//4}")
    A("s_cbranch_scc1 L_lloop")
    saveL = list(A.L)
    for u in range(U0+4, 27): interval(u, nfix=Nl[u % 4])
    A.L = saveL
    for u in range(27, 32):
        interval(u)
    A("L_end:")
    A("s_endpgm")

    A(".p2align 12" if opt.pads else ".p2align 6")
    A("L_page0:")
    if opt.skip: A(f".fill {opt.skip//4}, 4, 0xBF800000")
    A("L_compute:")
    if opt.cprio: A(f"s_setprio {opt.cprio}")
    if opt.cpf:
        A("s_getpc_b64 s[60:61]")
        A("L_pc:")
        A("v_lshlrev_b32 v28, 7, v0")
        A("s_lshl_b32 s62, s24, 13")
        A("v_add_u32 v28, s62, v28")
        A("s_mov_b32 s62, L_codeend-L_pc-4")
        A("v_min_u32 v28, s62, v28")
        A("v_mov_b32 v29, s61")
        A("v_add_co_u32 v28, vcc, s60, v28")
        A("s_nop 1")
        A("v_addc_co_u32 v29, vcc, 0, v29, vcc")
        A("global_load_dword v9, v[28:29], off")
    A("s_lshr_b32 s34, s24, 1")
    A("s_and_b32 s35, s24, 1")
    A("v_lshrrev_b32 v10, 4, v0")
    A("v_and_b32 v11, 15, v0")
    A("v_lshrrev_b32 v12, 2, v11")
    A("v_lshl_add_u32 v12, v10, 3, v12")
    A("v_lshlrev_b32 v12, 7, v12")
    A("v_and_b32 v13, 3, v11")
    A("v_lshl_add_u32 v12, v13, 3, v12")
    A("v_lshrrev_b32 v13, 3, v11")
    A("v_and_b32 v14, 1, v10")
    A("v_lshl_or_b32 v13, v14, 1, v13")
    A("s_lshl_b32 s36, s35, 1")
    for p in range(2):
        A(f"s_add_u32 s37, s36, {p}")
        A("v_xor_b32 v14, s37, v13")
        A(f"v_lshl_add_u32 v{V_W[p]}, v14, 5, v12")
    A("s_lshl_b32 s36, s34, 4")
    def xaddr(dst, Rreg):
        A(f"v_lshrrev_b32 v15, 3, v{Rreg}")
        A(f"v_lshlrev_b32 v15, 10, v15")
        A(f"v_and_b32 v16, 7, v{Rreg}")
        A(f"v_lshl_add_u32 v15, v16, 6, v15")
        A(f"v_bfe_u32 v16, v{Rreg}, 2, 1")
        A(f"v_lshlrev_b32 v16, 1, v16")
        A(f"v_xor_b32 v16, v16, v10")
        A(f"v_lshl_add_u32 v15, v16, 4, v15")
        A(f"v_add_u32 v{dst}, {XBASE}, v15")
    A("v_add_u32 v13, s36, v11")
    xaddr(V_X0, 13)
    A("v_add_u32 v13, 2, v13")
    xaddr(17, 13)
    A("v_and_b32 v16, 1, v13")
    A("v_lshlrev_b32 v16, 6, v16")
    A("v_lshl_add_u32 v16, v10, 4, v16")
    A(f"v_add_u32 v16, {XBASE+32768}, v16")
    A("v_cmp_le_u32 vcc, 32, v13")
    for q in range(4):
        A(f"v_add_u32 v18, {q*4096}, v17")
        A(f"v_add_u32 v19, {q*128}, v16")
        A(f"v_cndmask_b32 v{V_X1[q]}, v18, v19, vcc")
    A("v_and_b32 v13, 1, v11")
    A("v_lshrrev_b32 v14, 1, v11")
    A("v_lshl_add_u32 v13, v14, 4, v13")
    A("s_lshl_b32 s36, s34, 7")
    A("s_add_u32 s36, s36, s25")
    A("v_add_u32 v13, s36, v13")
    A("v_lshlrev_b32 v13, 10, v13")
    A("v_and_b32 v14, 1, v10")
    A("v_lshlrev_b32 v14, 5, v14")
    A("v_lshrrev_b32 v15, 1, v10")
    A("v_lshl_add_u32 v14, v15, 4, v14")
    A("s_lshl_b32 s36, s35, 5")
    A("s_add_u32 s36, s36, s26")
    A("s_lshl_b32 s36, s36, 1")
    A("v_add_u32 v13, s36, v13")
    A(f"v_add_u32 v{V_OUT}, v13, v14")
    if opt.full:
        A("v_and_b32 v13, 1, v10")
        A("v_lshlrev_b32 v13, 1, v13")
        A("v_lshrrev_b32 v14, 1, v10")
        A("v_or_b32 v13, v13, v14")
        A("s_lshl_b32 s43, s35, 2")
        A("v_add_u32 v13, s43, v13")
        A("v_and_b32 v14, 7, v11")
        A("v_xor_b32 v13, v13, v14")
        A("v_lshlrev_b32 v13, 4, v13")
        A("v_lshl_add_u32 v13, v11, 7, v13")
        A("s_lshl_b32 s43, s34, 14")
        A("v_add_u32 v28, s43, v13")
        A("v_lshrrev_b32 v13, 3, v0")
        A("v_and_b32 v14, 7, v0")
        A("v_xor_b32 v15, v13, v14")
        A("v_lshlrev_b32 v15, 4, v15")
        A("s_lshl_b32 s21, s35, 3")
        A("v_add_u32 v13, s21, v13")
        A("v_lshl_add_u32 v15, v13, 7, v15")
        A("v_add_u32 v29, s43, v15")
        A("v_and_b32 v15, 1, v13")
        A("v_lshrrev_b32 v16, 1, v13")
        A("v_lshl_add_u32 v15, v16, 4, v15")
        A("s_lshl_b32 s43, s34, 7")
        A("s_add_u32 s43, s43, s25")
        A("v_add_u32 v15, s43, v15")
        A("v_lshlrev_b32 v15, 10, v15")
        A("v_lshl_add_u32 v15, v14, 4, v15")
        A("s_lshl_b32 s43, s26, 1")
        A(f"v_add_u32 v{V_OUT}, s43, v15")
    if opt.mzero:
        for r in range(4): A(f"v_mov_b32 v{32+r}, 0")
        A("s_nop 1")
        for b in range(8):
            A(f"v_mfma_f32_32x32x16_bf16 v[{ACC0+16*b}:{ACC0+16*b+15}], v[32:35], v[32:35], 0")
    else:
        for r in range(128):
            A(f"v_mov_b32 v{ACC0+r}, 0")
    A(f"s_mov_b32 s22, {XBATCH}")
    A("s_mov_b32 s23, 0x20000")
    A(f"s_mov_b32 s{S_K}, 0")
    A(f"s_mov_b32 s{S_XD}, {XBUF}")
    A(f"v_add_u32 v30, {2*WUNIT}, v{V_W[0]}")
    A(f"v_add_u32 v31, {2*WUNIT}, v{V_W[1]}")
    A("s_mov_b32 s36, 0x4038aa3b")
    A("s_mov_b32 s37, 0x4038aa3b")
    A("s_mov_b32 s38, 0xbfb8aa3b")
    A("s_mov_b32 s39, 0xbfb8aa3b")
    A("s_mov_b32 s42, 0x7fffffff")
    A("s_waitcnt lgkmcnt(0)")
    A("s_add_u32 s20, s8, s28")
    A("s_addc_u32 s21, s9, 0")
    if opt.pads:
        A("s_mov_b64 vcc, -1")
        for k in range(NPADS):
            A(f"s_cmp_eq_u32 s24, {k}")
            A(f"s_cbranch_scc1 L_pad{k}")
        A("L_back:")
        A("s_mov_b64 vcc, 0")
    if opt.touch:
        A(f"buffer_load_dword v9, v{V_OUT}, s[20:23], 0 offen")
    ds = DS(A, opt.wmerge)
    VW2 = [30, 31]
    def wreads(phi_next):
        p = phi_next & 1; half = (phi_next >> 1) & 1; st = phi_next & 1
        vw = VW2[p] if (phi_next >> 2) & 1 else V_W[p]
        out = []
        for tap in range(5):
            for h in range(2):
                r = WF(st, tap) + 2*h
                off = half*WUNIT + tap*4096 + h*512
                out.append((f"ds_read_b64_tr_b16 a[{r}:{r+1}], v{vw} offset:{off}", [('a', r), ('a', r+1)]))
        return out
    def xread(q, ks=0):
        r = XF(q)
        regs = [('a', r+i) for i in range(4)]
        if q < 8:
            return (f"ds_read_b128 a[{r}:{r+3}], v{V_X0} offset:{q*4096 + ks*512}", regs)
        return (f"ds_read_b128 a[{r}:{r+3}], v{V_X1[q-8]} offset:{ks*512}", regs)

    def mfma(a, wf, xf):
        ds.need([('a', wf+i) for i in range(4)] + [('a', xf+i) for i in range(4)])
        A(f"v_mfma_f32_16x16x32_bf16 v[{a}:{a+3}], {areg(wf)}, {areg(xf)}, v[{a}:{a+3}]")
        ds.now += 1

    def phase(phi, wnext=True, xreload=False, barrier=False, extra=None):
        nb = phi & 3; st = phi & 1
        A(f"; ---- phase {phi}")
        if barrier:
            if opt.kstamp:
                A("s_memtime s[60:61]")
            ds.drain()
            if opt.kstamp:
                A(f"s_lshl_b32 s62, s{S_K}, 2")
                A(f"s_add_u32 m0, s62, {(phi & 7) >> 1}")
                A("s_nop 0")
                A("v_writelane_b32 v9, s60, m0")
            if not opt.nobar: A("s_barrier")
            if opt.kstamp:
                A("s_memtime s[60:61]")
                A("s_waitcnt lgkmcnt(0)")
                A("s_add_u32 m0, m0, 32")
                A("s_nop 0")
                A("v_writelane_b32 v9, s60, m0")
        post = {n: [] for n in range(40)}
        order = []
        for j in range(8):
            taps = list(range(5))
            if opt.snake and j % 2 == 1: taps.reverse()
            for tap in taps: order.append((j, tap))
        if wnext:
            for i, rd in enumerate(wreads(phi+1)):
                post[(5*(i//2)+4) if opt.dsb else 2*i].append(rd)
        if xreload:
            for q in range(12):
                lastn = max(n for n, (j, tap) in enumerate(order) if j + tap == q)
                if opt.dsb: lastn = 5*(lastn//5) + 4
                post[lastn].append(xread(q, ((phi+1) >> 2) & 1))
        if opt.dsb and extra:
            ex2 = {}
            for n, v in extra.items(): ex2.setdefault(min(5*(n//5)+4, 39) if opt.dsb > 1 else n, []).extend(v)
            extra = ex2
        for n, (j, tap) in enumerate(order):
            mfma(acc(j, nb), WF(st, tap), XF(j+tap))
            for (t, regs) in post[n]:
                if opt.nods: continue
                ds.issue(t, regs)
            if extra and n in extra:
                for t in extra[n]: A(t)

    groups = [int(g) for g in opt.groups.split(',')] if opt.groups else None
    assert groups
    NIT = 7
    xupd = {3: [f"v_add_u32 v{V_X0}, s{S_XD}, v{V_X0}"],
            7: [f"v_add_u32 v{V_X1[0]}, s{S_XD}, v{V_X1[0]}"],
            23: [f"v_add_u32 v{V_X1[1]}, s{S_XD}, v{V_X1[1]}"],
            27: [f"v_add_u32 v{V_X1[2]}, s{S_XD}, v{V_X1[2]}"],
            31: [f"v_add_u32 v{V_X1[3]}, s{S_XD}, v{V_X1[3]}"],
            35: [f"s_sub_u32 s{S_XD}, 0, s{S_XD}"]}
    def body():
        phase(0)
        phase(1, barrier=True)
        phase(2)
        phase(3, barrier=True, xreload=True)
        phase(4)
        phase(5, barrier=True, extra=xupd)
        phase(6, extra={25: [f"s_add_u32 s{S_K}, s{S_K}, 1"]})
        phase(7, barrier=True, xreload=True, extra={33: [f"s_cmp_lt_u32 s{S_K}, {NIT}"]})
    saveL = list(A.L)
    ds.q = []; ds.t = []; body(); Q1, T1 = ds.getq()
    body(); Q2, T2 = ds.getq()
    assert Q1 == Q2 and T1 == T2, (Q1, Q2)
    A.L = saveL
    if opt.fstamp:
        A("s_memtime s[60:61]")
        A("s_waitcnt lgkmcnt(0)")
        A("v_writelane_b32 v9, s60, 60")
        A("v_writelane_b32 v9, s44, 61")
    A("s_barrier")
    if opt.stamp:
        A("s_memtime s[50:51]")
        A("s_memrealtime s[48:49]")
        A("s_waitcnt lgkmcnt(0)")
    if opt.spin:
        A("s_memrealtime s[66:67]")
        A("s_waitcnt lgkmcnt(0)")
    wr = wreads(0)
    order = []
    for tap in range(5):
        order.append(xread(tap)); order += wr[2*tap:2*tap+2]
    for q in range(5, 12): order.append(xread(q))
    tail = [o for o in order if set(o[1]) in Q1]
    head = [o for o in order if set(o[1]) not in Q1]
    tail.sort(key=lambda o: Q1.index(set(o[1])))
    assert len(tail) == len(Q1)
    ds.q = []; ds.t = []
    for k, (t, regs) in enumerate(head + tail):
        if len(ds.q) >= 14: ds.wait_n(8)
        ds.issue(t, regs)
    ds.wait_n(len(Q1))
    ds.setq(Q1, T1)
    A(".p2align 6")
    A("L_cloop:")
    body()
    A("s_cbranch_scc1 L_cloop")
    A("; @@final")
    A("L_final:")
    assert ds.getq()[0] == Q1

    TB = 10
    def epi_ops(j, PB):
        outs = []
        for p in range(2):
            for i in range(4):
                outs.append((acc(j, p) + i, acc(j, 2+p) + i, TB + 4*p + i))
        ops = []
        for (f, g, t) in outs: ops.append((4, f"v_mul_f32 v{t}, s36, v{f}"))
        for (f, g, t) in outs: ops.append((4, f"v_mul_f32 v{g}, s38, v{g}"))
        for (f, g, t) in outs: ops.append((8, f"v_exp_f32 v{t}, -|v{t}|"))
        for (f, g, t) in outs: ops.append((8, f"v_exp_f32 v{g}, v{g}"))
        for (f, g, t) in outs: ops.append((4, f"v_add_f32 v{g}, 1.0, v{g}"))
        for (f, g, t) in outs: ops.append((4, f"v_fmac_f32 v{g}, v{t}, v{g}"))
        for (f, g, t) in outs: ops.append((8, f"v_rcp_f32 v{g}, v{g}"))
        for (f, g, t) in outs: ops.append((4, f"v_fma_f32 v{t}, -v{t}, v{g}, v{g}"))
        for (f, g, t) in outs: ops.append((4, f"v_bfi_b32 v{t}, s42, v{t}, v{f}"))
        for k in range(4): ops.append((4, f"v_cvt_pk_bf16_f32 v{PB+k}, v{TB+2*k}, v{TB+2*k+1}"))
        fin = [(4, f"v_permlane16_swap_b32 v{PB}, v{PB+2}"), (4, f"v_permlane16_swap_b32 v{PB+1}, v{PB+3}")]
        if j >= 2: fin.append((4, f"s_mov_b32 s43, {4096*(j//2)}"))
        so = "0" if j < 2 else "s43"
        fin.append((4, f"buffer_store_dwordx4 v[{PB}:{PB+3}], v{V_OUT}, s[20:23], {so} offen offset:{2048*(j&1)}{opt.spol}"))
        return ops, fin

    tail_js = list(range(8))
    if not groups:
        phase(60); phase(61, barrier=True); phase(62); phase(63, wnext=False)
    else:
        assert sum(groups) == 8
        subs = []
        j0 = 0
        for gi, gsz in enumerate(groups):
            js = list(range(j0, j0+gsz)); j0 += gsz
            for ks in range(2):
                for nb in range(4):
                    subs.append(dict(g=gi, js=js, ks=ks, nb=nb))
        mf = []
        for si, sb in enumerate(subs):
            sb['start'] = len(mf)
            for ji, j in enumerate(sb['js']):
                for tap in (range(4, -1, -1) if (opt.snake and ji % 2 == 1) else range(5)):
                    mf.append(dict(sub=si, acc=acc(j, sb['nb']), tap=tap, xkey=(sb['g'], sb['ks'], j+tap)))
            sb['end'] = len(mf)
        NM = len(mf)
        post = {n: [] for n in range(NM)}
        for si in range(len(subs)-1):
            nx = subs[si+1]
            p = nx['nb'] & 1; half = nx['nb'] >> 1; st = (si+1) & 1
            vw = V_W[p] if nx['ks'] == 0 else VW2[p]
            L = subs[si]['end'] - subs[si]['start']
            k = 0
            for tap in range(5):
                for h in range(2):
                    r = WF(st, tap) + 2*h
                    off = half*WUNIT + tap*4096 + h*512
                    pos = subs[si]['start'] + (k * max(L-4, 10)) // 10
                    pos = min(pos, subs[si]['end']-1)
                    post[pos].append((f"ds_read_b64_tr_b16 a[{r}:{r+1}], v{vw} offset:{off}", [('a', r), ('a', r+1)]))
                    k += 1
        first = {}; last = {}
        for n, m in enumerate(mf):
            first.setdefault(m['xkey'], n); last[m['xkey']] = n
        slot_of = {}; slot_free = [-1]*12
        init = [k for k in first if k[0] == 0 and k[1] == 0]
        for k in init:
            slot_of[k] = k[2]; slot_free[k[2]] = last[k]
        rest = sorted([k for k in first if k not in slot_of], key=lambda k: first[k])
        for k in rest:
            sl = min(range(12), key=lambda i: slot_free[i])
            pos = slot_free[sl]
            pos = max(pos, first[k]-60, 0)
            assert first[k] - pos >= 14, (k, first[k], pos)
            slot_of[k] = sl; slot_free[sl] = last[k]
            g, ks, q = k
            r = XF(sl); regs = [('a', r+i) for i in range(4)]
            if q < 8: t = f"ds_read_b128 a[{r}:{r+3}], v{V_X0} offset:{q*4096 + ks*512}"
            else: t = f"ds_read_b128 a[{r}:{r+3}], v{V_X1[q-8]} offset:{ks*512}"
            post[pos].append((t, regs))
        bar_at = {}
        for si, sb in enumerate(subs):
            if sb['g'] == 0 and (sb['ks'], sb['nb']) in [(0, 2), (1, 0), (1, 2)]:
                bar_at[subs[si-1]['start']] = True
        fill = {n: [] for n in range(NM)}
        j0 = 0
        for gi, gsz in enumerate(groups[:-1]):
            js = list(range(j0, j0+gsz)); j0 += gsz
            ops = []
            pendfin = []
            for idx, j in enumerate(js):
                o, fin = epi_ops(j, 20 + 4*(j & 1))
                ops += o[:2] + pendfin + o[2:]
                pendfin = fin
            ops += [(4, "s_nop 1")] + pendfin
            g0 = min(sb['start'] for sb in subs if sb['g'] == gi+1) + 2
            g1 = max(sb['end'] for sb in subs if sb['g'] == gi+1)
            total = sum(c for c, _ in ops)
            used = {n: 4*len(post[n]) + (8 if n in bar_at else 0) for n in range(g0, g1)}
            free = sum(max(0, 8-used[n]) for n in range(g0, g1))
            extra = max(0, total - free)
            i = 0; carry = 0.0
            for n in range(g0, g1):
                budget = max(0, 8-used[n]) + extra/(g1-g0) + carry
                while i < len(ops) and ops[i][0] <= budget + 1e-9:
                    fill[n].append(ops[i][1]); budget -= ops[i][0]; i += 1
                carry = min(budget, 8)
            while i < len(ops):
                fill[g1-1].append(ops[i][1]); i += 1
            if opt.verbose: sys.stderr.write(f"group {gi}: valu {total} free {free} extra {extra}\n")
            for j in js: tail_js.remove(j)
        A("; ---- final chunk")
        def fstamp(idx):
            if opt.fstamp:
                A("s_memtime s[60:61]")
                ds.drain()
                A(f"v_writelane_b32 v9, s60, {idx}")
        fstamp(0)
        fi = 1
        for n, m in enumerate(mf):
            if opt.fstamp and n > 0 and n == subs[m['sub']]['start']:
                fstamp(fi); fi += 1
            if n in bar_at:
                ds.drain()
                if not opt.nobar: A("s_barrier")
            st = m['sub'] & 1
            mfma(m['acc'], WF(st, m['tap']), XF(slot_of[m['xkey']]))
            for (t, regs) in post[n]: ds.issue(t, regs)
            for t in fill[n]: A(t)
            if opt.tailshift and 100 <= n < 100 + opt.tailshift: A("s_nop 0")
    if opt.stamp:
        ds.drain()
        A("s_memtime s[52:53]")
        A("s_memrealtime s[54:55]")
        A("s_waitcnt lgkmcnt(0)")
    if opt.spin:
        ds.drain()
        A("s_memrealtime s[68:69]")
        A("s_waitcnt lgkmcnt(0)")
    A("; ---- epilogue")
    A("s_nop 7")
    def epi_math(j, PB):
        pairs = []
        for p in range(2):
            for h in range(2):
                f = acc(j, p) + 2*h; g = acc(j, 2+p) + 2*h
                pairs.append((f, g, TB + 2*(2*p+h), PB + 2*p + h))
        for (f, g, t, o) in pairs: A(f"v_pk_mul_f32 v[{t}:{t+1}], v[{f}:{f+1}], s[36:37]")
        for (f, g, t, o) in pairs: A(f"v_pk_mul_f32 v[{g}:{g+1}], v[{g}:{g+1}], s[38:39]")
        for (f, g, t, o) in pairs:
            A(f"v_exp_f32 v{t}, -|v{t}|"); A(f"v_exp_f32 v{t+1}, -|v{t+1}|")
        for (f, g, t, o) in pairs:
            A(f"v_exp_f32 v{g}, v{g}"); A(f"v_exp_f32 v{g+1}, v{g+1}")
        for (f, g, t, o) in pairs: A(f"v_pk_add_f32 v[{g}:{g+1}], v[{g}:{g+1}], 1.0 op_sel_hi:[1,0]")
        for (f, g, t, o) in pairs: A(f"v_pk_fma_f32 v[{g}:{g+1}], v[{t}:{t+1}], v[{g}:{g+1}], v[{g}:{g+1}]")
        for (f, g, t, o) in pairs:
            A(f"v_rcp_f32 v{g}, v{g}"); A(f"v_rcp_f32 v{g+1}, v{g+1}")
        for (f, g, t, o) in pairs: A(f"v_pk_fma_f32 v[{t}:{t+1}], v[{t}:{t+1}], v[{g}:{g+1}], v[{g}:{g+1}] neg_lo:[1,0,0] neg_hi:[1,0,0]")
        for (f, g, t, o) in pairs:
            A(f"v_bfi_b32 v{t}, s42, v{t}, v{f}"); A(f"v_bfi_b32 v{t+1}, s42, v{t+1}, v{f+1}")
        for (f, g, t, o) in pairs: A(f"v_cvt_pk_bf16_f32 v{o}, v{t}, v{t+1}")
        A("s_nop 1")
        A(f"v_permlane16_swap_b32 v{PB}, v{PB+2}")
        A(f"v_permlane16_swap_b32 v{PB+1}, v{PB+3}")
    def gstore(j, PB):
        if j >= 2: A(f"s_mov_b32 s43, {4096*(j//2)}")
        so = "0" if j < 2 else "s43"
        A(f"buffer_store_dwordx4 v[{PB}:{PB+3}], v{V_OUT}, s[20:23], {so} offen offset:{2048*(j&1)}{opt.spol}")
    if not opt.full:
        for j in tail_js:
            PB = 20 + 4*(j & 1)
            epi_math(j, PB)
            gstore(j, PB)
    else:
        gs = opt.full
        pend = []
        for j0 in range(0, 8, gs):
            for j in range(j0, j0+gs):
                PB = 20 + 4*(j & 1)
                epi_math(j, PB)
                A(f"ds_write_b128 v28, v[{PB}:{PB+3}] offset:{j*2048}")
                if pend:
                    jj = pend.pop(0)
                    A("s_waitcnt lgkmcnt(1)")
                    gstore(jj, 32 + 4*(jj & 1))
                    if pend: A(f"ds_read_b128 v[{32+4*(pend[0]&1)}:{35+4*(pend[0]&1)}], v29 offset:{pend[0]*2048}")
            while pend:
                jj = pend.pop(0)
                A("s_waitcnt lgkmcnt(0)")
                gstore(jj, 32 + 4*(jj & 1))
                if pend: A(f"ds_read_b128 v[{32+4*(pend[0]&1)}:{35+4*(pend[0]&1)}], v29 offset:{pend[0]*2048}")
            A("s_waitcnt lgkmcnt(0)")
            A("s_barrier")
            pend = list(range(j0, j0+gs))
            A(f"ds_read_b128 v[{32+4*(pend[0]&1)}:{35+4*(pend[0]&1)}], v29 offset:{pend[0]*2048}")
        while pend:
            jj = pend.pop(0)
            if pend: A(f"ds_read_b128 v[{32+4*(pend[0]&1)}:{35+4*(pend[0]&1)}], v29 offset:{pend[0]*2048}")
            A("s_waitcnt lgkmcnt(%d)" % (1 if pend else 0))
            gstore(jj, 32 + 4*(jj & 1))
            A("s_nop 0")
    if opt.spin:
        A("s_memrealtime s[64:65]")
        A("s_waitcnt lgkmcnt(0)")
        A("s_waitcnt vmcnt(0)")
        A("s_memrealtime s[70:71]")
        A("s_waitcnt lgkmcnt(0)")
        which, mult = opt.spin.split(',')
        a, b = {'pro': (62, 66), 'main': (66, 68), 'epi': (68, 70), 'epiv': (68, 64), 'drain': (64, 70), 'none': (70, 70)}[which]
        A(f"s_sub_u32 s43, s{b}, s{a}")
        A(f"s_mul_i32 s43, s43, {mult}")
        A("s_add_u32 s43, s43, s70")
        A("L_spin:")
        A("s_memrealtime s[60:61]")
        A("s_waitcnt lgkmcnt(0)")
        A("s_sub_u32 s42, s60, s43")
        A("s_cmp_lt_i32 s42, 0")
        A("s_cbranch_scc1 L_spin")
    if opt.stamp:
        A("s_waitcnt vmcnt(0)")
        A("s_memtime s[56:57]")
        A("s_memrealtime s[58:59]")
        A("s_waitcnt lgkmcnt(0)")
        if opt.dbgstamp:
            A("s_sub_u32 s60, s50, s44")
            A("s_sub_u32 s61, s48, s46")
            A("s_sub_u32 s62, s52, s50")
            A("s_sub_u32 s63, s54, s48")
            A("s_sub_u32 s64, s56, s52")
            A("s_sub_u32 s65, s56, s44")
            A("s_sub_u32 s66, s58, s46")
            A("s_mov_b32 s67, s46")
            A("s_cmp_lg_u32 s24, 0")
            A("s_cbranch_scc1 L_nostamp")
            A("s_mov_b32 s43, 0")
            A("s_cmp_eq_u32 s2, 0")
            A("s_cbranch_scc1 L_dostamp")
            A("s_mov_b32 s43, 32")
            A("s_cmp_eq_u32 s2, 133")
            A("s_cbranch_scc0 L_nostamp")
            A("L_dostamp:")
            A("s_mov_b32 s68, s40"); A("s_mov_b32 s69, s41"); A("s_mov_b32 s70, 256"); A("s_mov_b32 s71, 0x20000")
            A("v_mov_b32 v9, s43")
            A("s_mov_b64 exec, 1")
            for i in range(2):
                for k in range(4): A(f"v_mov_b32 v{12+k}, s{60+4*i+k}")
                A(f"buffer_store_dwordx4 v[12:15], v9, s[68:71], 0 offen offset:{16*i}")
                A("s_nop 1")
            A("L_nostamp:")
        else:
            A("s_mov_b32 s60, s40"); A("s_mov_b32 s61, s41"); A("s_mov_b32 s62, 0x10000000"); A("s_mov_b32 s63, 0x20000")
            if opt.kstamp or opt.fstamp:
                A("s_lshl_b32 s43, s2, 2"); A("s_add_u32 s43, s43, s24"); A("s_lshl_b32 s43, s43, 8")
                A("s_add_u32 s43, s43, 0x20000")
                A("v_lshlrev_b32 v12, 2, v0")
                A("v_add_u32 v12, s43, v12")
                A("buffer_store_dword v9, v12, s[60:63], 0 offen")
                A("s_nop 1")
            A("s_lshl_b32 s43, s2, 2"); A("s_add_u32 s43, s43, s24"); A("s_lshl_b32 s43, s43, 6")
            A("v_mov_b32 v9, s43")
            A("s_mov_b64 exec, 1")
            for i in range(4):
                for k in range(4): A(f"v_mov_b32 v{12+k}, s{44+4*i+k}")
                A(f"buffer_store_dwordx4 v[12:15], v9, s[60:63], 0 offen offset:{16*i}")
                A("s_nop 1")
    A("s_endpgm")
    A("L_codeend:")

    A('.section .rodata,"a"')
    A(".p2align 6")
    A(f".amdhsa_kernel {NAME}")
    A("  .amdhsa_next_free_vgpr 256")
    A("  .amdhsa_next_free_sgpr 96")
    A("  .amdhsa_accum_offset 168")
    A("  .amdhsa_group_segment_fixed_size 0")
    A("  .amdhsa_kernarg_size 40")
    A("  .amdhsa_user_sgpr_count 2")
    A("  .amdhsa_user_sgpr_kernarg_segment_ptr 1")
    A("  .amdhsa_system_sgpr_workgroup_id_x 1")
    A("  .amdhsa_float_denorm_mode_32 3")
    A(".end_amdhsa_kernel")
    if opt.meta:
        A(f""".amdgpu_metadata
---
amdhsa.version: [1, 2]
amdhsa.kernels:
  - .name: {NAME}
    .symbol: {NAME}.kd
    .kernarg_segment_size: 40
    .kernarg_segment_align: 8
    .group_segment_fixed_size: 0
    .private_segment_fixed_size: 0
    .wavefront_size: 64
    .sgpr_count: 96
    .vgpr_count: 256
    .max_flat_workgroup_size: 512
    .args:
      - {{.name: kernargs, .size: 40, .offset: 0, .value_kind: by_value}}
...
.end_amdgpu_metadata""")
    if opt.verbose: sys.stderr.write(f"loader waits: {Ns}\nloop: {Nl}\n")
    return A.text()

def parse(argv=None):
    ap = argparse.ArgumentParser()
    ap.add_argument("-o", default="/dev/stdout")
    for o in ["meta", "stamp", "dbgstamp", "nods", "nodma", "nodmaw", "nodmax", "nobar", "verbose", "lstamp", "touch", "cpf", "kstamp", "mzero", "snake", "fstamp", "pads", "pad8"]:
        ap.add_argument("--"+o, action="store_true")
    ap.add_argument("--spin", default="")
    ap.add_argument("--sched", default="")
    ap.add_argument("--tailshift", type=int, default=0)
    ap.add_argument("--skip", type=int, default=0)
    ap.add_argument("--wmerge", type=int, default=0)
    ap.add_argument("--align", default="")
    ap.add_argument("--dsb", type=int, default=0)
    ap.add_argument("--groups", default="")
    ap.add_argument("--full", type=int, default=0)
    ap.add_argument("--rot", default="")
    ap.add_argument("--order", default="xwx")
    ap.add_argument("--cprio", type=int, default=0)
    ap.add_argument("--lprio", type=int, default=0)
    ap.add_argument("--npre", type=int, default=3)
    ap.add_argument("--wpol", default="")
    ap.add_argument("--xpol", default="")
    ap.add_argument("--spol", default="nt")
    opt = ap.parse_args(argv)
    for k in ["wpol", "xpol", "spol"]:
        v = getattr(opt, k)
        if v: setattr(opt, k, " " + v)
    return opt

def offsets(text):
    import subprocess, tempfile, os, re
    L = text.split("\n")
    start = L.index("L_compute:")
    out = []
    for i, l in enumerate(L):
        if i > start and l and not l.startswith(('.', ';')) and not l.endswith(':') and i < L.index('L_codeend:'):
            out.append(f"LL_{i}:")
        out.append(l)
    d = tempfile.mkdtemp()
    open(d+"/a.s", "w").write("\n".join(out))
    subprocess.check_call(["clang", "-x", "assembler", "-target", "amdgcn-amd-amdhsa", "-mcpu=gfx950", "-c", d+"/a.s", "-o", d+"/a.o"])
    sym = subprocess.check_output(["llvm-readelf", "-s", "--wide", d+"/a.o"]).decode()
    addr = {}
    for line in sym.splitlines():
        p = line.split()
        if len(p) == 8 and p[0].endswith(':'):
            try: addr[p[7]] = int(p[1], 16)
            except ValueError: pass
    base = addr["L_page0"]
    return {int(k[3:]): v - base for k, v in addr.items() if k.startswith("LL_")}, addr

E64_OK = ("v_mul_f32", "v_add_f32", "v_fmac_f32", "v_exp_f32", "v_rcp_f32", "v_add_u32", "v_mov_b32")
def align8(text, first_label, last_marker=None):
    L = text.split("\n")
    tmp = list(L)
    missing = [f"L_pad{m}:" for m in range(NPADS) if f"L_pad{m}:" not in L and any(f"L_pad{m}" in x for x in L)]
    ci = tmp.index("L_codeend:")
    off, addr = offsets("\n".join(tmp[:ci+1] + missing + tmp[ci+1:]))
    idx = sorted(off)
    size = {}
    for a, b in zip(idx, idx[1:]): size[a] = off[b] - off[a]
    size[idx[-1]] = 4
    start = L.index(first_label + ":")
    stop = L.index(last_marker) if last_marker else ci
    par = None
    ins = {}
    cand = None
    nw = nn = 0
    for i in idx:
        if i < start or i >= stop: continue
        if par is None: par = off[i] % 8
        sz = size[i]
        op = L[i].split()[0]
        if sz == 8:
            if par == 4:
                if cand is not None:
                    o = L[cand].split()[0]
                    L[cand] = L[cand].replace(o, o + "_e64", 1); nw += 1
                else:
                    ins[i] = True; nn += 1
                par = 0
            cand = None
        else:
            par ^= 4
            if op in E64_OK and "|" not in L[i] and "0x" not in L[i]:
                cand = i
            if par == 0: cand = None if op not in E64_OK else cand
    for i in sorted(ins, reverse=True): L.insert(i, "s_nop 0")
    sys.stderr.write(f"align8: widened {nw}, nops {nn}\n")
    return "\n".join(L)

def add_pads(text):
    npad = 0
    for bound in range(4096, 8*4096, 4096):
        L = text.split("\n")
        tmp = list(L)
        missing = [f"L_pad{m}:" for m in range(NPADS) if f"L_pad{m}:" not in L]
        ci = tmp.index("L_codeend:")
        off, addr = offsets("\n".join(tmp[:ci+1] + missing + tmp[ci+1:]))
        cand = sorted(i for i, o in off.items() if o >= bound)
        if not cand: break
        i = cand[0]
        if i < L.index("L_cloop:"): continue
        assert i > L.index("; @@final") or ALLOW_LOOP_PAD, "page boundary inside the main loop"
        L[i:i] = [f"L_pad{npad}:", "s_cbranch_vccnz L_back", "s_nop 0"]
        npad += 1
        text = "\n".join(L)
    L = text.split("\n")
    for k in range(npad, NPADS):
        i = L.index(f"s_cbranch_scc1 L_pad{k}")
        del L[i-1:i+1]
    sys.stderr.write(f"pads: {npad}\n")
    return "\n".join(L)

ALLOW_LOOP_PAD = False
if __name__ == "__main__":
    opt = parse()
    t = gen(opt)
    if opt.align == 'all': t = align8(t, "L_cloop")
    if opt.align == 'final': t = align8(t, "L_final")
    if opt.align == 'loop': t = align8(t, "L_cloop", "; @@final")
    if opt.pads: t = add_pads(t)
    open(opt.o, "w").write(t)
```

```python
import sys, argparse

NAME = "standalone__autoregressive_conv_wavernn__speech_kernel"
XBATCH = 4096000
WBYTES = 5242880
WUNIT = 20480
XBASE = 4 * WUNIT
XBUF = 33792
LDS_BYTES = XBASE + 2 * XBUF

class Asm:
    def __init__(self):
        self.L = []
    def __call__(self, s):
        self.L.append(s)
    def text(self):
        return "\n".join(self.L) + "\n"

class DS:
    def __init__(self, A, T=0):
        self.A = A
        self.q = []
        self.t = []
        self.now = 0
        self.T = T
    def issue(self, text, regs):
        if self.T == 0 and len(self.q) >= 14:
            self.wait_n(10)
        self.A(text)
        self.q.append(set(regs)); self.t.append(self.now)
    def wait_n(self, n):
        n = min(n, 15)
        if len(self.q) > n:
            self.A(f"s_waitcnt lgkmcnt({n})")
            self.q = self.q[len(self.q)-n:] if n > 0 else []
            self.t = self.t[len(self.t)-n:] if n > 0 else []
    def need(self, regs):
        regs = set(regs)
        last = -1
        for i, s in enumerate(self.q):
            if s & regs:
                last = i
        if last >= 0:
            if self.T:
                while last + 1 < len(self.q) and self.t[last+1] <= self.now - self.T: last += 1
            self.wait_n(len(self.q) - 1 - last)
    def drain(self):
        self.A("s_waitcnt lgkmcnt(0)")
        self.q = []; self.t = []
    def setq(self, q, t):
        self.q = [set(x) for x in q]; self.t = [self.now + x for x in t]
    def getq(self):
        return [set(x) for x in self.q], [x - self.now for x in self.t]

ACC0 = 40
def acc(j, nb): return ACC0 + (j*4 + nb)*4
def areg(n): return f"a[{n}:{n+3}]"
def XF(q): return 4*q
def WF(st, tap): return 48 + st*20 + tap*4
V_W = [1, 2]
V_X0 = 3
V_X1 = [4, 5, 6, 7]
V_OUT = 8
S_K = 30; S_WD = 31; S_XD = 32; S_T = 33

NPADS = 3
def gen(opt):
    A = Asm()
    A("; Kernarg layout for this problem (40 bytes, ptrs only, base s[0:1]):")
    A(";   offset   0: d_in[0] x  shape=(2, 4000, 512) dtype=bfloat16")
    A(";   offset   8: d_in[1] w  shape=(5, 512, 1024) dtype=bfloat16")
    A(";   offset  16: d_out     shape=(2, 4000, 512) dtype=bfloat16")
    A("; waves 0-3 MFMA consumers, waves 4-7 LDS-DMA loaders.")
    A(f"; @launch grid=(256,1,1) block=(512,1,1) lds={LDS_BYTES}")
    A('.amdgcn_target "amdgcn-amd-amdhsa--gfx950"')
    A(".text")
    A(f".globl {NAME}")
    A(".p2align 8")
    A(f".type {NAME},@function")
    A(f"{NAME}:")
    A("s_cmp_ge_u32 s2, 256")
    A("s_cbranch_scc1 L_end")
    A("s_load_dwordx4 s[4:7], s[0:1], 0")
    A("s_load_dwordx2 s[8:9], s[0:1], 16")
    if opt.stamp:
        A("s_load_dwordx2 s[40:41], s[0:1], %d" % (24 if opt.dbgstamp else 32))
        A("s_memtime s[44:45]")
        A("s_memrealtime s[46:47]")
    if opt.spin:
        A("s_memrealtime s[62:63]")
    A("v_lshrrev_b32 v1, 6, v0")
    A("v_and_b32 v0, 63, v0")
    A("s_and_b32 s28, s2, 7")
    A("v_readfirstlane_b32 s24, v1")
    A("s_lshr_b32 s29, s2, 3")
    A("s_lshr_b32 s30, s28, 1")
    A("s_lshl_b32 s30, s30, 3")
    A("s_lshr_b32 s31, s29, 2")
    A("s_add_u32 s30, s30, s31")
    A("s_and_b32 s31, s28, 1")
    A("s_lshl_b32 s31, s31, 2")
    A("s_and_b32 s29, s29, 3")
    A("s_add_u32 s31, s31, s29")
    A("s_lshr_b32 s27, s30, 4")
    A("s_and_b32 s25, s30, 15")
    A("s_lshl_b32 s25, s25, 8")
    A("s_lshl_b32 s26, s31, 6")
    A(f"s_mul_i32 s28, s27, {XBATCH}")
    A("s_cmp_lt_u32 s24, 4")
    A("s_cbranch_scc1 L_compute")

    A("s_sub_u32 s34, s24, 4")
    if opt.lprio: A(f"s_setprio {opt.lprio}")
    A("v_lshrrev_b32 v10, 5, v0")
    A("v_bfe_u32 v11, v0, 2, 3")
    A("v_and_b32 v12, 3, v0")
    A("v_lshrrev_b32 v13, 2, v11")
    A("v_lshlrev_b32 v13, 1, v13")
    A("v_xor_b32 v13, v13, v12")
    A("v_lshlrev_b32 v14, 6, v10")
    A("v_lshl_add_u32 v15, v13, 4, v14")
    A("v_lshl_add_u32 v16, v12, 4, v14")
    A("v_and_b32 v13, 1, v11")
    A("v_lshrrev_b32 v17, 1, v11")
    A("v_lshl_add_u32 v13, v17, 4, v13")
    A("s_lshl_b32 s35, s34, 6")
    A("s_add_u32 s35, s35, s25")
    A("s_sub_u32 s35, s35, 8")
    A("v_add_u32 v13, s35, v13")
    A("v_lshlrev_b32 v17, 10, v13")
    A("v_add_u32 v17, v17, v15")
    A("v_add_u32 v3, 0x2000, v17")
    A("v_bfrev_b32 v18, 1")
    A("v_cmp_gt_i32 vcc, 0, v13")
    A("s_add_u32 s35, s25, 248")
    A("v_add_u32 v11, s35, v11")
    A("v_cndmask_b32 v2, v17, v18, vcc")
    A("v_lshlrev_b32 v11, 10, v11")
    A("v_add_u32 v4, v11, v16")
    A("v_lshrrev_b32 v10, 3, v0")
    A("v_and_b32 v11, 7, v0")
    A("v_lshrrev_b32 v12, 1, v11")
    A("v_bfe_u32 v13, v10, 1, 1")
    A("s_and_b32 s35, s34, 1")
    A("s_lshl_b32 s35, s35, 1")
    A("v_or_b32 v13, s35, v13")
    A("v_xor_b32 v12, v12, v13")
    A("v_lshlrev_b32 v12, 5, v12")
    A("v_and_b32 v11, 1, v11")
    A("v_lshl_add_u32 v12, v11, 4, v12")
    A("s_lshl_b32 s35, s34, 3")
    A("v_add_u32 v10, s35, v10")
    A("v_lshl_add_u32 v12, v10, 11, v12")
    A("s_lshl_b32 s35, s26, 1")
    A("v_add_u32 v1, s35, v12")
    A("s_lshl_b32 s35, s34, 4")
    A("s_mov_b64 s[36:37], 0xffff")
    A("s_lshl_b64 s[36:37], s[36:37], s35")
    A("s_lshl_b32 s38, s34, 10")
    A(f"s_mov_b32 s14, {XBATCH}")
    A("s_mov_b32 s15, 0x20000")
    A(f"s_mov_b32 s18, {WBYTES}")
    A("s_mov_b32 s19, 0x20000")
    if opt.rot:
        if opt.rot == 'xcd': A("s_and_b32 s66, s2, 7")
        elif opt.rot == 'xcd4': A("s_and_b32 s66, s2, 6")
        A("s_lshl_b32 s64, s66, 17")
        A("s_lshl_b32 s66, s66, 7")
    else:
        A("s_mov_b32 s64, 0")
        A("s_mov_b32 s66, 0")
    A("s_mov_b32 s65, s38")
    A(f"s_add_u32 s67, s38, {XBASE}")
    A(f"s_add_u32 s69, s38, {XBASE+XBUF}")
    A("s_xor_b32 s69, s69, s67")
    A("s_waitcnt lgkmcnt(0)")
    A("s_add_u32 s12, s4, s28")
    A("s_addc_u32 s13, s5, 0")
    A("s_mov_b32 s16, s6")
    A("s_mov_b32 s17, s7")

    vq = []
    def w_issue(u):
        if opt.nodmaw and u > 3: return
        for tap in range(5):
            if tap == 0:
                A("s_mov_b32 m0, s65")
                A("s_mov_b32 s68, s64")
            else:
                A("s_add_u32 m0, m0, 4096")
                A("s_add_u32 s68, s68, 0x100000")
            A(f"buffer_load_dwordx4 v1, s[16:19], s68 offen{opt.wpol} lds")
            vq.append(('W', u))
        if u & 1:
            A(f"s_add_u32 s64, s64, {65536-1024}")
            if opt.rot: A("s_and_b32 s64, s64, 0xfffff")
        else: A("s_add_u32 s64, s64, 1024")
        if (u & 3) == 3: A(f"s_sub_u32 s65, s65, {3*WUNIT}")
        else: A(f"s_add_u32 s65, s65, {WUNIT}")
    def x_issue(c, part, half=None):
        if opt.nodmax and c > 1: return
        qs = range(0, 4) if part == 0 else range(4, 8)
        tag = ('XH', c) if half == 'hi' else ('X', c)
        if half == 'lo': A("s_mov_b32 exec_hi, 0")
        if half == 'hi': A("s_mov_b32 exec_lo, 0")
        for q in qs:
            A(f"s_add_u32 m0, s67, {q*4096}")
            if q < 4:
                A(f"s_add_u32 s68, s66, {2*q*1024}")
                A(f"buffer_load_dwordx4 v2, s[12:15], s68 offen{opt.xpol} lds")
            else:
                A(f"s_add_u32 s68, s66, {(2*q-8)*1024}")
                A(f"buffer_load_dwordx4 v3, s[12:15], s68 offen{opt.xpol} lds")
            vq.append(tag)
        if half: A("s_mov_b64 exec, -1")
        if part == 1 and half != 'hi':
            A(f"s_sub_u32 m0, s67, s38")
            A(f"s_add_u32 m0, m0, 32768")
            A("s_mov_b64 exec, s[36:37]")
            A(f"buffer_load_dwordx4 v4, s[12:15], s66 offen{opt.xpol} lds")
            A("s_mov_b64 exec, -1")
            vq.append(tag)
        if part == 1 and half != 'lo':
            A("s_add_u32 s66, s66, 128")
            if opt.rot: A("s_and_b32 s66, s66, 0x3ff")
            A("s_xor_b32 s67, s67, s69")
    def need_n(u):
        need = [('W', u)]
        if u % 4 == 0: need.append(('X', u//4))
        if u == 2: need.append(('XH', 0))
        last = -1
        for i, t in enumerate(vq):
            if t in need: last = i
        return len(vq) - 1 - last if last >= 0 else None
    def wait_for(u, n=None):
        nn = need_n(u)
        if n is None: n = nn
        assert nn is None or n <= nn
        if n is not None and n <= len(vq):
            A(f"s_waitcnt vmcnt({n})")
            del vq[:len(vq)-n]
    sched = {}
    if opt.sched:
        for part in opt.sched.split(';'):
            k, v = part.split(':')
            sched[k] = v.split(',') if v else []
    U0 = 3 if not opt.sched else max(int(k) for k in sched if k != 'pre') + 1
    while U0 % 4 != 3: U0 += 1
    def do_item(it):
        if it[0] == 'w': w_issue(int(it[1:]))
        elif it == 'xl': x_issue(0, 0, 'lo'); x_issue(0, 1, 'lo')
        elif it == 'xla': x_issue(0, 0, 'lo')
        elif it == 'xlb': x_issue(0, 1, 'lo')
        elif it == 'xh': x_issue(0, 0, 'hi'); x_issue(0, 1, 'hi')
        elif it[0] == 'x': x_issue(int(it[1]), 0 if it[2] == 'a' else 1)
    def issues(u):
        if str(u) in sched: return sched[str(u)]
        r = []
        if u + 3 <= 31 and u + 3 >= opt.npre: r.append(f'w{u+3}')
        if u == 1: r.append('x1a')
        elif u == 2: r.append('x1b')
        elif u % 4 == 3 and u//4 + 2 <= 7: r.append(f'x{u//4+2}a')
        elif u % 4 == 0 and u >= 4 and u//4 + 1 <= 7: r.append(f'x{u//4+1}b')
        return r
    def interval(u, nfix=None):
        wait_for(u, nfix)
        if not (opt.nobar and u > 0): A("s_barrier")
        if opt.nodma: return
        for it in issues(u): do_item(it)
    def lst(i):
        if opt.lstamp: A(f"s_memtime s[{72+2*i}:{73+2*i}]")
    lst(0)
    pre = sched.get('pre', ['x0a', 'w0', 'x0b'] + [f'w{u}' for u in range(1, opt.npre)])
    for ii, it in enumerate(pre):
        do_item(it)
        if ii < 3: lst(1+ii)
    lst(4)
    if opt.lstamp:
        sv = list(vq)
        wait_for(0)
        lst(5)
        A("s_waitcnt lgkmcnt(0)")
        A("s_mov_b32 s84, s40"); A("s_mov_b32 s85, s41"); A("s_mov_b32 s86, 0x10000000"); A("s_mov_b32 s87, 0x20000")
        A("s_lshl_b32 s43, s2, 2"); A("s_add_u32 s43, s43, s34"); A("s_lshl_b32 s43, s43, 6")
        A("s_add_u32 s43, s43, 0x10000")
        A("v_mov_b32 v9, s43")
        A("s_mov_b64 exec, 1")
        regs = [44,45,46,47,72,73,74,75,76,77,78,79,80,81,82,83]
        for i in range(4):
            for k in range(4): A(f"v_mov_b32 v{20+k}, s{regs[4*i+k]}")
            A(f"buffer_store_dwordx4 v[20:23], v9, s[84:87], 0 offen offset:{16*i}")
            A("s_nop 1")
        A("s_mov_b64 exec, -1")
        A("s_waitcnt vmcnt(0)")
        vq[:] = sv
    saveL = list(A.L); savevq = list(vq)
    Ns = {}
    for u in range(32):
        Ns[u] = need_n(u)
        interval(u)
    A.L = saveL; vq[:] = savevq
    for u in range(0, U0): interval(u)
    Nl = {m: min([Ns[u] for u in range(U0, 27) if u % 4 == m and Ns[u] is not None] or [0]) for m in range(4)}
    A("s_mov_b32 s70, 0")
    A("L_lloop:")
    for u in range(U0, U0+4): interval(u, nfix=Nl[u % 4])
    A("s_add_u32 s70, s70, 1")
    A(f"s_cmp_lt_u32 s70, {(27-U0)//4}")
    A("s_cbranch_scc1 L_lloop")
    saveL = list(A.L)
    for u in range(U0+4, 27): interval(u, nfix=Nl[u % 4])
    A.L = saveL
    for u in range(27, 32):
        interval(u)
        if opt.otouch and u == opt.otouch:
            A("s_add_u32 s20, s8, s28")
            A("s_addc_u32 s21, s9, 0")
            A(f"s_mov_b32 s22, {XBATCH}")
            A("s_mov_b32 s23, 0x20000")
            A("s_lshr_b32 s40, s34, 1")
            A("s_and_b32 s41, s34, 1")
            A("v_and_b32 v11, 15, v0")
            A("v_and_b32 v13, 1, v11")
            A("v_lshrrev_b32 v14, 1, v11")
            A("v_lshl_add_u32 v13, v14, 4, v13")
            A("s_lshl_b32 s40, s40, 7")
            A("s_add_u32 s40, s40, s25")
            A("v_add_u32 v13, s40, v13")
            A("v_lshrrev_b32 v14, 4, v0")
            A("v_lshl_add_u32 v13, v14, 2, v13")
            A("v_lshlrev_b32 v13, 10, v13")
            A("s_lshl_b32 s41, s41, 5")
            A("s_add_u32 s41, s41, s26")
            A("s_lshl_b32 s41, s41, 1")
            A("v_add_u32 v13, s41, v13")
            A(f"buffer_load_dword v14, v13, s[20:23], 0 offen{opt.otpol}")
    A("L_end:")
    A("s_endpgm")

    A(".p2align 12" if opt.pads else ".p2align 6")
    A("L_page0:")
    if opt.skip: A(f".fill {opt.skip//4}, 4, 0xBF800000")
    A("L_compute:")
    if opt.cprio: A(f"s_setprio {opt.cprio}")
    if opt.cpf:
        A("s_getpc_b64 s[60:61]")
        A("L_pc:")
        A("v_lshlrev_b32 v28, 7, v0")
        A("s_lshl_b32 s62, s24, 13")
        A("v_add_u32 v28, s62, v28")
        A("s_mov_b32 s62, L_codeend-L_pc-4")
        A("v_min_u32 v28, s62, v28")
        A("v_mov_b32 v29, s61")
        A("v_add_co_u32 v28, vcc, s60, v28")
        A("s_nop 1")
        A("v_addc_co_u32 v29, vcc, 0, v29, vcc")
        A("global_load_dword v9, v[28:29], off")
    A("s_lshr_b32 s34, s24, 1")
    A("s_and_b32 s35, s24, 1")
    A("v_lshrrev_b32 v10, 4, v0")
    A("v_and_b32 v11, 15, v0")
    A("v_lshrrev_b32 v12, 2, v11")
    A("v_lshl_add_u32 v12, v10, 3, v12")
    A("v_lshlrev_b32 v12, 7, v12")
    A("v_and_b32 v13, 3, v11")
    A("v_lshl_add_u32 v12, v13, 3, v12")
    A("v_lshrrev_b32 v13, 3, v11")
    A("v_and_b32 v14, 1, v10")
    A("v_lshl_or_b32 v13, v14, 1, v13")
    A("s_lshl_b32 s36, s35, 1")
    for p in range(2):
        A(f"s_add_u32 s37, s36, {p}")
        A("v_xor_b32 v14, s37, v13")
        A(f"v_lshl_add_u32 v{V_W[p]}, v14, 5, v12")
    A("s_lshl_b32 s36, s34, 4")
    def xaddr(dst, Rreg):
        A(f"v_lshrrev_b32 v15, 3, v{Rreg}")
        A(f"v_lshlrev_b32 v15, 10, v15")
        A(f"v_and_b32 v16, 7, v{Rreg}")
        A(f"v_lshl_add_u32 v15, v16, 6, v15")
        A(f"v_bfe_u32 v16, v{Rreg}, 2, 1")
        A(f"v_lshlrev_b32 v16, 1, v16")
        A(f"v_xor_b32 v16, v16, v10")
        A(f"v_lshl_add_u32 v15, v16, 4, v15")
        A(f"v_add_u32 v{dst}, {XBASE}, v15")
    A("v_add_u32 v13, s36, v11")
    xaddr(V_X0, 13)
    A("v_add_u32 v13, 2, v13")
    xaddr(17, 13)
    A("v_and_b32 v16, 1, v13")
    A("v_lshlrev_b32 v16, 6, v16")
    A("v_lshl_add_u32 v16, v10, 4, v16")
    A(f"v_add_u32 v16, {XBASE+32768}, v16")
    A("v_cmp_le_u32 vcc, 32, v13")
    for q in range(4):
        A(f"v_add_u32 v18, {q*4096}, v17")
        A(f"v_add_u32 v19, {q*128}, v16")
        A(f"v_cndmask_b32 v{V_X1[q]}, v18, v19, vcc")
    A("v_and_b32 v13, 1, v11")
    A("v_lshrrev_b32 v14, 1, v11")
    A("v_lshl_add_u32 v13, v14, 4, v13")
    A("s_lshl_b32 s36, s34, 7")
    A("s_add_u32 s36, s36, s25")
    A("v_add_u32 v13, s36, v13")
    A("v_lshlrev_b32 v13, 10, v13")
    A("v_and_b32 v14, 1, v10")
    A("v_lshlrev_b32 v14, 5, v14")
    A("v_lshrrev_b32 v15, 1, v10")
    A("v_lshl_add_u32 v14, v15, 4, v14")
    A("s_lshl_b32 s36, s35, 5")
    A("s_add_u32 s36, s36, s26")
    A("s_lshl_b32 s36, s36, 1")
    A("v_add_u32 v13, s36, v13")
    A(f"v_add_u32 v{V_OUT}, v13, v14")
    if opt.full:
        A("v_and_b32 v13, 1, v10")
        A("v_lshlrev_b32 v13, 1, v13")
        A("v_lshrrev_b32 v14, 1, v10")
        A("v_or_b32 v13, v13, v14")
        A("s_lshl_b32 s43, s35, 2")
        A("v_add_u32 v13, s43, v13")
        A("v_and_b32 v14, 7, v11")
        A("v_xor_b32 v13, v13, v14")
        A("v_lshlrev_b32 v13, 4, v13")
        A("v_lshl_add_u32 v13, v11, 7, v13")
        A("s_lshl_b32 s43, s34, 14")
        A("v_add_u32 v28, s43, v13")
        A("v_lshrrev_b32 v13, 3, v0")
        A("v_and_b32 v14, 7, v0")
        A("v_xor_b32 v15, v13, v14")
        A("v_lshlrev_b32 v15, 4, v15")
        A("s_lshl_b32 s21, s35, 3")
        A("v_add_u32 v13, s21, v13")
        A("v_lshl_add_u32 v15, v13, 7, v15")
        A("v_add_u32 v29, s43, v15")
        A("v_and_b32 v15, 1, v13")
        A("v_lshrrev_b32 v16, 1, v13")
        A("v_lshl_add_u32 v15, v16, 4, v15")
        A("s_lshl_b32 s43, s34, 7")
        A("s_add_u32 s43, s43, s25")
        A("v_add_u32 v15, s43, v15")
        A("v_lshlrev_b32 v15, 10, v15")
        A("v_lshl_add_u32 v15, v14, 4, v15")
        A("s_lshl_b32 s43, s26, 1")
        A(f"v_add_u32 v{V_OUT}, s43, v15")
    if opt.mzero:
        for r in range(4): A(f"v_mov_b32 v{32+r}, 0")
        A("s_nop 1")
        for b in range(8):
            A(f"v_mfma_f32_32x32x16_bf16 v[{ACC0+16*b}:{ACC0+16*b+15}], v[32:35], v[32:35], 0")
    else:
        for r in range(128):
            A(f"v_mov_b32 v{ACC0+r}, 0")
    A(f"s_mov_b32 s22, {XBATCH}")
    A("s_mov_b32 s23, 0x20000")
    A(f"s_mov_b32 s{S_K}, 0")
    A(f"s_mov_b32 s{S_XD}, {XBUF}")
    A(f"v_add_u32 v30, {2*WUNIT}, v{V_W[0]}")
    A(f"v_add_u32 v31, {2*WUNIT}, v{V_W[1]}")
    A("s_mov_b32 s36, 0x4038aa3b")
    A("s_mov_b32 s37, 0x4038aa3b")
    A("s_mov_b32 s38, 0xbfb8aa3b")
    A("s_mov_b32 s39, 0xbfb8aa3b")
    A("s_mov_b32 s42, 0x7fffffff")
    A("s_waitcnt lgkmcnt(0)")
    A("s_add_u32 s20, s8, s28")
    A("s_addc_u32 s21, s9, 0")
    if opt.pads:
        A("s_mov_b64 vcc, -1")
        for k in range(NPADS):
            A(f"s_cmp_eq_u32 s24, {k}")
            A(f"s_cbranch_scc1 L_pad{k}")
        A("L_back:")
        A("s_mov_b64 vcc, 0")
    if opt.touch:
        A(f"buffer_load_dword v9, v{V_OUT}, s[20:23], 0 offen")
    ds = DS(A, opt.wmerge)
    VW2 = [30, 31]
    def wreads(phi_next):
        p = phi_next & 1; half = (phi_next >> 1) & 1; st = phi_next & 1
        vw = VW2[p] if (phi_next >> 2) & 1 else V_W[p]
        out = []
        for tap in range(5):
            for h in range(2):
                r = WF(st, tap) + 2*h
                off = half*WUNIT + tap*4096 + h*512
                out.append((f"ds_read_b64_tr_b16 a[{r}:{r+1}], v{vw} offset:{off}", [('a', r), ('a', r+1)]))
        return out
    def xread(q, ks=0):
        r = XF(q)
        regs = [('a', r+i) for i in range(4)]
        if q < 8:
            return (f"ds_read_b128 a[{r}:{r+3}], v{V_X0} offset:{q*4096 + ks*512}", regs)
        return (f"ds_read_b128 a[{r}:{r+3}], v{V_X1[q-8]} offset:{ks*512}", regs)

    def mfma(a, wf, xf):
        ds.need([('a', wf+i) for i in range(4)] + [('a', xf+i) for i in range(4)])
        A(f"v_mfma_f32_16x16x32_bf16 v[{a}:{a+3}], {areg(wf)}, {areg(xf)}, v[{a}:{a+3}]")
        ds.now += 1

    def phase(phi, wnext=True, xreload=False, barrier=False, extra=None):
        nb = phi & 3; st = phi & 1
        A(f"; ---- phase {phi}")
        if barrier:
            if opt.kstamp:
                A("s_memtime s[60:61]")
            ds.drain()
            if opt.kstamp:
                A(f"s_lshl_b32 s62, s{S_K}, 2")
                A(f"s_add_u32 m0, s62, {(phi & 7) >> 1}")
                A("s_nop 0")
                A("v_writelane_b32 v9, s60, m0")
            if not opt.nobar: A("s_barrier")
            if opt.kstamp:
                A("s_memtime s[60:61]")
                A("s_waitcnt lgkmcnt(0)")
                A("s_add_u32 m0, m0, 32")
                A("s_nop 0")
                A("v_writelane_b32 v9, s60, m0")
        post = {n: [] for n in range(40)}
        order = []
        for j in range(8):
            taps = list(range(5))
            if opt.snake and j % 2 == 1: taps.reverse()
            for tap in taps: order.append((j, tap))
        if wnext:
            for i, rd in enumerate(wreads(phi+1)):
                post[(5*(i//2)+4) if opt.dsb else 2*i].append(rd)
        if xreload:
            for q in range(12):
                lastn = max(n for n, (j, tap) in enumerate(order) if j + tap == q)
                if opt.dsb: lastn = 5*(lastn//5) + 4
                post[lastn].append(xread(q, ((phi+1) >> 2) & 1))
        if opt.dsb and extra:
            ex2 = {}
            for n, v in extra.items(): ex2.setdefault(min(5*(n//5)+4, 39) if opt.dsb > 1 else n, []).extend(v)
            extra = ex2
        for n, (j, tap) in enumerate(order):
            mfma(acc(j, nb), WF(st, tap), XF(j+tap))
            for (t, regs) in post[n]:
                if opt.nods: continue
                ds.issue(t, regs)
            if extra and n in extra:
                for t in extra[n]: A(t)

    groups = [int(g) for g in opt.groups.split(',')] if opt.groups else None
    assert groups
    NIT = 7
    xupd = {3: [f"v_add_u32 v{V_X0}, s{S_XD}, v{V_X0}"],
            7: [f"v_add_u32 v{V_X1[0]}, s{S_XD}, v{V_X1[0]}"],
            23: [f"v_add_u32 v{V_X1[1]}, s{S_XD}, v{V_X1[1]}"],
            27: [f"v_add_u32 v{V_X1[2]}, s{S_XD}, v{V_X1[2]}"],
            31: [f"v_add_u32 v{V_X1[3]}, s{S_XD}, v{V_X1[3]}"],
            35: [f"s_sub_u32 s{S_XD}, 0, s{S_XD}"]}
    def body():
        phase(0)
        phase(1, barrier=True)
        phase(2)
        phase(3, barrier=True, xreload=True)
        phase(4)
        phase(5, barrier=True, extra=xupd)
        phase(6, extra={25: [f"s_add_u32 s{S_K}, s{S_K}, 1"]})
        phase(7, barrier=True, xreload=True, extra={33: [f"s_cmp_lt_u32 s{S_K}, {NIT}"]})
    saveL = list(A.L)
    ds.q = []; ds.t = []; body(); Q1, T1 = ds.getq()
    body(); Q2, T2 = ds.getq()
    assert Q1 == Q2 and T1 == T2, (Q1, Q2)
    A.L = saveL
    if opt.fstamp:
        A("s_memtime s[60:61]")
        A("s_waitcnt lgkmcnt(0)")
        A("v_writelane_b32 v9, s60, 60")
        A("v_writelane_b32 v9, s44, 61")
    A("s_barrier")
    if opt.stamp:
        A("s_memtime s[50:51]")
        A("s_memrealtime s[48:49]")
        A("s_waitcnt lgkmcnt(0)")
    if opt.spin:
        A("s_memrealtime s[66:67]")
        A("s_waitcnt lgkmcnt(0)")
    wr = wreads(0)
    order = []
    for tap in range(5):
        order.append(xread(tap)); order += wr[2*tap:2*tap+2]
    for q in range(5, 12): order.append(xread(q))
    tail = [o for o in order if set(o[1]) in Q1]
    head = [o for o in order if set(o[1]) not in Q1]
    tail.sort(key=lambda o: Q1.index(set(o[1])))
    assert len(tail) == len(Q1)
    ds.q = []; ds.t = []
    for k, (t, regs) in enumerate(head + tail):
        if len(ds.q) >= 14: ds.wait_n(8)
        ds.issue(t, regs)
    ds.wait_n(len(Q1))
    ds.setq(Q1, T1)
    A(".p2align 6")
    A("L_cloop:")
    body()
    A("s_cbranch_scc1 L_cloop")
    A("; @@final")
    A("L_final:")
    assert ds.getq()[0] == Q1

    TB = 10
    def epi_ops(j, PB):
        outs = []
        for p in range(2):
            for i in range(4):
                outs.append((acc(j, p) + i, acc(j, 2+p) + i, TB + 4*p + i))
        ops = []
        for (f, g, t) in outs: ops.append((4, f"v_mul_f32 v{t}, s36, v{f}"))
        for (f, g, t) in outs: ops.append((4, f"v_mul_f32 v{g}, s38, v{g}"))
        for (f, g, t) in outs: ops.append((8, f"v_exp_f32 v{t}, -|v{t}|"))
        for (f, g, t) in outs: ops.append((8, f"v_exp_f32 v{g}, v{g}"))
        for (f, g, t) in outs: ops.append((4, f"v_add_f32 v{g}, 1.0, v{g}"))
        for (f, g, t) in outs: ops.append((4, f"v_fmac_f32 v{g}, v{t}, v{g}"))
        for (f, g, t) in outs: ops.append((8, f"v_rcp_f32 v{g}, v{g}"))
        for (f, g, t) in outs: ops.append((4, f"v_fma_f32 v{t}, -v{t}, v{g}, v{g}"))
        for (f, g, t) in outs: ops.append((4, f"v_bfi_b32 v{t}, s42, v{t}, v{f}"))
        for k in range(4): ops.append((4, f"v_cvt_pk_bf16_f32 v{PB+k}, v{TB+2*k}, v{TB+2*k+1}"))
        fin = [(4, f"v_permlane16_swap_b32 v{PB}, v{PB+2}"), (4, f"v_permlane16_swap_b32 v{PB+1}, v{PB+3}")]
        if j >= 2: fin.append((4, f"s_mov_b32 s43, {4096*(j//2)}"))
        so = "0" if j < 2 else "s43"
        fin.append((4, f"buffer_store_dwordx4 v[{PB}:{PB+3}], v{V_OUT}, s[20:23], {so} offen offset:{2048*(j&1)}{opt.spol}"))
        return ops, fin

    tail_js = list(range(8))
    if not groups:
        phase(60); phase(61, barrier=True); phase(62); phase(63, wnext=False)
    else:
        assert sum(groups) == 8
        subs = []
        j0 = 0
        for gi, gsz in enumerate(groups):
            js = list(range(j0, j0+gsz)); j0 += gsz
            for ks in range(2):
                for nb in range(4):
                    subs.append(dict(g=gi, js=js, ks=ks, nb=nb))
        mf = []
        for si, sb in enumerate(subs):
            sb['start'] = len(mf)
            for ji, j in enumerate(sb['js']):
                for tap in (range(4, -1, -1) if (opt.snake and ji % 2 == 1) else range(5)):
                    mf.append(dict(sub=si, acc=acc(j, sb['nb']), tap=tap, xkey=(sb['g'], sb['ks'], j+tap)))
            sb['end'] = len(mf)
        NM = len(mf)
        post = {n: [] for n in range(NM)}
        for si in range(len(subs)-1):
            nx = subs[si+1]
            p = nx['nb'] & 1; half = nx['nb'] >> 1; st = (si+1) & 1
            vw = V_W[p] if nx['ks'] == 0 else VW2[p]
            L = subs[si]['end'] - subs[si]['start']
            k = 0
            for tap in range(5):
                for h in range(2):
                    r = WF(st, tap) + 2*h
                    off = half*WUNIT + tap*4096 + h*512
                    pos = subs[si]['start'] + (k * max(L-4, 10)) // 10
                    pos = min(pos, subs[si]['end']-1)
                    post[pos].append((f"ds_read_b64_tr_b16 a[{r}:{r+1}], v{vw} offset:{off}", [('a', r), ('a', r+1)]))
                    k += 1
        first = {}; last = {}
        for n, m in enumerate(mf):
            first.setdefault(m['xkey'], n); last[m['xkey']] = n
        slot_of = {}; slot_free = [-1]*12
        init = [k for k in first if k[0] == 0 and k[1] == 0]
        for k in init:
            slot_of[k] = k[2]; slot_free[k[2]] = last[k]
        rest = sorted([k for k in first if k not in slot_of], key=lambda k: first[k])
        for k in rest:
            sl = min(range(12), key=lambda i: slot_free[i])
            pos = slot_free[sl]
            pos = max(pos, first[k]-60, 0)
            assert first[k] - pos >= 14, (k, first[k], pos)
            slot_of[k] = sl; slot_free[sl] = last[k]
            g, ks, q = k
            r = XF(sl); regs = [('a', r+i) for i in range(4)]
            if q < 8: t = f"ds_read_b128 a[{r}:{r+3}], v{V_X0} offset:{q*4096 + ks*512}"
            else: t = f"ds_read_b128 a[{r}:{r+3}], v{V_X1[q-8]} offset:{ks*512}"
            post[pos].append((t, regs))
        bar_at = {}
        for si, sb in enumerate(subs):
            if sb['g'] == 0 and (sb['ks'], sb['nb']) in [(0, 2), (1, 0), (1, 2)]:
                bar_at[subs[si-1]['start']] = True
        fill = {n: [] for n in range(NM)}
        j0 = 0
        for gi, gsz in enumerate(groups[:-1]):
            js = list(range(j0, j0+gsz)); j0 += gsz
            ops = []
            pendfin = []
            for idx, j in enumerate(js):
                o, fin = epi_ops(j, 20 + 4*(j & 1))
                ops += o[:2] + pendfin + o[2:]
                pendfin = fin
            ops += [(4, "s_nop 1")] + pendfin
            g0 = min(sb['start'] for sb in subs if sb['g'] == gi+1) + 2
            g1 = max(sb['end'] for sb in subs if sb['g'] == gi+1)
            total = sum(c for c, _ in ops)
            used = {n: 4*len(post[n]) + (8 if n in bar_at else 0) for n in range(g0, g1)}
            free = sum(max(0, 8-used[n]) for n in range(g0, g1))
            extra = max(0, total - free)
            i = 0; carry = 0.0
            for n in range(g0, g1):
                budget = max(0, 8-used[n]) + extra/(g1-g0) + carry
                while i < len(ops) and ops[i][0] <= budget + 1e-9:
                    fill[n].append(ops[i][1]); budget -= ops[i][0]; i += 1
                carry = min(budget, 8)
            while i < len(ops):
                fill[g1-1].append(ops[i][1]); i += 1
            if opt.verbose: sys.stderr.write(f"group {gi}: valu {total} free {free} extra {extra}\n")
            for j in js: tail_js.remove(j)
        A("; ---- final chunk")
        def fstamp(idx):
            if opt.fstamp:
                A("s_memtime s[60:61]")
                ds.drain()
                A(f"v_writelane_b32 v9, s60, {idx}")
        fstamp(0)
        fi = 1
        for n, m in enumerate(mf):
            if opt.fstamp and n > 0 and n == subs[m['sub']]['start']:
                fstamp(fi); fi += 1
            if n in bar_at:
                ds.drain()
                if not opt.nobar: A("s_barrier")
            st = m['sub'] & 1
            mfma(m['acc'], WF(st, m['tap']), XF(slot_of[m['xkey']]))
            for (t, regs) in post[n]: ds.issue(t, regs)
            for t in fill[n]: A(t)
            if opt.tailshift and 100 <= n < 100 + opt.tailshift: A("s_nop 0")
    if opt.stamp:
        ds.drain()
        A("s_memtime s[52:53]")
        A("s_memrealtime s[54:55]")
        A("s_waitcnt lgkmcnt(0)")
    if opt.spin:
        ds.drain()
        A("s_memrealtime s[68:69]")
        A("s_waitcnt lgkmcnt(0)")
    A("; ---- epilogue")
    A("s_nop 7")
    def epi_math(j, PB):
        pairs = []
        for p in range(2):
            for h in range(2):
                f = acc(j, p) + 2*h; g = acc(j, 2+p) + 2*h
                pairs.append((f, g, TB + 2*(2*p+h), PB + 2*p + h))
        for (f, g, t, o) in pairs: A(f"v_pk_mul_f32 v[{t}:{t+1}], v[{f}:{f+1}], s[36:37]")
        for (f, g, t, o) in pairs: A(f"v_pk_mul_f32 v[{g}:{g+1}], v[{g}:{g+1}], s[38:39]")
        for (f, g, t, o) in pairs:
            A(f"v_exp_f32 v{t}, -|v{t}|"); A(f"v_exp_f32 v{t+1}, -|v{t+1}|")
        for (f, g, t, o) in pairs:
            A(f"v_exp_f32 v{g}, v{g}"); A(f"v_exp_f32 v{g+1}, v{g+1}")
        for (f, g, t, o) in pairs: A(f"v_pk_add_f32 v[{g}:{g+1}], v[{g}:{g+1}], 1.0 op_sel_hi:[1,0]")
        for (f, g, t, o) in pairs: A(f"v_pk_fma_f32 v[{g}:{g+1}], v[{t}:{t+1}], v[{g}:{g+1}], v[{g}:{g+1}]")
        for (f, g, t, o) in pairs:
            A(f"v_rcp_f32 v{g}, v{g}"); A(f"v_rcp_f32 v{g+1}, v{g+1}")
        for (f, g, t, o) in pairs: A(f"v_pk_fma_f32 v[{t}:{t+1}], v[{t}:{t+1}], v[{g}:{g+1}], v[{g}:{g+1}] neg_lo:[1,0,0] neg_hi:[1,0,0]")
        for (f, g, t, o) in pairs:
            A(f"v_bfi_b32 v{t}, s42, v{t}, v{f}"); A(f"v_bfi_b32 v{t+1}, s42, v{t+1}, v{f+1}")
        for (f, g, t, o) in pairs: A(f"v_cvt_pk_bf16_f32 v{o}, v{t}, v{t+1}")
        A("s_nop 1")
        A(f"v_permlane16_swap_b32 v{PB}, v{PB+2}")
        A(f"v_permlane16_swap_b32 v{PB+1}, v{PB+3}")
    def gstore(j, PB):
        if j >= 2: A(f"s_mov_b32 s43, {4096*(j//2)}")
        so = "0" if j < 2 else "s43"
        A(f"buffer_store_dwordx4 v[{PB}:{PB+3}], v{V_OUT}, s[20:23], {so} offen offset:{2048*(j&1)}{opt.spol}")
    if not opt.full:
        for j in tail_js:
            PB = 20 + 4*(j & 1)
            epi_math(j, PB)
            gstore(j, PB)
    else:
        gs = opt.full
        pend = []
        for j0 in range(0, 8, gs):
            for j in range(j0, j0+gs):
                PB = 20 + 4*(j & 1)
                epi_math(j, PB)
                A(f"ds_write_b128 v28, v[{PB}:{PB+3}] offset:{j*2048}")
                if pend:
                    jj = pend.pop(0)
                    A("s_waitcnt lgkmcnt(1)")
                    gstore(jj, 32 + 4*(jj & 1))
                    if pend: A(f"ds_read_b128 v[{32+4*(pend[0]&1)}:{35+4*(pend[0]&1)}], v29 offset:{pend[0]*2048}")
            while pend:
                jj = pend.pop(0)
                A("s_waitcnt lgkmcnt(0)")
                gstore(jj, 32 + 4*(jj & 1))
                if pend: A(f"ds_read_b128 v[{32+4*(pend[0]&1)}:{35+4*(pend[0]&1)}], v29 offset:{pend[0]*2048}")
            A("s_waitcnt lgkmcnt(0)")
            A("s_barrier")
            pend = list(range(j0, j0+gs))
            A(f"ds_read_b128 v[{32+4*(pend[0]&1)}:{35+4*(pend[0]&1)}], v29 offset:{pend[0]*2048}")
        while pend:
            jj = pend.pop(0)
            if pend: A(f"ds_read_b128 v[{32+4*(pend[0]&1)}:{35+4*(pend[0]&1)}], v29 offset:{pend[0]*2048}")
            A("s_waitcnt lgkmcnt(%d)" % (1 if pend else 0))
            gstore(jj, 32 + 4*(jj & 1))
            A("s_nop 0")
    if opt.spin:
        A("s_memrealtime s[64:65]")
        A("s_waitcnt lgkmcnt(0)")
        A("s_waitcnt vmcnt(0)")
        A("s_memrealtime s[70:71]")
        A("s_waitcnt lgkmcnt(0)")
        which, mult = opt.spin.split(',')
        a, b = {'pro': (62, 66), 'main': (66, 68), 'epi': (68, 70), 'epiv': (68, 64), 'drain': (64, 70), 'none': (70, 70)}[which]
        A(f"s_sub_u32 s43, s{b}, s{a}")
        A(f"s_mul_i32 s43, s43, {mult}")
        A("s_add_u32 s43, s43, s70")
        A("L_spin:")
        A("s_memrealtime s[60:61]")
        A("s_waitcnt lgkmcnt(0)")
        A("s_sub_u32 s42, s60, s43")
        A("s_cmp_lt_i32 s42, 0")
        A("s_cbranch_scc1 L_spin")
    if opt.stamp:
        A("s_waitcnt vmcnt(0)")
        A("s_memtime s[56:57]")
        A("s_memrealtime s[58:59]")
        A("s_waitcnt lgkmcnt(0)")
        if opt.dbgstamp:
            A("s_sub_u32 s60, s50, s44")
            A("s_sub_u32 s61, s48, s46")
            A("s_sub_u32 s62, s52, s50")
            A("s_sub_u32 s63, s54, s48")
            A("s_sub_u32 s64, s56, s52")
            A("s_sub_u32 s65, s56, s44")
            A("s_sub_u32 s66, s58, s46")
            A("s_mov_b32 s67, s46")
            A("s_cmp_lg_u32 s24, 0")
            A("s_cbranch_scc1 L_nostamp")
            A("s_mov_b32 s43, 0")
            A("s_cmp_eq_u32 s2, 0")
            A("s_cbranch_scc1 L_dostamp")
            A("s_mov_b32 s43, 32")
            A("s_cmp_eq_u32 s2, 133")
            A("s_cbranch_scc0 L_nostamp")
            A("L_dostamp:")
            A("s_mov_b32 s68, s40"); A("s_mov_b32 s69, s41"); A("s_mov_b32 s70, 256"); A("s_mov_b32 s71, 0x20000")
            A("v_mov_b32 v9, s43")
            A("s_mov_b64 exec, 1")
            for i in range(2):
                for k in range(4): A(f"v_mov_b32 v{12+k}, s{60+4*i+k}")
                A(f"buffer_store_dwordx4 v[12:15], v9, s[68:71], 0 offen offset:{16*i}")
                A("s_nop 1")
            A("L_nostamp:")
        else:
            A("s_mov_b32 s60, s40"); A("s_mov_b32 s61, s41"); A("s_mov_b32 s62, 0x10000000"); A("s_mov_b32 s63, 0x20000")
            if opt.kstamp or opt.fstamp:
                A("s_lshl_b32 s43, s2, 2"); A("s_add_u32 s43, s43, s24"); A("s_lshl_b32 s43, s43, 8")
                A("s_add_u32 s43, s43, 0x20000")
                A("v_lshlrev_b32 v12, 2, v0")
                A("v_add_u32 v12, s43, v12")
                A("buffer_store_dword v9, v12, s[60:63], 0 offen")
                A("s_nop 1")
            A("s_lshl_b32 s43, s2, 2"); A("s_add_u32 s43, s43, s24"); A("s_lshl_b32 s43, s43, 6")
            A("v_mov_b32 v9, s43")
            A("s_mov_b64 exec, 1")
            for i in range(4):
                for k in range(4): A(f"v_mov_b32 v{12+k}, s{44+4*i+k}")
                A(f"buffer_store_dwordx4 v[12:15], v9, s[60:63], 0 offen offset:{16*i}")
                A("s_nop 1")
    A("s_endpgm")
    A("L_codeend:")

    A('.section .rodata,"a"')
    A(".p2align 6")
    A(f".amdhsa_kernel {NAME}")
    A("  .amdhsa_next_free_vgpr 256")
    A("  .amdhsa_next_free_sgpr 96")
    A("  .amdhsa_accum_offset 168")
    A("  .amdhsa_group_segment_fixed_size 0")
    A("  .amdhsa_kernarg_size 40")
    A("  .amdhsa_user_sgpr_count 2")
    A("  .amdhsa_user_sgpr_kernarg_segment_ptr 1")
    A("  .amdhsa_system_sgpr_workgroup_id_x 1")
    A("  .amdhsa_float_denorm_mode_32 3")
    A(".end_amdhsa_kernel")
    if opt.meta:
        A(f""".amdgpu_metadata
---
amdhsa.version: [1, 2]
amdhsa.kernels:
  - .name: {NAME}
    .symbol: {NAME}.kd
    .kernarg_segment_size: 40
    .kernarg_segment_align: 8
    .group_segment_fixed_size: 0
    .private_segment_fixed_size: 0
    .wavefront_size: 64
    .sgpr_count: 96
    .vgpr_count: 256
    .max_flat_workgroup_size: 512
    .args:
      - {{.name: kernargs, .size: 40, .offset: 0, .value_kind: by_value}}
...
.end_amdgpu_metadata""")
    if opt.verbose: sys.stderr.write(f"loader waits: {Ns}\nloop: {Nl}\n")
    return A.text()

def parse(argv=None):
    ap = argparse.ArgumentParser()
    ap.add_argument("-o", default="/dev/stdout")
    for o in ["meta", "stamp", "dbgstamp", "nods", "nodma", "nodmaw", "nodmax", "nobar", "verbose", "lstamp", "touch", "cpf", "kstamp", "mzero", "snake", "fstamp", "pads", "pad8"]:
        ap.add_argument("--"+o, action="store_true")
    ap.add_argument("--spin", default="")
    ap.add_argument("--sched", default="")
    ap.add_argument("--otouch", type=int, default=0)
    ap.add_argument("--otpol", default="nt")
    ap.add_argument("--tailshift", type=int, default=0)
    ap.add_argument("--skip", type=int, default=0)
    ap.add_argument("--wmerge", type=int, default=0)
    ap.add_argument("--align", default="")
    ap.add_argument("--dsb", type=int, default=0)
    ap.add_argument("--groups", default="")
    ap.add_argument("--full", type=int, default=0)
    ap.add_argument("--rot", default="")
    ap.add_argument("--order", default="xwx")
    ap.add_argument("--cprio", type=int, default=0)
    ap.add_argument("--lprio", type=int, default=0)
    ap.add_argument("--npre", type=int, default=3)
    ap.add_argument("--wpol", default="")
    ap.add_argument("--xpol", default="")
    ap.add_argument("--spol", default="nt")
    opt = ap.parse_args(argv)
    for k in ["wpol", "xpol", "spol", "otpol"]:
        v = getattr(opt, k)
        if v: setattr(opt, k, " " + v)
    return opt

def offsets(text):
    import subprocess, tempfile, os, re
    L = text.split("\n")
    start = L.index("L_compute:")
    out = []
    for i, l in enumerate(L):
        if i > start and l and not l.startswith(('.', ';')) and not l.endswith(':') and i < L.index('L_codeend:'):
            out.append(f"LL_{i}:")
        out.append(l)
    d = tempfile.mkdtemp()
    open(d+"/a.s", "w").write("\n".join(out))
    subprocess.check_call(["clang", "-x", "assembler", "-target", "amdgcn-amd-amdhsa", "-mcpu=gfx950", "-c", d+"/a.s", "-o", d+"/a.o"])
    sym = subprocess.check_output(["llvm-readelf", "-s", "--wide", d+"/a.o"]).decode()
    addr = {}
    for line in sym.splitlines():
        p = line.split()
        if len(p) == 8 and p[0].endswith(':'):
            try: addr[p[7]] = int(p[1], 16)
            except ValueError: pass
    base = addr["L_page0"]
    return {int(k[3:]): v - base for k, v in addr.items() if k.startswith("LL_")}, addr

E64_OK = ("v_mul_f32", "v_add_f32", "v_fmac_f32", "v_exp_f32", "v_rcp_f32", "v_add_u32", "v_mov_b32")
def align8(text, first_label, last_marker=None):
    L = text.split("\n")
    tmp = list(L)
    missing = [f"L_pad{m}:" for m in range(NPADS) if f"L_pad{m}:" not in L and any(f"L_pad{m}" in x for x in L)]
    ci = tmp.index("L_codeend:")
    off, addr = offsets("\n".join(tmp[:ci+1] + missing + tmp[ci+1:]))
    idx = sorted(off)
    size = {}
    for a, b in zip(idx, idx[1:]): size[a] = off[b] - off[a]
    size[idx[-1]] = 4
    start = L.index(first_label + ":")
    stop = L.index(last_marker) if last_marker else ci
    par = None
    ins = {}
    cand = None
    nw = nn = 0
    for i in idx:
        if i < start or i >= stop: continue
        if par is None: par = off[i] % 8
        sz = size[i]
        op = L[i].split()[0]
        if sz == 8:
            if par == 4:
                if cand is not None:
                    o = L[cand].split()[0]
                    L[cand] = L[cand].replace(o, o + "_e64", 1); nw += 1
                else:
                    ins[i] = True; nn += 1
                par = 0
            cand = None
        else:
            par ^= 4
            if op in E64_OK and "|" not in L[i] and "0x" not in L[i]:
                cand = i
            if par == 0: cand = None if op not in E64_OK else cand
    for i in sorted(ins, reverse=True): L.insert(i, "s_nop 0")
    sys.stderr.write(f"align8: widened {nw}, nops {nn}\n")
    return "\n".join(L)

def add_pads(text):
    npad = 0
    for bound in range(4096, 8*4096, 4096):
        L = text.split("\n")
        tmp = list(L)
        missing = [f"L_pad{m}:" for m in range(NPADS) if f"L_pad{m}:" not in L]
        ci = tmp.index("L_codeend:")
        off, addr = offsets("\n".join(tmp[:ci+1] + missing + tmp[ci+1:]))
        cand = sorted(i for i, o in off.items() if o >= bound)
        if not cand: break
        i = cand[0]
        if i < L.index("L_cloop:"): continue
        assert i > L.index("; @@final") or ALLOW_LOOP_PAD, "page boundary inside the main loop"
        L[i:i] = [f"L_pad{npad}:", "s_cbranch_vccnz L_back", "s_nop 0"]
        npad += 1
        text = "\n".join(L)
    L = text.split("\n")
    for k in range(npad, NPADS):
        i = L.index(f"s_cbranch_scc1 L_pad{k}")
        del L[i-1:i+1]
    sys.stderr.write(f"pads: {npad}\n")
    return "\n".join(L)

ALLOW_LOOP_PAD = False
if __name__ == "__main__":
    opt = parse()
    t = gen(opt)
    if opt.align == 'all': t = align8(t, "L_cloop")
    if opt.align == 'final': t = align8(t, "L_final")
    if opt.align == 'loop': t = align8(t, "L_cloop", "; @@final")
    if opt.pads: t = add_pads(t)
    open(opt.o, "w").write(t)
```

```python
import sys, argparse

NAME = "standalone__autoregressive_conv_wavernn__speech_kernel"
XBATCH = 4096000
WBYTES = 5242880
WUNIT = 20480
XBASE = 4 * WUNIT
XBUF = 33792
LDS_BYTES = XBASE + 2 * XBUF

class Asm:
    def __init__(self):
        self.L = []
    def __call__(self, s):
        self.L.append(s)
    def text(self):
        return "\n".join(self.L) + "\n"

class DS:
    def __init__(self, A, T=0):
        self.A = A
        self.q = []
        self.t = []
        self.now = 0
        self.T = T
    def issue(self, text, regs):
        if self.T == 0 and len(self.q) >= 14:
            self.wait_n(10)
        self.A(text)
        self.q.append(set(regs)); self.t.append(self.now)
    def wait_n(self, n):
        n = min(n, 15)
        if len(self.q) > n:
            self.A(f"s_waitcnt lgkmcnt({n})")
            self.q = self.q[len(self.q)-n:] if n > 0 else []
            self.t = self.t[len(self.t)-n:] if n > 0 else []
    def need(self, regs):
        regs = set(regs)
        last = -1
        for i, s in enumerate(self.q):
            if s & regs:
                last = i
        if last >= 0:
            if self.T:
                while last + 1 < len(self.q) and self.t[last+1] <= self.now - self.T: last += 1
            self.wait_n(len(self.q) - 1 - last)
    def drain(self):
        self.A("s_waitcnt lgkmcnt(0)")
        self.q = []; self.t = []
    def setq(self, q, t):
        self.q = [set(x) for x in q]; self.t = [self.now + x for x in t]
    def getq(self):
        return [set(x) for x in self.q], [x - self.now for x in self.t]

ACC0 = 40
def acc(j, nb): return ACC0 + (j*4 + nb)*4
def areg(n): return f"a[{n}:{n+3}]"
def XF(q): return 4*q
def WF(st, tap): return 48 + st*20 + tap*4
V_W = [1, 2]
V_X0 = 3
V_X1 = [4, 5, 6, 7]
V_OUT = 8
S_K = 30; S_WD = 31; S_XD = 32; S_T = 33

NPADS = 3
def gen(opt):
    A = Asm()
    A("; Kernarg layout for this problem (40 bytes, ptrs only, base s[0:1]):")
    A(";   offset   0: d_in[0] x  shape=(2, 4000, 512) dtype=bfloat16")
    A(";   offset   8: d_in[1] w  shape=(5, 512, 1024) dtype=bfloat16")
    A(";   offset  16: d_out     shape=(2, 4000, 512) dtype=bfloat16")
    A("; waves 0-3 MFMA consumers, waves 4-7 LDS-DMA loaders.")
    A(f"; @launch grid=(256,1,1) block=(512,1,1) lds={LDS_BYTES}")
    A('.amdgcn_target "amdgcn-amd-amdhsa--gfx950"')
    A(".text")
    A(f".globl {NAME}")
    A(".p2align 8")
    A(f".type {NAME},@function")
    A(f"{NAME}:")
    A("s_cmp_ge_u32 s2, 256")
    A("s_cbranch_scc1 L_end")
    A("s_load_dwordx4 s[4:7], s[0:1], 0")
    A("s_load_dwordx2 s[8:9], s[0:1], 16")
    if opt.stamp:
        A("s_load_dwordx2 s[40:41], s[0:1], %d" % (24 if opt.dbgstamp else 32))
        A("s_memtime s[44:45]")
        A("s_memrealtime s[46:47]")
    if opt.spin:
        A("s_memrealtime s[62:63]")
    A("v_lshrrev_b32 v1, 6, v0")
    A("v_and_b32 v0, 63, v0")
    A("s_and_b32 s28, s2, 7")
    A("v_readfirstlane_b32 s24, v1")
    A("s_lshr_b32 s29, s2, 3")
    A("s_lshr_b32 s30, s28, 1")
    A("s_lshl_b32 s30, s30, 3")
    A("s_lshr_b32 s31, s29, 2")
    A("s_add_u32 s30, s30, s31")
    A("s_and_b32 s31, s28, 1")
    A("s_lshl_b32 s31, s31, 2")
    A("s_and_b32 s29, s29, 3")
    A("s_add_u32 s31, s31, s29")
    A("s_lshr_b32 s27, s30, 4")
    A("s_and_b32 s25, s30, 15")
    A("s_lshl_b32 s25, s25, 8")
    A("s_lshl_b32 s26, s31, 6")
    A(f"s_mul_i32 s28, s27, {XBATCH}")
    def emit_xoff():
        A("v_lshrrev_b32 v10, 5, v0")
        A("v_bfe_u32 v11, v0, 2, 3")
        A("v_and_b32 v12, 3, v0")
        A("v_lshrrev_b32 v13, 2, v11")
        A("v_lshlrev_b32 v13, 1, v13")
        A("v_xor_b32 v13, v13, v12")
        A("v_lshlrev_b32 v14, 6, v10")
        A("v_lshl_add_u32 v15, v13, 4, v14")
        A("v_lshl_add_u32 v16, v12, 4, v14")
        A("v_and_b32 v13, 1, v11")
        A("v_lshrrev_b32 v17, 1, v11")
        A("v_lshl_add_u32 v13, v17, 4, v13")
        A("s_lshl_b32 s35, s34, 6")
        A("s_add_u32 s35, s35, s25")
        A("s_sub_u32 s35, s35, 8")
        A("v_add_u32 v13, s35, v13")
        A("v_lshlrev_b32 v17, 10, v13")
        A("v_add_u32 v17, v17, v15")
        A("v_add_u32 v3, 0x2000, v17")
        A("v_bfrev_b32 v18, 1")
        A("v_cmp_gt_i32 vcc, 0, v13")
        A("s_add_u32 s35, s25, 248")
        A("v_add_u32 v11, s35, v11")
        A("v_cndmask_b32 v2, v17, v18, vcc")
        A("v_lshlrev_b32 v11, 10, v11")
        A("v_add_u32 v4, v11, v16")
        A("s_lshl_b32 s35, s34, 4")
        A("s_mov_b64 s[36:37], 0xffff")
        A("s_lshl_b64 s[36:37], s[36:37], s35")
        A(f"s_mov_b32 s14, {XBATCH}")
        A("s_mov_b32 s15, 0x20000")
    def emit_woff():
        A("v_lshrrev_b32 v10, 3, v0")
        A("v_and_b32 v11, 7, v0")
        A("v_lshrrev_b32 v12, 1, v11")
        A("v_bfe_u32 v13, v10, 1, 1")
        A("s_and_b32 s35, s34, 1")
        A("s_lshl_b32 s35, s35, 1")
        A("v_or_b32 v13, s35, v13")
        A("v_xor_b32 v12, v12, v13")
        A("v_lshlrev_b32 v12, 5, v12")
        A("v_and_b32 v11, 1, v11")
        A("v_lshl_add_u32 v12, v11, 4, v12")
        A("s_lshl_b32 s35, s34, 3")
        A("v_add_u32 v10, s35, v10")
        A("v_lshl_add_u32 v12, v10, 11, v12")
        A("s_lshl_b32 s35, s26, 1")
        A("v_add_u32 v1, s35, v12")
        A(f"s_mov_b32 s18, {WBYTES}")
        A("s_mov_b32 s19, 0x20000")
    def emit_xstate(first_chunk):
        A(f"s_mov_b32 s66, {128*first_chunk}")
        A(f"s_add_u32 s67, s38, {XBASE + XBUF*(first_chunk & 1)}")
        A(f"s_add_u32 s69, s38, {XBASE + XBUF*((first_chunk & 1) ^ 1)}")
        A("s_xor_b32 s69, s69, s67")
    vq = []
    xq = []
    def x_issue(c, part, half=None, q_=None):
        q_ = vq if q_ is None else q_
        if opt.nodmax and c > 1: return
        qs = range(0, 4) if part == 0 else range(4, 8)
        tag = ('XH', c) if half == 'hi' else ('X', c)
        if half == 'lo': A("s_mov_b32 exec_hi, 0")
        if half == 'hi': A("s_mov_b32 exec_lo, 0")
        for q in qs:
            A(f"s_add_u32 m0, s67, {q*4096}")
            if q < 4:
                A(f"s_add_u32 s68, s66, {2*q*1024}")
                A(f"buffer_load_dwordx4 v2, s[12:15], s68 offen{opt.xpol} lds")
            else:
                A(f"s_add_u32 s68, s66, {(2*q-8)*1024}")
                A(f"buffer_load_dwordx4 v3, s[12:15], s68 offen{opt.xpol} lds")
            q_.append(tag)
        if half: A("s_mov_b64 exec, -1")
        if part == 1 and half != 'hi':
            A(f"s_sub_u32 m0, s67, s38")
            A(f"s_add_u32 m0, m0, 32768")
            A("s_mov_b64 exec, s[36:37]")
            A(f"buffer_load_dwordx4 v4, s[12:15], s66 offen{opt.xpol} lds")
            A("s_mov_b64 exec, -1")
            q_.append(tag)
        if part == 1 and half != 'lo':
            A("s_add_u32 s66, s66, 128")
            A("s_xor_b32 s67, s67, s69")
    A("s_and_b32 s34, s24, 3")
    A("s_lshl_b32 s38, s34, 10")
    if opt.xsplit:
        A("s_cmp_ge_u32 s24, 4")
        A("s_cbranch_scc1 L_loader")
        if opt.lprio: A(f"s_setprio {opt.lprio}")
        emit_xoff()
        emit_xstate(0)
        A("s_waitcnt lgkmcnt(0)")
        A("s_add_u32 s12, s4, s28")
        A("s_addc_u32 s13, s5, 0")
        x_issue(0, 0, q_=xq); x_issue(0, 1, q_=xq)
        if opt.lprio: A("s_setprio 0")
        A("s_branch L_compute")
        A("L_loader:")
        if opt.lprio: A(f"s_setprio {opt.lprio}")
        emit_woff()
        A("s_mov_b32 s64, 0")
        A("s_mov_b32 s65, s38")
        A("s_waitcnt lgkmcnt(0)")
        A("s_mov_b32 s16, s6")
        A("s_mov_b32 s17, s7")
    else:
        A("s_cmp_lt_u32 s24, 4")
        A("s_cbranch_scc1 L_compute")
        if opt.lprio: A(f"s_setprio {opt.lprio}")
        emit_xoff()
        emit_woff()
        A("s_mov_b32 s64, 0")
        A("s_mov_b32 s65, s38")
        emit_xstate(0)
        A("s_waitcnt lgkmcnt(0)")
        A("s_add_u32 s12, s4, s28")
        A("s_addc_u32 s13, s5, 0")
        A("s_mov_b32 s16, s6")
        A("s_mov_b32 s17, s7")

    def w_issue(u):
        if opt.nodmaw and u > 3: return
        for tap in range(5):
            if tap == 0:
                A("s_mov_b32 m0, s65")
                A("s_mov_b32 s68, s64")
            else:
                A("s_add_u32 m0, m0, 4096")
                A("s_add_u32 s68, s68, 0x100000")
            A(f"buffer_load_dwordx4 v1, s[16:19], s68 offen{opt.wpol} lds")
            vq.append(('W', u))
        if u & 1:
            A(f"s_add_u32 s64, s64, {65536-1024}")
            if opt.rot: A("s_and_b32 s64, s64, 0xfffff")
        else: A("s_add_u32 s64, s64, 1024")
        if (u & 3) == 3: A(f"s_sub_u32 s65, s65, {3*WUNIT}")
        else: A(f"s_add_u32 s65, s65, {WUNIT}")
    def need_n(u):
        need = [('W', u)]
        if u % 4 == 0: need.append(('X', u//4))
        if u == 2: need.append(('XH', 0))
        last = -1
        for i, t in enumerate(vq):
            if t in need: last = i
        return len(vq) - 1 - last if last >= 0 else None
    def wait_for(u, n=None):
        nn = need_n(u)
        if n is None: n = nn
        assert nn is None or n <= nn
        if n is not None and n <= len(vq):
            A(f"s_waitcnt vmcnt({n})")
            del vq[:len(vq)-n]
    sched = {}
    if opt.sched:
        for part in opt.sched.split(';'):
            k, v = part.split(':')
            sched[k] = v.split(',') if v else []
    U0 = 3 if not opt.sched else max(int(k) for k in sched if k != 'pre') + 1
    while U0 % 4 != 3: U0 += 1
    def do_item(it):
        if it[0] == 'w': w_issue(int(it[1:]))
        elif it == 'xl': x_issue(0, 0, 'lo'); x_issue(0, 1, 'lo')
        elif it == 'xla': x_issue(0, 0, 'lo')
        elif it == 'xlb': x_issue(0, 1, 'lo')
        elif it == 'xh': x_issue(0, 0, 'hi'); x_issue(0, 1, 'hi')
        elif it[0] == 'x': x_issue(int(it[1]), 0 if it[2] == 'a' else 1)
    def issues(u):
        if str(u) in sched: return sched[str(u)]
        r = []
        if u + 3 <= 31 and u + 3 >= opt.npre: r.append(f'w{u+3}')
        if u == 1: r.append('x1a')
        elif u == 2: r.append('x1b')
        elif u % 4 == 3 and u//4 + 2 <= 7: r.append(f'x{u//4+2}a')
        elif u % 4 == 0 and u >= 4 and u//4 + 1 <= 7: r.append(f'x{u//4+1}b')
        return r
    def interval(u, nfix=None):
        wait_for(u, nfix)
        if not (opt.nobar and u > 0): A("s_barrier")
        if opt.nodma: return
        for it in issues(u): do_item(it)
    def lst(i):
        if opt.lstamp: A(f"s_memtime s[{72+2*i}:{73+2*i}]")
    lst(0)
    if opt.xsplit:
        pre = sched.get('pre', [f'w{u}' for u in range(0, opt.npre)])
    else:
        pre = sched.get('pre', ['x0a', 'w0', 'x0b'] + [f'w{u}' for u in range(1, opt.npre)])
    for ii, it in enumerate(pre):
        do_item(it)
        if ii < 3: lst(1+ii)
    if opt.xsplit:
        emit_xoff()
        emit_xstate(1)
        A("s_add_u32 s12, s4, s28")
        A("s_addc_u32 s13, s5, 0")
    lst(4)
    if opt.lstamp:
        sv = list(vq)
        wait_for(0)
        lst(5)
        A("s_waitcnt lgkmcnt(0)")
        A("s_mov_b32 s84, s40"); A("s_mov_b32 s85, s41"); A("s_mov_b32 s86, 0x10000000"); A("s_mov_b32 s87, 0x20000")
        A("s_lshl_b32 s43, s2, 2"); A("s_add_u32 s43, s43, s34"); A("s_lshl_b32 s43, s43, 6")
        A("s_add_u32 s43, s43, 0x10000")
        A("v_mov_b32 v9, s43")
        A("s_mov_b64 exec, 1")
        regs = [44,45,46,47,72,73,74,75,76,77,78,79,80,81,82,83]
        for i in range(4):
            for k in range(4): A(f"v_mov_b32 v{20+k}, s{regs[4*i+k]}")
            A(f"buffer_store_dwordx4 v[20:23], v9, s[84:87], 0 offen offset:{16*i}")
            A("s_nop 1")
        A("s_mov_b64 exec, -1")
        A("s_waitcnt vmcnt(0)")
        vq[:] = sv
    saveL = list(A.L); savevq = list(vq)
    Ns = {}
    for u in range(32):
        Ns[u] = need_n(u)
        interval(u)
    A.L = saveL; vq[:] = savevq
    for u in range(0, U0): interval(u)
    Nl = {m: min([Ns[u] for u in range(U0, 27) if u % 4 == m and Ns[u] is not None] or [0]) for m in range(4)}
    A("s_mov_b32 s70, 0")
    A("L_lloop:")
    for u in range(U0, U0+4): interval(u, nfix=Nl[u % 4])
    A("s_add_u32 s70, s70, 1")
    A(f"s_cmp_lt_u32 s70, {(27-U0)//4}")
    A("s_cbranch_scc1 L_lloop")
    saveL = list(A.L)
    for u in range(U0+4, 27): interval(u, nfix=Nl[u % 4])
    A.L = saveL
    for u in range(27, 32):
        interval(u)
        if opt.otouch and u == opt.otouch:
            A("s_add_u32 s20, s8, s28")
            A("s_addc_u32 s21, s9, 0")
            A(f"s_mov_b32 s22, {XBATCH}")
            A("s_mov_b32 s23, 0x20000")
            A("s_lshr_b32 s40, s34, 1")
            A("s_and_b32 s41, s34, 1")
            A("v_and_b32 v11, 15, v0")
            A("v_and_b32 v13, 1, v11")
            A("v_lshrrev_b32 v14, 1, v11")
            A("v_lshl_add_u32 v13, v14, 4, v13")
            A("s_lshl_b32 s40, s40, 7")
            A("s_add_u32 s40, s40, s25")
            A("v_add_u32 v13, s40, v13")
            A("v_lshrrev_b32 v14, 4, v0")
            A("v_lshl_add_u32 v13, v14, 2, v13")
            A("v_lshlrev_b32 v13, 10, v13")
            A("s_lshl_b32 s41, s41, 5")
            A("s_add_u32 s41, s41, s26")
            A("s_lshl_b32 s41, s41, 1")
            A("v_add_u32 v13, s41, v13")
            A(f"buffer_load_dword v14, v13, s[20:23], 0 offen{opt.otpol}")
    A("L_end:")
    A("s_endpgm")

    A(".p2align 12" if opt.pads else ".p2align 6")
    A("L_page0:")
    if opt.skip: A(f".fill {opt.skip//4}, 4, 0xBF800000")
    A("L_compute:")
    if opt.cprio: A(f"s_setprio {opt.cprio}")
    if opt.cpf:
        A("s_getpc_b64 s[60:61]")
        A("L_pc:")
        A("v_lshlrev_b32 v28, 7, v0")
        A("s_lshl_b32 s62, s24, 13")
        A("v_add_u32 v28, s62, v28")
        A("s_mov_b32 s62, L_codeend-L_pc-4")
        A("v_min_u32 v28, s62, v28")
        A("v_mov_b32 v29, s61")
        A("v_add_co_u32 v28, vcc, s60, v28")
        A("s_nop 1")
        A("v_addc_co_u32 v29, vcc, 0, v29, vcc")
        A("global_load_dword v9, v[28:29], off")
    A("s_lshr_b32 s34, s24, 1")
    A("s_and_b32 s35, s24, 1")
    A("v_lshrrev_b32 v10, 4, v0")
    A("v_and_b32 v11, 15, v0")
    A("v_lshrrev_b32 v12, 2, v11")
    A("v_lshl_add_u32 v12, v10, 3, v12")
    A("v_lshlrev_b32 v12, 7, v12")
    A("v_and_b32 v13, 3, v11")
    A("v_lshl_add_u32 v12, v13, 3, v12")
    A("v_lshrrev_b32 v13, 3, v11")
    A("v_and_b32 v14, 1, v10")
    A("v_lshl_or_b32 v13, v14, 1, v13")
    A("s_lshl_b32 s36, s35, 1")
    for p in range(2):
        A(f"s_add_u32 s37, s36, {p}")
        A("v_xor_b32 v14, s37, v13")
        A(f"v_lshl_add_u32 v{V_W[p]}, v14, 5, v12")
    A("s_lshl_b32 s36, s34, 4")
    def xaddr(dst, Rreg):
        A(f"v_lshrrev_b32 v15, 3, v{Rreg}")
        A(f"v_lshlrev_b32 v15, 10, v15")
        A(f"v_and_b32 v16, 7, v{Rreg}")
        A(f"v_lshl_add_u32 v15, v16, 6, v15")
        A(f"v_bfe_u32 v16, v{Rreg}, 2, 1")
        A(f"v_lshlrev_b32 v16, 1, v16")
        A(f"v_xor_b32 v16, v16, v10")
        A(f"v_lshl_add_u32 v15, v16, 4, v15")
        A(f"v_add_u32 v{dst}, {XBASE}, v15")
    A("v_add_u32 v13, s36, v11")
    xaddr(V_X0, 13)
    A("v_add_u32 v13, 2, v13")
    xaddr(17, 13)
    A("v_and_b32 v16, 1, v13")
    A("v_lshlrev_b32 v16, 6, v16")
    A("v_lshl_add_u32 v16, v10, 4, v16")
    A(f"v_add_u32 v16, {XBASE+32768}, v16")
    A("v_cmp_le_u32 vcc, 32, v13")
    for q in range(4):
        A(f"v_add_u32 v18, {q*4096}, v17")
        A(f"v_add_u32 v19, {q*128}, v16")
        A(f"v_cndmask_b32 v{V_X1[q]}, v18, v19, vcc")
    A("v_and_b32 v13, 1, v11")
    A("v_lshrrev_b32 v14, 1, v11")
    A("v_lshl_add_u32 v13, v14, 4, v13")
    A("s_lshl_b32 s36, s34, 7")
    A("s_add_u32 s36, s36, s25")
    A("v_add_u32 v13, s36, v13")
    A("v_lshlrev_b32 v13, 10, v13")
    A("v_and_b32 v14, 1, v10")
    A("v_lshlrev_b32 v14, 5, v14")
    A("v_lshrrev_b32 v15, 1, v10")
    A("v_lshl_add_u32 v14, v15, 4, v14")
    A("s_lshl_b32 s36, s35, 5")
    A("s_add_u32 s36, s36, s26")
    A("s_lshl_b32 s36, s36, 1")
    A("v_add_u32 v13, s36, v13")
    A(f"v_add_u32 v{V_OUT}, v13, v14")
    if opt.full:
        A("v_and_b32 v13, 1, v10")
        A("v_lshlrev_b32 v13, 1, v13")
        A("v_lshrrev_b32 v14, 1, v10")
        A("v_or_b32 v13, v13, v14")
        A("s_lshl_b32 s43, s35, 2")
        A("v_add_u32 v13, s43, v13")
        A("v_and_b32 v14, 7, v11")
        A("v_xor_b32 v13, v13, v14")
        A("v_lshlrev_b32 v13, 4, v13")
        A("v_lshl_add_u32 v13, v11, 7, v13")
        A("s_lshl_b32 s43, s34, 14")
        A("v_add_u32 v28, s43, v13")
        A("v_lshrrev_b32 v13, 3, v0")
        A("v_and_b32 v14, 7, v0")
        A("v_xor_b32 v15, v13, v14")
        A("v_lshlrev_b32 v15, 4, v15")
        A("s_lshl_b32 s21, s35, 3")
        A("v_add_u32 v13, s21, v13")
        A("v_lshl_add_u32 v15, v13, 7, v15")
        A("v_add_u32 v29, s43, v15")
        A("v_and_b32 v15, 1, v13")
        A("v_lshrrev_b32 v16, 1, v13")
        A("v_lshl_add_u32 v15, v16, 4, v15")
        A("s_lshl_b32 s43, s34, 7")
        A("s_add_u32 s43, s43, s25")
        A("v_add_u32 v15, s43, v15")
        A("v_lshlrev_b32 v15, 10, v15")
        A("v_lshl_add_u32 v15, v14, 4, v15")
        A("s_lshl_b32 s43, s26, 1")
        A(f"v_add_u32 v{V_OUT}, s43, v15")
    if opt.mzero:
        for r in range(4): A(f"v_mov_b32 v{32+r}, 0")
        A("s_nop 1")
        for b in range(8):
            A(f"v_mfma_f32_32x32x16_bf16 v[{ACC0+16*b}:{ACC0+16*b+15}], v[32:35], v[32:35], 0")
    else:
        for r in range(128):
            A(f"v_mov_b32 v{ACC0+r}, 0")
    A(f"s_mov_b32 s22, {XBATCH}")
    A("s_mov_b32 s23, 0x20000")
    A(f"s_mov_b32 s{S_K}, 0")
    A(f"s_mov_b32 s{S_XD}, {XBUF}")
    A(f"v_add_u32 v30, {2*WUNIT}, v{V_W[0]}")
    A(f"v_add_u32 v31, {2*WUNIT}, v{V_W[1]}")
    A("s_mov_b32 s36, 0x4038aa3b")
    A("s_mov_b32 s37, 0x4038aa3b")
    A("s_mov_b32 s38, 0xbfb8aa3b")
    A("s_mov_b32 s39, 0xbfb8aa3b")
    A("s_mov_b32 s42, 0x7fffffff")
    A("s_waitcnt lgkmcnt(0)")
    A("s_add_u32 s20, s8, s28")
    A("s_addc_u32 s21, s9, 0")
    if opt.pads:
        A("s_mov_b64 vcc, -1")
        for k in range(NPADS):
            A(f"s_cmp_eq_u32 s24, {k}")
            A(f"s_cbranch_scc1 L_pad{k}")
        A("L_back:")
        A("s_mov_b64 vcc, 0")
    if opt.touch:
        A(f"buffer_load_dword v9, v{V_OUT}, s[20:23], 0 offen")
    ds = DS(A, opt.wmerge)
    VW2 = [30, 31]
    def wreads(phi_next):
        p = phi_next & 1; half = (phi_next >> 1) & 1; st = phi_next & 1
        vw = VW2[p] if (phi_next >> 2) & 1 else V_W[p]
        out = []
        for tap in range(5):
            for h in range(2):
                r = WF(st, tap) + 2*h
                off = half*WUNIT + tap*4096 + h*512
                out.append((f"ds_read_b64_tr_b16 a[{r}:{r+1}], v{vw} offset:{off}", [('a', r), ('a', r+1)]))
        return out
    def xread(q, ks=0):
        r = XF(q)
        regs = [('a', r+i) for i in range(4)]
        if q < 8:
            return (f"ds_read_b128 a[{r}:{r+3}], v{V_X0} offset:{q*4096 + ks*512}", regs)
        return (f"ds_read_b128 a[{r}:{r+3}], v{V_X1[q-8]} offset:{ks*512}", regs)

    def mfma(a, wf, xf):
        ds.need([('a', wf+i) for i in range(4)] + [('a', xf+i) for i in range(4)])
        A(f"v_mfma_f32_16x16x32_bf16 v[{a}:{a+3}], {areg(wf)}, {areg(xf)}, v[{a}:{a+3}]")
        ds.now += 1

    def phase(phi, wnext=True, xreload=False, barrier=False, extra=None):
        nb = phi & 3; st = phi & 1
        A(f"; ---- phase {phi}")
        if barrier:
            if opt.kstamp:
                A("s_memtime s[60:61]")
            ds.drain()
            if opt.kstamp:
                A(f"s_lshl_b32 s62, s{S_K}, 2")
                A(f"s_add_u32 m0, s62, {(phi & 7) >> 1}")
                A("s_nop 0")
                A("v_writelane_b32 v9, s60, m0")
            if not opt.nobar: A("s_barrier")
            if opt.kstamp:
                A("s_memtime s[60:61]")
                A("s_waitcnt lgkmcnt(0)")
                A("s_add_u32 m0, m0, 32")
                A("s_nop 0")
                A("v_writelane_b32 v9, s60, m0")
        post = {n: [] for n in range(40)}
        order = []
        for j in range(8):
            taps = list(range(5))
            if opt.snake and j % 2 == 1: taps.reverse()
            for tap in taps: order.append((j, tap))
        if wnext:
            for i, rd in enumerate(wreads(phi+1)):
                post[(5*(i//2)+4) if opt.dsb else 2*i].append(rd)
        if xreload:
            for q in range(12):
                lastn = max(n for n, (j, tap) in enumerate(order) if j + tap == q)
                if opt.dsb: lastn = 5*(lastn//5) + 4
                post[lastn].append(xread(q, ((phi+1) >> 2) & 1))
        if opt.dsb and extra:
            ex2 = {}
            for n, v in extra.items(): ex2.setdefault(min(5*(n//5)+4, 39) if opt.dsb > 1 else n, []).extend(v)
            extra = ex2
        for n, (j, tap) in enumerate(order):
            mfma(acc(j, nb), WF(st, tap), XF(j+tap))
            for (t, regs) in post[n]:
                if opt.nods: continue
                ds.issue(t, regs)
            if extra and n in extra:
                for t in extra[n]: A(t)

    groups = [int(g) for g in opt.groups.split(',')] if opt.groups else None
    assert groups
    NIT = 7
    xupd = {3: [f"v_add_u32 v{V_X0}, s{S_XD}, v{V_X0}"],
            7: [f"v_add_u32 v{V_X1[0]}, s{S_XD}, v{V_X1[0]}"],
            23: [f"v_add_u32 v{V_X1[1]}, s{S_XD}, v{V_X1[1]}"],
            27: [f"v_add_u32 v{V_X1[2]}, s{S_XD}, v{V_X1[2]}"],
            31: [f"v_add_u32 v{V_X1[3]}, s{S_XD}, v{V_X1[3]}"],
            35: [f"s_sub_u32 s{S_XD}, 0, s{S_XD}"]}
    def body():
        phase(0)
        phase(1, barrier=True)
        phase(2)
        phase(3, barrier=True, xreload=True)
        phase(4)
        phase(5, barrier=True, extra=xupd)
        phase(6, extra={25: [f"s_add_u32 s{S_K}, s{S_K}, 1"]})
        phase(7, barrier=True, xreload=True, extra={33: [f"s_cmp_lt_u32 s{S_K}, {NIT}"]})
    saveL = list(A.L)
    ds.q = []; ds.t = []; body(); Q1, T1 = ds.getq()
    body(); Q2, T2 = ds.getq()
    assert Q1 == Q2 and T1 == T2, (Q1, Q2)
    A.L = saveL
    if opt.fstamp:
        A("s_memtime s[60:61]")
        A("s_waitcnt lgkmcnt(0)")
        A("v_writelane_b32 v9, s60, 60")
        A("v_writelane_b32 v9, s44, 61")
    if opt.xsplit: A("s_waitcnt vmcnt(0)")
    A("s_barrier")
    if opt.stamp:
        A("s_memtime s[50:51]")
        A("s_memrealtime s[48:49]")
        A("s_waitcnt lgkmcnt(0)")
    if opt.spin:
        A("s_memrealtime s[66:67]")
        A("s_waitcnt lgkmcnt(0)")
    wr = wreads(0)
    order = []
    for tap in range(5):
        order.append(xread(tap)); order += wr[2*tap:2*tap+2]
    for q in range(5, 12): order.append(xread(q))
    tail = [o for o in order if set(o[1]) in Q1]
    head = [o for o in order if set(o[1]) not in Q1]
    tail.sort(key=lambda o: Q1.index(set(o[1])))
    assert len(tail) == len(Q1)
    ds.q = []; ds.t = []
    for k, (t, regs) in enumerate(head + tail):
        if len(ds.q) >= 14: ds.wait_n(8)
        ds.issue(t, regs)
    ds.wait_n(len(Q1))
    ds.setq(Q1, T1)
    A(".p2align 6")
    A("L_cloop:")
    body()
    A("s_cbranch_scc1 L_cloop")
    A("; @@final")
    A("L_final:")
    assert ds.getq()[0] == Q1

    TB = 10
    def epi_ops(j, PB):
        outs = []
        for p in range(2):
            for i in range(4):
                outs.append((acc(j, p) + i, acc(j, 2+p) + i, TB + 4*p + i))
        ops = []
        for (f, g, t) in outs: ops.append((4, f"v_mul_f32 v{t}, s36, v{f}"))
        for (f, g, t) in outs: ops.append((4, f"v_mul_f32 v{g}, s38, v{g}"))
        for (f, g, t) in outs: ops.append((8, f"v_exp_f32 v{t}, -|v{t}|"))
        for (f, g, t) in outs: ops.append((8, f"v_exp_f32 v{g}, v{g}"))
        for (f, g, t) in outs: ops.append((4, f"v_bfi_b32 v{f}, s42, 1.0, v{f}"))
        for (f, g, t) in outs: ops.append((4, f"v_fmac_f32 v{f}, v{t}, v{f}"))
        for (f, g, t) in outs: ops.append((4, f"v_fmac_f32 v{f}, v{g}, v{f}"))
        for (f, g, t) in outs: ops.append((8, f"v_rcp_f32 v{f}, v{f}"))
        for (f, g, t) in outs: ops.append((4, f"v_fma_f32 v{t}, -v{t}, v{f}, v{f}"))
        for k in range(4): ops.append((4, f"v_cvt_pk_bf16_f32 v{PB+k}, v{TB+2*k}, v{TB+2*k+1}"))
        fin = [(4, f"v_permlane16_swap_b32 v{PB}, v{PB+2}"), (4, f"v_permlane16_swap_b32 v{PB+1}, v{PB+3}")]
        if j >= 2: fin.append((4, f"s_mov_b32 s43, {4096*(j//2)}"))
        so = "0" if j < 2 else "s43"
        fin.append((4, f"buffer_store_dwordx4 v[{PB}:{PB+3}], v{V_OUT}, s[20:23], {so} offen offset:{2048*(j&1)}{opt.spol}"))
        return ops, fin

    tail_js = list(range(8))
    if not groups:
        phase(60); phase(61, barrier=True); phase(62); phase(63, wnext=False)
    else:
        assert sum(groups) == 8
        subs = []
        j0 = 0
        for gi, gsz in enumerate(groups):
            js = list(range(j0, j0+gsz)); j0 += gsz
            for ks in range(2):
                for nb in range(4):
                    subs.append(dict(g=gi, js=js, ks=ks, nb=nb))
        mf = []
        for si, sb in enumerate(subs):
            sb['start'] = len(mf)
            for ji, j in enumerate(sb['js']):
                for tap in (range(4, -1, -1) if (opt.snake and ji % 2 == 1) else range(5)):
                    mf.append(dict(sub=si, acc=acc(j, sb['nb']), tap=tap, xkey=(sb['g'], sb['ks'], j+tap)))
            sb['end'] = len(mf)
        NM = len(mf)
        post = {n: [] for n in range(NM)}
        for si in range(len(subs)-1):
            nx = subs[si+1]
            p = nx['nb'] & 1; half = nx['nb'] >> 1; st = (si+1) & 1
            vw = V_W[p] if nx['ks'] == 0 else VW2[p]
            L = subs[si]['end'] - subs[si]['start']
            k = 0
            for tap in range(5):
                for h in range(2):
                    r = WF(st, tap) + 2*h
                    off = half*WUNIT + tap*4096 + h*512
                    pos = subs[si]['start'] + (k * max(L-4, 10)) // 10
                    pos = min(pos, subs[si]['end']-1)
                    post[pos].append((f"ds_read_b64_tr_b16 a[{r}:{r+1}], v{vw} offset:{off}", [('a', r), ('a', r+1)]))
                    k += 1
        first = {}; last = {}
        for n, m in enumerate(mf):
            first.setdefault(m['xkey'], n); last[m['xkey']] = n
        slot_of = {}; slot_free = [-1]*12
        init = [k for k in first if k[0] == 0 and k[1] == 0]
        for k in init:
            slot_of[k] = k[2]; slot_free[k[2]] = last[k]
        rest = sorted([k for k in first if k not in slot_of], key=lambda k: first[k])
        for k in rest:
            sl = min(range(12), key=lambda i: slot_free[i])
            pos = slot_free[sl]
            pos = max(pos, first[k]-60, 0)
            assert first[k] - pos >= 14, (k, first[k], pos)
            slot_of[k] = sl; slot_free[sl] = last[k]
            g, ks, q = k
            r = XF(sl); regs = [('a', r+i) for i in range(4)]
            if q < 8: t = f"ds_read_b128 a[{r}:{r+3}], v{V_X0} offset:{q*4096 + ks*512}"
            else: t = f"ds_read_b128 a[{r}:{r+3}], v{V_X1[q-8]} offset:{ks*512}"
            post[pos].append((t, regs))
        bar_at = {}
        for si, sb in enumerate(subs):
            if sb['g'] == 0 and (sb['ks'], sb['nb']) in [(0, 2), (1, 0), (1, 2)]:
                bar_at[subs[si-1]['start']] = True
        fill = {n: [] for n in range(NM)}
        j0 = 0
        for gi, gsz in enumerate(groups[:-1]):
            js = list(range(j0, j0+gsz)); j0 += gsz
            ops = []
            pendfin = []
            for idx, j in enumerate(js):
                o, fin = epi_ops(j, 20 + 4*(j & 1))
                ops += o[:2] + pendfin + o[2:]
                pendfin = fin
            ops += [(4, "s_nop 1")] + pendfin
            g0 = min(sb['start'] for sb in subs if sb['g'] == gi+1) + 2
            g1 = max(sb['end'] for sb in subs if sb['g'] == gi+1)
            total = sum(c for c, _ in ops)
            used = {n: 4*len(post[n]) + (8 if n in bar_at else 0) for n in range(g0, g1)}
            free = sum(max(0, 8-used[n]) for n in range(g0, g1))
            extra = max(0, total - free)
            i = 0; carry = 0.0
            for n in range(g0, g1):
                budget = max(0, 8-used[n]) + extra/(g1-g0) + carry
                while i < len(ops) and ops[i][0] <= budget + 1e-9:
                    fill[n].append(ops[i][1]); budget -= ops[i][0]; i += 1
                carry = min(budget, 8)
            while i < len(ops):
                fill[g1-1].append(ops[i][1]); i += 1
            if opt.verbose: sys.stderr.write(f"group {gi}: valu {total} free {free} extra {extra}\n")
            for j in js: tail_js.remove(j)
        A("; ---- final chunk")
        def fstamp(idx):
            if opt.fstamp:
                A("s_memtime s[60:61]")
                ds.drain()
                A(f"v_writelane_b32 v9, s60, {idx}")
        fstamp(0)
        fi = 1
        for n, m in enumerate(mf):
            if opt.fstamp and n > 0 and n == subs[m['sub']]['start']:
                fstamp(fi); fi += 1
            if n in bar_at:
                ds.drain()
                if not opt.nobar: A("s_barrier")
            st = m['sub'] & 1
            mfma(m['acc'], WF(st, m['tap']), XF(slot_of[m['xkey']]))
            for (t, regs) in post[n]: ds.issue(t, regs)
            for t in fill[n]: A(t)
            if opt.tailshift and 100 <= n < 100 + opt.tailshift: A("s_nop 0")
    if opt.stamp:
        ds.drain()
        A("s_memtime s[52:53]")
        A("s_memrealtime s[54:55]")
        A("s_waitcnt lgkmcnt(0)")
    if opt.spin:
        ds.drain()
        A("s_memrealtime s[68:69]")
        A("s_waitcnt lgkmcnt(0)")
    A("; ---- epilogue")
    A("s_nop 7")
    def epi_math(j, PB):
        pairs = []
        for p in range(2):
            for h in range(2):
                f = acc(j, p) + 2*h; g = acc(j, 2+p) + 2*h
                pairs.append((f, g, TB + 2*(2*p+h), PB + 2*p + h))
        for (f, g, t, o) in pairs: A(f"v_pk_mul_f32 v[{t}:{t+1}], v[{f}:{f+1}], s[36:37]")
        for (f, g, t, o) in pairs: A(f"v_pk_mul_f32 v[{g}:{g+1}], v[{g}:{g+1}], s[38:39]")
        for (f, g, t, o) in pairs:
            A(f"v_exp_f32 v{t}, -|v{t}|"); A(f"v_exp_f32 v{t+1}, -|v{t+1}|")
        for (f, g, t, o) in pairs:
            A(f"v_exp_f32 v{g}, v{g}"); A(f"v_exp_f32 v{g+1}, v{g+1}")
        for (f, g, t, o) in pairs:
            A(f"v_bfi_b32 v{f}, s42, 1.0, v{f}"); A(f"v_bfi_b32 v{f+1}, s42, 1.0, v{f+1}")
        for (f, g, t, o) in pairs: A(f"v_pk_fma_f32 v[{f}:{f+1}], v[{t}:{t+1}], v[{f}:{f+1}], v[{f}:{f+1}]")
        for (f, g, t, o) in pairs: A(f"v_pk_fma_f32 v[{f}:{f+1}], v[{g}:{g+1}], v[{f}:{f+1}], v[{f}:{f+1}]")
        for (f, g, t, o) in pairs:
            A(f"v_rcp_f32 v{f}, v{f}"); A(f"v_rcp_f32 v{f+1}, v{f+1}")
        for (f, g, t, o) in pairs: A(f"v_pk_fma_f32 v[{t}:{t+1}], v[{t}:{t+1}], v[{f}:{f+1}], v[{f}:{f+1}] neg_lo:[1,0,0] neg_hi:[1,0,0]")
        for (f, g, t, o) in pairs: A(f"v_cvt_pk_bf16_f32 v{o}, v{t}, v{t+1}")
        A("s_nop 1")
        A(f"v_permlane16_swap_b32 v{PB}, v{PB+2}")
        A(f"v_permlane16_swap_b32 v{PB+1}, v{PB+3}")
    def gstore(j, PB):
        if j >= 2: A(f"s_mov_b32 s43, {4096*(j//2)}")
        so = "0" if j < 2 else "s43"
        A(f"buffer_store_dwordx4 v[{PB}:{PB+3}], v{V_OUT}, s[20:23], {so} offen offset:{2048*(j&1)}{opt.spol}")
    if not opt.full:
        for j in tail_js:
            PB = 20 + 4*(j & 1)
            epi_math(j, PB)
            gstore(j, PB)
    else:
        gs = opt.full
        pend = []
        for j0 in range(0, 8, gs):
            for j in range(j0, j0+gs):
                PB = 20 + 4*(j & 1)
                epi_math(j, PB)
                A(f"ds_write_b128 v28, v[{PB}:{PB+3}] offset:{j*2048}")
                if pend:
                    jj = pend.pop(0)
                    A("s_waitcnt lgkmcnt(1)")
                    gstore(jj, 32 + 4*(jj & 1))
                    if pend: A(f"ds_read_b128 v[{32+4*(pend[0]&1)}:{35+4*(pend[0]&1)}], v29 offset:{pend[0]*2048}")
            while pend:
                jj = pend.pop(0)
                A("s_waitcnt lgkmcnt(0)")
                gstore(jj, 32 + 4*(jj & 1))
                if pend: A(f"ds_read_b128 v[{32+4*(pend[0]&1)}:{35+4*(pend[0]&1)}], v29 offset:{pend[0]*2048}")
            A("s_waitcnt lgkmcnt(0)")
            A("s_barrier")
            pend = list(range(j0, j0+gs))
            A(f"ds_read_b128 v[{32+4*(pend[0]&1)}:{35+4*(pend[0]&1)}], v29 offset:{pend[0]*2048}")
        while pend:
            jj = pend.pop(0)
            if pend: A(f"ds_read_b128 v[{32+4*(pend[0]&1)}:{35+4*(pend[0]&1)}], v29 offset:{pend[0]*2048}")
            A("s_waitcnt lgkmcnt(%d)" % (1 if pend else 0))
            gstore(jj, 32 + 4*(jj & 1))
            A("s_nop 0")
    if opt.spin:
        A("s_memrealtime s[64:65]")
        A("s_waitcnt lgkmcnt(0)")
        A("s_waitcnt vmcnt(0)")
        A("s_memrealtime s[70:71]")
        A("s_waitcnt lgkmcnt(0)")
        which, mult = opt.spin.split(',')
        a, b = {'pro': (62, 66), 'main': (66, 68), 'epi': (68, 70), 'epiv': (68, 64), 'drain': (64, 70), 'none': (70, 70)}[which]
        A(f"s_sub_u32 s43, s{b}, s{a}")
        A(f"s_mul_i32 s43, s43, {mult}")
        A("s_add_u32 s43, s43, s70")
        A("L_spin:")
        A("s_memrealtime s[60:61]")
        A("s_waitcnt lgkmcnt(0)")
        A("s_sub_u32 s42, s60, s43")
        A("s_cmp_lt_i32 s42, 0")
        A("s_cbranch_scc1 L_spin")
    if opt.stamp:
        A("s_waitcnt vmcnt(0)")
        A("s_memtime s[56:57]")
        A("s_memrealtime s[58:59]")
        A("s_waitcnt lgkmcnt(0)")
        if opt.dbgstamp:
            A("s_sub_u32 s60, s50, s44")
            A("s_sub_u32 s61, s48, s46")
            A("s_sub_u32 s62, s52, s50")
            A("s_sub_u32 s63, s54, s48")
            A("s_sub_u32 s64, s56, s52")
            A("s_sub_u32 s65, s56, s44")
            A("s_sub_u32 s66, s58, s46")
            A("s_mov_b32 s67, s46")
            A("s_cmp_lg_u32 s24, 0")
            A("s_cbranch_scc1 L_nostamp")
            A("s_mov_b32 s43, 0")
            A("s_cmp_eq_u32 s2, 0")
            A("s_cbranch_scc1 L_dostamp")
            A("s_mov_b32 s43, 32")
            A("s_cmp_eq_u32 s2, 133")
            A("s_cbranch_scc0 L_nostamp")
            A("L_dostamp:")
            A("s_mov_b32 s68, s40"); A("s_mov_b32 s69, s41"); A("s_mov_b32 s70, 256"); A("s_mov_b32 s71, 0x20000")
            A("v_mov_b32 v9, s43")
            A("s_mov_b64 exec, 1")
            for i in range(2):
                for k in range(4): A(f"v_mov_b32 v{12+k}, s{60+4*i+k}")
                A(f"buffer_store_dwordx4 v[12:15], v9, s[68:71], 0 offen offset:{16*i}")
                A("s_nop 1")
            A("L_nostamp:")
        else:
            A("s_mov_b32 s60, s40"); A("s_mov_b32 s61, s41"); A("s_mov_b32 s62, 0x10000000"); A("s_mov_b32 s63, 0x20000")
            if opt.kstamp or opt.fstamp:
                A("s_lshl_b32 s43, s2, 2"); A("s_add_u32 s43, s43, s24"); A("s_lshl_b32 s43, s43, 8")
                A("s_add_u32 s43, s43, 0x20000")
                A("v_lshlrev_b32 v12, 2, v0")
                A("v_add_u32 v12, s43, v12")
                A("buffer_store_dword v9, v12, s[60:63], 0 offen")
                A("s_nop 1")
            A("s_lshl_b32 s43, s2, 2"); A("s_add_u32 s43, s43, s24"); A("s_lshl_b32 s43, s43, 6")
            A("v_mov_b32 v9, s43")
            A("s_mov_b64 exec, 1")
            for i in range(4):
                for k in range(4): A(f"v_mov_b32 v{12+k}, s{44+4*i+k}")
                A(f"buffer_store_dwordx4 v[12:15], v9, s[60:63], 0 offen offset:{16*i}")
                A("s_nop 1")
    A("s_endpgm")
    A("L_codeend:")

    A('.section .rodata,"a"')
    A(".p2align 6")
    A(f".amdhsa_kernel {NAME}")
    A("  .amdhsa_next_free_vgpr 256")
    A("  .amdhsa_next_free_sgpr 96")
    A("  .amdhsa_accum_offset 168")
    A("  .amdhsa_group_segment_fixed_size 0")
    A("  .amdhsa_kernarg_size 40")
    A("  .amdhsa_user_sgpr_count 2")
    A("  .amdhsa_user_sgpr_kernarg_segment_ptr 1")
    A("  .amdhsa_system_sgpr_workgroup_id_x 1")
    A("  .amdhsa_float_denorm_mode_32 3")
    A(".end_amdhsa_kernel")
    if opt.meta:
        A(f""".amdgpu_metadata
---
amdhsa.version: [1, 2]
amdhsa.kernels:
  - .name: {NAME}
    .symbol: {NAME}.kd
    .kernarg_segment_size: 40
    .kernarg_segment_align: 8
    .group_segment_fixed_size: 0
    .private_segment_fixed_size: 0
    .wavefront_size: 64
    .sgpr_count: 96
    .vgpr_count: 256
    .max_flat_workgroup_size: 512
    .args:
      - {{.name: kernargs, .size: 40, .offset: 0, .value_kind: by_value}}
...
.end_amdgpu_metadata""")
    if opt.verbose: sys.stderr.write(f"loader waits: {Ns}\nloop: {Nl}\n")
    return A.text()

def parse(argv=None):
    ap = argparse.ArgumentParser()
    ap.add_argument("-o", default="/dev/stdout")
    for o in ["meta", "stamp", "dbgstamp", "nods", "nodma", "nodmaw", "nodmax", "nobar", "verbose", "lstamp", "touch", "cpf", "kstamp", "mzero", "snake", "fstamp", "pads", "pad8", "xsplit"]:
        ap.add_argument("--"+o, action="store_true")
    ap.add_argument("--spin", default="")
    ap.add_argument("--sched", default="")
    ap.add_argument("--otouch", type=int, default=0)
    ap.add_argument("--otpol", default="nt")
    ap.add_argument("--tailshift", type=int, default=0)
    ap.add_argument("--skip", type=int, default=0)
    ap.add_argument("--wmerge", type=int, default=0)
    ap.add_argument("--align", default="")
    ap.add_argument("--dsb", type=int, default=0)
    ap.add_argument("--groups", default="")
    ap.add_argument("--full", type=int, default=0)
    ap.add_argument("--rot", default="")
    ap.add_argument("--order", default="xwx")
    ap.add_argument("--cprio", type=int, default=0)
    ap.add_argument("--lprio", type=int, default=0)
    ap.add_argument("--npre", type=int, default=3)
    ap.add_argument("--wpol", default="")
    ap.add_argument("--xpol", default="")
    ap.add_argument("--spol", default="nt")
    opt = ap.parse_args(argv)
    for k in ["wpol", "xpol", "spol", "otpol"]:
        v = getattr(opt, k)
        if v: setattr(opt, k, " " + v)
    return opt

def offsets(text):
    import subprocess, tempfile, os, re
    L = text.split("\n")
    start = L.index("L_compute:")
    out = []
    for i, l in enumerate(L):
        if i > start and l and not l.startswith(('.', ';')) and not l.endswith(':') and i < L.index('L_codeend:'):
            out.append(f"LL_{i}:")
        out.append(l)
    d = tempfile.mkdtemp()
    open(d+"/a.s", "w").write("\n".join(out))
    subprocess.check_call(["clang", "-x", "assembler", "-target", "amdgcn-amd-amdhsa", "-mcpu=gfx950", "-c", d+"/a.s", "-o", d+"/a.o"])
    sym = subprocess.check_output(["llvm-readelf", "-s", "--wide", d+"/a.o"]).decode()
    addr = {}
    for line in sym.splitlines():
        p = line.split()
        if len(p) == 8 and p[0].endswith(':'):
            try: addr[p[7]] = int(p[1], 16)
            except ValueError: pass
    base = addr["L_page0"]
    return {int(k[3:]): v - base for k, v in addr.items() if k.startswith("LL_")}, addr

E64_OK = ("v_mul_f32", "v_add_f32", "v_fmac_f32", "v_exp_f32", "v_rcp_f32", "v_add_u32", "v_mov_b32")
def align8(text, first_label, last_marker=None):
    L = text.split("\n")
    tmp = list(L)
    missing = [f"L_pad{m}:" for m in range(NPADS) if f"L_pad{m}:" not in L and any(f"L_pad{m}" in x for x in L)]
    ci = tmp.index("L_codeend:")
    off, addr = offsets("\n".join(tmp[:ci+1] + missing + tmp[ci+1:]))
    idx = sorted(off)
    size = {}
    for a, b in zip(idx, idx[1:]): size[a] = off[b] - off[a]
    size[idx[-1]] = 4
    start = L.index(first_label + ":")
    stop = L.index(last_marker) if last_marker else ci
    par = None
    ins = {}
    cand = None
    nw = nn = 0
    for i in idx:
        if i < start or i >= stop: continue
        if par is None: par = off[i] % 8
        sz = size[i]
        op = L[i].split()[0]
        if sz == 8:
            if par == 4:
                if cand is not None:
                    o = L[cand].split()[0]
                    L[cand] = L[cand].replace(o, o + "_e64", 1); nw += 1
                else:
                    ins[i] = True; nn += 1
                par = 0
            cand = None
        else:
            par ^= 4
            if op in E64_OK and "|" not in L[i] and "0x" not in L[i]:
                cand = i
            if par == 0: cand = None if op not in E64_OK else cand
    for i in sorted(ins, reverse=True): L.insert(i, "s_nop 0")
    sys.stderr.write(f"align8: widened {nw}, nops {nn}\n")
    return "\n".join(L)

def add_pads(text):
    npad = 0
    for bound in range(4096, 8*4096, 4096):
        L = text.split("\n")
        tmp = list(L)
        missing = [f"L_pad{m}:" for m in range(NPADS) if f"L_pad{m}:" not in L]
        ci = tmp.index("L_codeend:")
        off, addr = offsets("\n".join(tmp[:ci+1] + missing + tmp[ci+1:]))
        cand = sorted(i for i, o in off.items() if o >= bound)
        if not cand: break
        i = cand[0]
        if i < L.index("L_cloop:"): continue
        assert i > L.index("; @@final") or ALLOW_LOOP_PAD, "page boundary inside the main loop"
        L[i:i] = [f"L_pad{npad}:", "s_cbranch_vccnz L_back", "s_nop 0"]
        npad += 1
        text = "\n".join(L)
    L = text.split("\n")
    for k in range(npad, NPADS):
        i = L.index(f"s_cbranch_scc1 L_pad{k}")
        del L[i-1:i+1]
    sys.stderr.write(f"pads: {npad}\n")
    return "\n".join(L)

ALLOW_LOOP_PAD = False
if __name__ == "__main__":
    opt = parse()
    t = gen(opt)
    if opt.align == 'all': t = align8(t, "L_cloop")
    if opt.align == 'final': t = align8(t, "L_final")
    if opt.align == 'loop': t = align8(t, "L_cloop", "; @@final")
    if opt.pads: t = add_pads(t)
    open(opt.o, "w").write(t)
```

```python
import sys, argparse

NAME = "standalone__autoregressive_conv_wavernn__speech_kernel"
XBATCH = 4096000
WBYTES = 5242880
WUNIT = 20480
XBASE = 4 * WUNIT
XBUF = 33792
LDS_BYTES = XBASE + 2 * XBUF

class Asm:
    def __init__(self):
        self.L = []
    def __call__(self, s):
        self.L.append(s)
    def text(self):
        return "\n".join(self.L) + "\n"

class DS:
    def __init__(self, A, T=0):
        self.A = A
        self.q = []
        self.t = []
        self.now = 0
        self.T = T
    def issue(self, text, regs):
        if self.T == 0 and len(self.q) >= 14:
            self.wait_n(10)
        self.A(text)
        self.q.append(set(regs)); self.t.append(self.now)
    def wait_n(self, n):
        n = min(n, 15)
        if len(self.q) > n:
            self.A(f"s_waitcnt lgkmcnt({n})")
            self.q = self.q[len(self.q)-n:] if n > 0 else []
            self.t = self.t[len(self.t)-n:] if n > 0 else []
    def need(self, regs):
        regs = set(regs)
        last = -1
        for i, s in enumerate(self.q):
            if s & regs:
                last = i
        if last >= 0:
            if self.T:
                while last + 1 < len(self.q) and self.t[last+1] <= self.now - self.T: last += 1
            self.wait_n(len(self.q) - 1 - last)
    def drain(self):
        self.A("s_waitcnt lgkmcnt(0)")
        self.q = []; self.t = []
    def setq(self, q, t):
        self.q = [set(x) for x in q]; self.t = [self.now + x for x in t]
    def getq(self):
        return [set(x) for x in self.q], [x - self.now for x in self.t]

ACC0 = 40
def acc(j, nb): return ACC0 + (j*4 + nb)*4
def areg(n): return f"a[{n}:{n+3}]"
def XF(q): return 4*q
def WF(st, tap): return 48 + st*20 + tap*4
V_W = [1, 2]
V_X0 = 3
V_X1 = [4, 5, 6, 7]
V_OUT = 8
S_K = 30; S_WD = 31; S_XD = 32; S_T = 33

NPADS = 3
def gen(opt):
    A = Asm()
    A("; Kernarg layout for this problem (40 bytes, ptrs only, base s[0:1]):")
    A(";   offset   0: d_in[0] x  shape=(2, 4000, 512) dtype=bfloat16")
    A(";   offset   8: d_in[1] w  shape=(5, 512, 1024) dtype=bfloat16")
    A(";   offset  16: d_out     shape=(2, 4000, 512) dtype=bfloat16")
    A("; waves 0-3 MFMA consumers, waves 4-7 LDS-DMA loaders.")
    A(f"; @launch grid=(256,1,1) block=(512,1,1) lds={LDS_BYTES}")
    A('.amdgcn_target "amdgcn-amd-amdhsa--gfx950"')
    A(".text")
    A(f".globl {NAME}")
    A(".p2align 8")
    A(f".type {NAME},@function")
    A(f"{NAME}:")
    A("s_cmp_ge_u32 s2, 256")
    A("s_cbranch_scc1 L_end")
    A("s_load_dwordx4 s[4:7], s[0:1], 0")
    A("s_load_dwordx2 s[8:9], s[0:1], 16")
    if opt.stamp:
        A("s_load_dwordx2 s[40:41], s[0:1], %d" % (24 if opt.dbgstamp else 32))
        A("s_memtime s[44:45]")
        A("s_memrealtime s[46:47]")
    if opt.spin:
        A("s_memrealtime s[62:63]")
    A("v_lshrrev_b32 v1, 6, v0")
    A("v_and_b32 v0, 63, v0")
    A("s_and_b32 s28, s2, 7")
    A("v_readfirstlane_b32 s24, v1")
    A("s_lshr_b32 s29, s2, 3")
    A("s_lshr_b32 s30, s28, 1")
    A("s_lshl_b32 s30, s30, 3")
    A("s_lshr_b32 s31, s29, 2")
    A("s_add_u32 s30, s30, s31")
    A("s_and_b32 s31, s28, 1")
    A("s_lshl_b32 s31, s31, 2")
    A("s_and_b32 s29, s29, 3")
    A("s_add_u32 s31, s31, s29")
    A("s_lshr_b32 s27, s30, 4")
    A("s_and_b32 s25, s30, 15")
    A("s_lshl_b32 s25, s25, 8")
    A("s_lshl_b32 s26, s31, 6")
    A(f"s_mul_i32 s28, s27, {XBATCH}")
    def emit_xoff():
        A("v_lshrrev_b32 v10, 5, v0")
        A("v_bfe_u32 v11, v0, 2, 3")
        A("v_and_b32 v12, 3, v0")
        A("v_lshrrev_b32 v13, 2, v11")
        A("v_lshlrev_b32 v13, 1, v13")
        A("v_xor_b32 v13, v13, v12")
        A("v_lshlrev_b32 v14, 6, v10")
        A("v_lshl_add_u32 v15, v13, 4, v14")
        A("v_lshl_add_u32 v16, v12, 4, v14")
        A("v_and_b32 v13, 1, v11")
        A("v_lshrrev_b32 v17, 1, v11")
        A("v_lshl_add_u32 v13, v17, 4, v13")
        A("s_lshl_b32 s35, s34, 6")
        A("s_add_u32 s35, s35, s25")
        A("s_sub_u32 s35, s35, 8")
        A("v_add_u32 v13, s35, v13")
        A("v_lshlrev_b32 v17, 10, v13")
        A("v_add_u32 v17, v17, v15")
        A("v_add_u32 v3, 0x2000, v17")
        A("v_bfrev_b32 v18, 1")
        A("v_cmp_gt_i32 vcc, 0, v13")
        A("s_add_u32 s35, s25, 248")
        A("v_add_u32 v11, s35, v11")
        A("v_cndmask_b32 v2, v17, v18, vcc")
        A("v_lshlrev_b32 v11, 10, v11")
        A("v_add_u32 v4, v11, v16")
        A("s_lshl_b32 s35, s34, 4")
        A("s_mov_b64 s[36:37], 0xffff")
        A("s_lshl_b64 s[36:37], s[36:37], s35")
        A(f"s_mov_b32 s14, {XBATCH}")
        A("s_mov_b32 s15, 0x20000")
    def emit_woff():
        A("v_lshrrev_b32 v10, 3, v0")
        A("v_and_b32 v11, 7, v0")
        A("v_lshrrev_b32 v12, 1, v11")
        A("v_bfe_u32 v13, v10, 1, 1")
        A("s_and_b32 s35, s34, 1")
        A("s_lshl_b32 s35, s35, 1")
        A("v_or_b32 v13, s35, v13")
        A("v_xor_b32 v12, v12, v13")
        A("v_lshlrev_b32 v12, 5, v12")
        A("v_and_b32 v11, 1, v11")
        A("v_lshl_add_u32 v12, v11, 4, v12")
        A("s_lshl_b32 s35, s34, 3")
        A("v_add_u32 v10, s35, v10")
        A("v_lshl_add_u32 v12, v10, 11, v12")
        A("s_lshl_b32 s35, s26, 1")
        A("v_add_u32 v1, s35, v12")
        A(f"s_mov_b32 s18, {WBYTES}")
        A("s_mov_b32 s19, 0x20000")
    def emit_xstate(first_chunk):
        A(f"s_mov_b32 s66, {128*first_chunk}")
        A(f"s_add_u32 s67, s38, {XBASE + XBUF*(first_chunk & 1)}")
        A(f"s_add_u32 s69, s38, {XBASE + XBUF*((first_chunk & 1) ^ 1)}")
        A("s_xor_b32 s69, s69, s67")
    vq = []
    xq = []
    def x_issue(c, part, half=None, q_=None):
        q_ = vq if q_ is None else q_
        if opt.nodmax and c > 1: return
        qs = range(0, 4) if part == 0 else range(4, 8)
        tag = ('XH', c) if half == 'hi' else ('X', c)
        if half == 'lo': A("s_mov_b32 exec_hi, 0")
        if half == 'hi': A("s_mov_b32 exec_lo, 0")
        for q in qs:
            A(f"s_add_u32 m0, s67, {q*4096}")
            if q < 4:
                A(f"s_add_u32 s68, s66, {2*q*1024}")
                A(f"buffer_load_dwordx4 v2, s[12:15], s68 offen{opt.xpol} lds")
            else:
                A(f"s_add_u32 s68, s66, {(2*q-8)*1024}")
                A(f"buffer_load_dwordx4 v3, s[12:15], s68 offen{opt.xpol} lds")
            q_.append(tag)
        if half: A("s_mov_b64 exec, -1")
        if part == 1 and half != 'hi':
            A(f"s_sub_u32 m0, s67, s38")
            A(f"s_add_u32 m0, m0, 32768")
            A("s_mov_b64 exec, s[36:37]")
            A(f"buffer_load_dwordx4 v4, s[12:15], s66 offen{opt.xpol} lds")
            A("s_mov_b64 exec, -1")
            q_.append(tag)
        if part == 1 and half != 'lo':
            A("s_add_u32 s66, s66, 128")
            A("s_xor_b32 s67, s67, s69")
    A("s_and_b32 s34, s24, 3")
    A("s_lshl_b32 s38, s34, 10")
    if opt.xsplit:
        A("s_cmp_ge_u32 s24, 4")
        A("s_cbranch_scc1 L_loader")
        if opt.lprio: A(f"s_setprio {opt.lprio}")
        emit_xoff()
        emit_xstate(0)
        A("s_waitcnt lgkmcnt(0)")
        A("s_add_u32 s12, s4, s28")
        A("s_addc_u32 s13, s5, 0")
        x_issue(0, 0, q_=xq); x_issue(0, 1, q_=xq)
        if opt.lprio: A("s_setprio 0")
        A("s_branch L_compute")
        A("L_loader:")
        if opt.lprio: A(f"s_setprio {opt.lprio}")
        emit_woff()
        A("s_mov_b32 s64, 0")
        A("s_mov_b32 s65, s38")
        A("s_waitcnt lgkmcnt(0)")
        A("s_mov_b32 s16, s6")
        A("s_mov_b32 s17, s7")
    else:
        A("s_cmp_lt_u32 s24, 4")
        A("s_cbranch_scc1 L_compute")
        if opt.lprio: A(f"s_setprio {opt.lprio}")
        emit_xoff()
        emit_woff()
        A("s_mov_b32 s64, 0")
        A("s_mov_b32 s65, s38")
        emit_xstate(0)
        A("s_waitcnt lgkmcnt(0)")
        A("s_add_u32 s12, s4, s28")
        A("s_addc_u32 s13, s5, 0")
        A("s_mov_b32 s16, s6")
        A("s_mov_b32 s17, s7")

    def w_issue(u):
        if opt.nodmaw and u > 3: return
        for tap in range(5):
            if tap == 0:
                A("s_mov_b32 m0, s65")
                A("s_mov_b32 s68, s64")
            else:
                A("s_add_u32 m0, m0, 4096")
                A("s_add_u32 s68, s68, 0x100000")
            A(f"buffer_load_dwordx4 v1, s[16:19], s68 offen{opt.wpol} lds")
            vq.append(('W', u))
        if u & 1:
            A(f"s_add_u32 s64, s64, {65536-1024}")
            if opt.rot: A("s_and_b32 s64, s64, 0xfffff")
        else: A("s_add_u32 s64, s64, 1024")
        if (u & 3) == 3: A(f"s_sub_u32 s65, s65, {3*WUNIT}")
        else: A(f"s_add_u32 s65, s65, {WUNIT}")
    def need_n(u):
        need = [('W', u)]
        if u % 4 == 0: need.append(('X', u//4))
        if u == 2: need.append(('XH', 0))
        last = -1
        for i, t in enumerate(vq):
            if t in need: last = i
        return len(vq) - 1 - last if last >= 0 else None
    def wait_for(u, n=None):
        nn = need_n(u)
        if n is None: n = nn
        assert nn is None or n <= nn
        if n is not None and n <= len(vq):
            A(f"s_waitcnt vmcnt({n})")
            del vq[:len(vq)-n]
    sched = {}
    if opt.sched:
        for part in opt.sched.split(';'):
            k, v = part.split(':')
            sched[k] = v.split(',') if v else []
    U0 = 3 if not opt.sched else max(int(k) for k in sched if k != 'pre') + 1
    while U0 % 4 != 3: U0 += 1
    def do_item(it):
        if it[0] == 'w': w_issue(int(it[1:]))
        elif it == 'xl': x_issue(0, 0, 'lo'); x_issue(0, 1, 'lo')
        elif it == 'xla': x_issue(0, 0, 'lo')
        elif it == 'xlb': x_issue(0, 1, 'lo')
        elif it == 'xh': x_issue(0, 0, 'hi'); x_issue(0, 1, 'hi')
        elif it[0] == 'x': x_issue(int(it[1]), 0 if it[2] == 'a' else 1)
    def issues(u):
        if str(u) in sched: return sched[str(u)]
        r = []
        if u + 3 <= 31 and u + 3 >= opt.npre: r.append(f'w{u+3}')
        if u == 1: r.append('x1a')
        elif u == 2: r.append('x1b')
        elif u % 4 == 3 and u//4 + 2 <= 7: r.append(f'x{u//4+2}a')
        elif u % 4 == 0 and u >= 4 and u//4 + 1 <= 7: r.append(f'x{u//4+1}b')
        return r
    def interval(u, nfix=None):
        wait_for(u, nfix)
        if not (opt.nobar and u > 0): A("s_barrier")
        if opt.nodma: return
        for it in issues(u): do_item(it)
    def lst(i):
        if opt.lstamp: A(f"s_memtime s[{72+2*i}:{73+2*i}]")
    lst(0)
    if opt.xsplit:
        pre = sched.get('pre', [f'w{u}' for u in range(0, opt.npre)])
    else:
        pre = sched.get('pre', ['x0a', 'w0', 'x0b'] + [f'w{u}' for u in range(1, opt.npre)])
    for ii, it in enumerate(pre):
        do_item(it)
        if ii < 3: lst(1+ii)
    if opt.xsplit:
        emit_xoff()
        emit_xstate(1)
        A("s_add_u32 s12, s4, s28")
        A("s_addc_u32 s13, s5, 0")
    lst(4)
    if opt.lstamp:
        sv = list(vq)
        wait_for(0)
        lst(5)
        A("s_waitcnt lgkmcnt(0)")
        A("s_mov_b32 s84, s40"); A("s_mov_b32 s85, s41"); A("s_mov_b32 s86, 0x10000000"); A("s_mov_b32 s87, 0x20000")
        A("s_lshl_b32 s43, s2, 2"); A("s_add_u32 s43, s43, s34"); A("s_lshl_b32 s43, s43, 6")
        A("s_add_u32 s43, s43, 0x10000")
        A("v_mov_b32 v9, s43")
        A("s_mov_b64 exec, 1")
        regs = [44,45,46,47,72,73,74,75,76,77,78,79,80,81,82,83]
        for i in range(4):
            for k in range(4): A(f"v_mov_b32 v{20+k}, s{regs[4*i+k]}")
            A(f"buffer_store_dwordx4 v[20:23], v9, s[84:87], 0 offen offset:{16*i}")
            A("s_nop 1")
        A("s_mov_b64 exec, -1")
        A("s_waitcnt vmcnt(0)")
        vq[:] = sv
    saveL = list(A.L); savevq = list(vq)
    Ns = {}
    for u in range(32):
        Ns[u] = need_n(u)
        interval(u)
    A.L = saveL; vq[:] = savevq
    for u in range(0, U0): interval(u)
    Nl = {m: min([Ns[u] for u in range(U0, 27) if u % 4 == m and Ns[u] is not None] or [0]) for m in range(4)}
    A("s_mov_b32 s70, 0")
    A("L_lloop:")
    for u in range(U0, U0+4): interval(u, nfix=Nl[u % 4])
    A("s_add_u32 s70, s70, 1")
    A(f"s_cmp_lt_u32 s70, {(27-U0)//4}")
    A("s_cbranch_scc1 L_lloop")
    saveL = list(A.L)
    for u in range(U0+4, 27): interval(u, nfix=Nl[u % 4])
    A.L = saveL
    for u in range(27, 32):
        interval(u)
        if opt.otouch and u == opt.otouch:
            A("s_add_u32 s20, s8, s28")
            A("s_addc_u32 s21, s9, 0")
            A(f"s_mov_b32 s22, {XBATCH}")
            A("s_mov_b32 s23, 0x20000")
            A("s_lshr_b32 s40, s34, 1")
            A("s_and_b32 s41, s34, 1")
            A("v_and_b32 v11, 15, v0")
            A("v_and_b32 v13, 1, v11")
            A("v_lshrrev_b32 v14, 1, v11")
            A("v_lshl_add_u32 v13, v14, 4, v13")
            A("s_lshl_b32 s40, s40, 7")
            A("s_add_u32 s40, s40, s25")
            A("v_add_u32 v13, s40, v13")
            A("v_lshrrev_b32 v14, 4, v0")
            A("v_lshl_add_u32 v13, v14, 2, v13")
            A("v_lshlrev_b32 v13, 10, v13")
            A("s_lshl_b32 s41, s41, 5")
            A("s_add_u32 s41, s41, s26")
            A("s_lshl_b32 s41, s41, 1")
            A("v_add_u32 v13, s41, v13")
            A(f"buffer_load_dword v14, v13, s[20:23], 0 offen{opt.otpol}")
    A("L_end:")
    A("s_endpgm")

    A(".p2align 12" if opt.pads else ".p2align 6")
    A("L_page0:")
    if opt.skip: A(f".fill {opt.skip//4}, 4, 0xBF800000")
    A("L_compute:")
    if opt.cprio: A(f"s_setprio {opt.cprio}")
    if opt.cpf:
        A("s_getpc_b64 s[60:61]")
        A("L_pc:")
        A("v_lshlrev_b32 v28, 7, v0")
        A("s_lshl_b32 s62, s24, 13")
        A("v_add_u32 v28, s62, v28")
        A("s_mov_b32 s62, L_codeend-L_pc-4")
        A("v_min_u32 v28, s62, v28")
        A("v_mov_b32 v29, s61")
        A("v_add_co_u32 v28, vcc, s60, v28")
        A("s_nop 1")
        A("v_addc_co_u32 v29, vcc, 0, v29, vcc")
        A("global_load_dword v9, v[28:29], off")
    A("s_lshr_b32 s34, s24, 1")
    A("s_and_b32 s35, s24, 1")
    A("v_lshrrev_b32 v10, 4, v0")
    A("v_and_b32 v11, 15, v0")
    A("v_lshrrev_b32 v12, 2, v11")
    A("v_lshl_add_u32 v12, v10, 3, v12")
    A("v_lshlrev_b32 v12, 7, v12")
    A("v_and_b32 v13, 3, v11")
    A("v_lshl_add_u32 v12, v13, 3, v12")
    A("v_lshrrev_b32 v13, 3, v11")
    A("v_and_b32 v14, 1, v10")
    A("v_lshl_or_b32 v13, v14, 1, v13")
    A("s_lshl_b32 s36, s35, 1")
    for p in range(2):
        A(f"s_add_u32 s37, s36, {p}")
        A("v_xor_b32 v14, s37, v13")
        A(f"v_lshl_add_u32 v{V_W[p]}, v14, 5, v12")
    A("s_lshl_b32 s36, s34, 4")
    def xaddr(dst, Rreg):
        A(f"v_lshrrev_b32 v15, 3, v{Rreg}")
        A(f"v_lshlrev_b32 v15, 10, v15")
        A(f"v_and_b32 v16, 7, v{Rreg}")
        A(f"v_lshl_add_u32 v15, v16, 6, v15")
        A(f"v_bfe_u32 v16, v{Rreg}, 2, 1")
        A(f"v_lshlrev_b32 v16, 1, v16")
        A(f"v_xor_b32 v16, v16, v10")
        A(f"v_lshl_add_u32 v15, v16, 4, v15")
        A(f"v_add_u32 v{dst}, {XBASE}, v15")
    A("v_add_u32 v13, s36, v11")
    xaddr(V_X0, 13)
    A("v_add_u32 v13, 2, v13")
    xaddr(17, 13)
    A("v_and_b32 v16, 1, v13")
    A("v_lshlrev_b32 v16, 6, v16")
    A("v_lshl_add_u32 v16, v10, 4, v16")
    A(f"v_add_u32 v16, {XBASE+32768}, v16")
    A("v_cmp_le_u32 vcc, 32, v13")
    for q in range(4):
        A(f"v_add_u32 v18, {q*4096}, v17")
        A(f"v_add_u32 v19, {q*128}, v16")
        A(f"v_cndmask_b32 v{V_X1[q]}, v18, v19, vcc")
    A("v_and_b32 v13, 1, v11")
    A("v_lshrrev_b32 v14, 1, v11")
    A("v_lshl_add_u32 v13, v14, 4, v13")
    A("s_lshl_b32 s36, s34, 7")
    A("s_add_u32 s36, s36, s25")
    A("v_add_u32 v13, s36, v13")
    A("v_lshlrev_b32 v13, 10, v13")
    A("v_and_b32 v14, 1, v10")
    A("v_lshlrev_b32 v14, 5, v14")
    A("v_lshrrev_b32 v15, 1, v10")
    A("v_lshl_add_u32 v14, v15, 4, v14")
    A("s_lshl_b32 s36, s35, 5")
    A("s_add_u32 s36, s36, s26")
    A("s_lshl_b32 s36, s36, 1")
    A("v_add_u32 v13, s36, v13")
    A(f"v_add_u32 v{V_OUT}, v13, v14")
    if opt.full:
        A("v_and_b32 v13, 1, v10")
        A("v_lshlrev_b32 v13, 1, v13")
        A("v_lshrrev_b32 v14, 1, v10")
        A("v_or_b32 v13, v13, v14")
        A("s_lshl_b32 s43, s35, 2")
        A("v_add_u32 v13, s43, v13")
        A("v_and_b32 v14, 7, v11")
        A("v_xor_b32 v13, v13, v14")
        A("v_lshlrev_b32 v13, 4, v13")
        A("v_lshl_add_u32 v13, v11, 7, v13")
        A("s_lshl_b32 s43, s34, 14")
        A("v_add_u32 v28, s43, v13")
        A("v_lshrrev_b32 v13, 3, v0")
        A("v_and_b32 v14, 7, v0")
        A("v_xor_b32 v15, v13, v14")
        A("v_lshlrev_b32 v15, 4, v15")
        A("s_lshl_b32 s21, s35, 3")
        A("v_add_u32 v13, s21, v13")
        A("v_lshl_add_u32 v15, v13, 7, v15")
        A("v_add_u32 v29, s43, v15")
        A("v_and_b32 v15, 1, v13")
        A("v_lshrrev_b32 v16, 1, v13")
        A("v_lshl_add_u32 v15, v16, 4, v15")
        A("s_lshl_b32 s43, s34, 7")
        A("s_add_u32 s43, s43, s25")
        A("v_add_u32 v15, s43, v15")
        A("v_lshlrev_b32 v15, 10, v15")
        A("v_lshl_add_u32 v15, v14, 4, v15")
        A("s_lshl_b32 s43, s26, 1")
        A(f"v_add_u32 v{V_OUT}, s43, v15")
    if opt.mzero:
        for r in range(4): A(f"v_mov_b32 v{32+r}, 0")
        A("s_nop 1")
        for b in range(8):
            A(f"v_mfma_f32_32x32x16_bf16 v[{ACC0+16*b}:{ACC0+16*b+15}], v[32:35], v[32:35], 0")
    else:
        for r in range(128):
            A(f"v_mov_b32 v{ACC0+r}, 0")
    A(f"s_mov_b32 s22, {XBATCH}")
    A("s_mov_b32 s23, 0x20000")
    A(f"s_mov_b32 s{S_K}, 0")
    A(f"s_mov_b32 s{S_XD}, {XBUF}")
    A(f"v_add_u32 v30, {2*WUNIT}, v{V_W[0]}")
    A(f"v_add_u32 v31, {2*WUNIT}, v{V_W[1]}")
    A("s_mov_b32 s36, 0x4038aa3b")
    A("s_mov_b32 s37, 0x4038aa3b")
    A("s_mov_b32 s38, 0xbfb8aa3b")
    A("s_mov_b32 s39, 0xbfb8aa3b")
    A("s_mov_b32 s42, 0x7fffffff")
    A("s_waitcnt lgkmcnt(0)")
    A("s_add_u32 s20, s8, s28")
    A("s_addc_u32 s21, s9, 0")
    if opt.pads:
        A("s_mov_b64 vcc, -1")
        for k in range(NPADS):
            A(f"s_cmp_eq_u32 s24, {k}")
            A(f"s_cbranch_scc1 L_pad{k}")
        A("L_back:")
        A("s_mov_b64 vcc, 0")
    if opt.touch:
        A(f"buffer_load_dword v9, v{V_OUT}, s[20:23], 0 offen")
    ds = DS(A, opt.wmerge)
    VW2 = [30, 31]
    def wreads(phi_next):
        p = phi_next & 1; half = (phi_next >> 1) & 1; st = phi_next & 1
        vw = VW2[p] if (phi_next >> 2) & 1 else V_W[p]
        out = []
        for tap in range(5):
            for h in range(2):
                r = WF(st, tap) + 2*h
                off = half*WUNIT + tap*4096 + h*512
                out.append((f"ds_read_b64_tr_b16 a[{r}:{r+1}], v{vw} offset:{off}", [('a', r), ('a', r+1)]))
        return out
    def xread(q, ks=0):
        r = XF(q)
        regs = [('a', r+i) for i in range(4)]
        if q < 8:
            return (f"ds_read_b128 a[{r}:{r+3}], v{V_X0} offset:{q*4096 + ks*512}", regs)
        return (f"ds_read_b128 a[{r}:{r+3}], v{V_X1[q-8]} offset:{ks*512}", regs)

    def mfma(a, wf, xf):
        ds.need([('a', wf+i) for i in range(4)] + [('a', xf+i) for i in range(4)])
        A(f"v_mfma_f32_16x16x32_bf16 v[{a}:{a+3}], {areg(wf)}, {areg(xf)}, v[{a}:{a+3}]")
        ds.now += 1

    def phase(phi, wnext=True, xreload=False, barrier=False, extra=None):
        nb = phi & 3; st = phi & 1
        A(f"; ---- phase {phi}")
        if barrier:
            if opt.kstamp:
                A("s_memtime s[60:61]")
            ds.drain()
            if opt.kstamp:
                A(f"s_lshl_b32 s62, s{S_K}, 2")
                A(f"s_add_u32 m0, s62, {(phi & 7) >> 1}")
                A("s_nop 0")
                A("v_writelane_b32 v9, s60, m0")
            if not opt.nobar: A("s_barrier")
            if opt.kstamp:
                A("s_memtime s[60:61]")
                A("s_waitcnt lgkmcnt(0)")
                A("s_add_u32 m0, m0, 32")
                A("s_nop 0")
                A("v_writelane_b32 v9, s60, m0")
        post = {n: [] for n in range(40)}
        order = []
        for j in range(8):
            taps = list(range(5))
            if opt.snake and j % 2 == 1: taps.reverse()
            for tap in taps: order.append((j, tap))
        if wnext:
            for i, rd in enumerate(wreads(phi+1)):
                post[(5*(i//2)+4) if opt.dsb else 2*i].append(rd)
        if xreload:
            for q in range(12):
                lastn = max(n for n, (j, tap) in enumerate(order) if j + tap == q)
                if opt.dsb: lastn = 5*(lastn//5) + 4
                post[lastn].append(xread(q, ((phi+1) >> 2) & 1))
        if opt.dsb and extra:
            ex2 = {}
            for n, v in extra.items(): ex2.setdefault(min(5*(n//5)+4, 39) if opt.dsb > 1 else n, []).extend(v)
            extra = ex2
        for n, (j, tap) in enumerate(order):
            mfma(acc(j, nb), WF(st, tap), XF(j+tap))
            for (t, regs) in post[n]:
                if opt.nods: continue
                ds.issue(t, regs)
            if extra and n in extra:
                for t in extra[n]: A(t)

    groups = [int(g) for g in opt.groups.split(',')] if opt.groups else None
    assert groups
    NIT = 7
    xupd = {3: [f"v_add_u32 v{V_X0}, s{S_XD}, v{V_X0}"],
            7: [f"v_add_u32 v{V_X1[0]}, s{S_XD}, v{V_X1[0]}"],
            23: [f"v_add_u32 v{V_X1[1]}, s{S_XD}, v{V_X1[1]}"],
            27: [f"v_add_u32 v{V_X1[2]}, s{S_XD}, v{V_X1[2]}"],
            31: [f"v_add_u32 v{V_X1[3]}, s{S_XD}, v{V_X1[3]}"],
            35: [f"s_sub_u32 s{S_XD}, 0, s{S_XD}"]}
    def body():
        phase(0)
        phase(1, barrier=True)
        phase(2)
        phase(3, barrier=True, xreload=True)
        phase(4)
        phase(5, barrier=True, extra=xupd)
        phase(6, extra={25: [f"s_add_u32 s{S_K}, s{S_K}, 1"]})
        phase(7, barrier=True, xreload=True, extra={33: [f"s_cmp_lt_u32 s{S_K}, {NIT}"]})
    saveL = list(A.L)
    ds.q = []; ds.t = []; body(); Q1, T1 = ds.getq()
    body(); Q2, T2 = ds.getq()
    assert Q1 == Q2 and T1 == T2, (Q1, Q2)
    A.L = saveL
    if opt.fstamp:
        A("s_memtime s[60:61]")
        A("s_waitcnt lgkmcnt(0)")
        A("v_writelane_b32 v9, s60, 60")
        A("v_writelane_b32 v9, s44, 61")
    if opt.xsplit: A("s_waitcnt vmcnt(0)")
    A("s_barrier")
    if opt.stamp:
        A("s_memtime s[50:51]")
        A("s_memrealtime s[48:49]")
        A("s_waitcnt lgkmcnt(0)")
    if opt.spin:
        A("s_memrealtime s[66:67]")
        A("s_waitcnt lgkmcnt(0)")
    wr = wreads(0)
    order = []
    for tap in range(5):
        order.append(xread(tap)); order += wr[2*tap:2*tap+2]
    for q in range(5, 12): order.append(xread(q))
    tail = [o for o in order if set(o[1]) in Q1]
    head = [o for o in order if set(o[1]) not in Q1]
    tail.sort(key=lambda o: Q1.index(set(o[1])))
    assert len(tail) == len(Q1)
    ds.q = []; ds.t = []
    for k, (t, regs) in enumerate(head + tail):
        if len(ds.q) >= 14: ds.wait_n(8)
        ds.issue(t, regs)
    ds.wait_n(len(Q1))
    ds.setq(Q1, T1)
    A(".p2align 6")
    A("L_cloop:")
    body()
    A("s_cbranch_scc1 L_cloop")
    A("; @@final")
    A("L_final:")
    assert ds.getq()[0] == Q1

    TB = 10
    def epi_ops(j, PB):
        outs = []
        for p in range(2):
            for i in range(4):
                outs.append((acc(j, p) + i, acc(j, 2+p) + i, TB + 4*p + i))
        ops = []
        for (f, g, t) in outs: ops.append((4, f"v_mul_f32 v{t}, s36, v{f}"))
        for (f, g, t) in outs: ops.append((4, f"v_mul_f32 v{g}, s38, v{g}"))
        for (f, g, t) in outs: ops.append((8, f"v_exp_f32 v{t}, -|v{t}|"))
        for (f, g, t) in outs: ops.append((8, f"v_exp_f32 v{g}, v{g}"))
        for (f, g, t) in outs: ops.append((4, f"v_bfi_b32 v{f}, s42, 1.0, v{f}"))
        for (f, g, t) in outs: ops.append((4, f"v_fmac_f32 v{f}, v{t}, v{f}"))
        for (f, g, t) in outs: ops.append((4, f"v_fmac_f32 v{f}, v{g}, v{f}"))
        for (f, g, t) in outs: ops.append((8, f"v_rcp_f32 v{f}, v{f}"))
        for (f, g, t) in outs: ops.append((4, f"v_fma_f32 v{t}, -v{t}, v{f}, v{f}"))
        for k in range(4): ops.append((4, f"v_cvt_pk_bf16_f32 v{PB+k}, v{TB+2*k}, v{TB+2*k+1}"))
        fin = [(4, f"v_permlane16_swap_b32 v{PB}, v{PB+2}"), (4, f"v_permlane16_swap_b32 v{PB+1}, v{PB+3}")]
        if j >= 2: fin.append((4, f"s_mov_b32 s43, {4096*(j//2)}"))
        so = "0" if j < 2 else "s43"
        fin.append((4, f"buffer_store_dwordx4 v[{PB}:{PB+3}], v{V_OUT}, s[20:23], {so} offen offset:{2048*(j&1)}{opt.spol}"))
        return ops, fin

    tail_js = list(range(8))
    if not groups:
        phase(60); phase(61, barrier=True); phase(62); phase(63, wnext=False)
    else:
        assert sum(groups) == 8
        subs = []
        j0 = 0
        for gi, gsz in enumerate(groups):
            js = list(range(j0, j0+gsz)); j0 += gsz
            for ks in range(2):
                for nb in range(4):
                    subs.append(dict(g=gi, js=js, ks=ks, nb=nb))
        mf = []
        for si, sb in enumerate(subs):
            sb['start'] = len(mf)
            for ji, j in enumerate(sb['js']):
                for tap in (range(4, -1, -1) if (opt.snake and ji % 2 == 1) else range(5)):
                    mf.append(dict(sub=si, acc=acc(j, sb['nb']), tap=tap, xkey=(sb['g'], sb['ks'], j+tap)))
            sb['end'] = len(mf)
        NM = len(mf)
        post = {n: [] for n in range(NM)}
        for si in range(len(subs)-1):
            nx = subs[si+1]
            p = nx['nb'] & 1; half = nx['nb'] >> 1; st = (si+1) & 1
            vw = V_W[p] if nx['ks'] == 0 else VW2[p]
            L = subs[si]['end'] - subs[si]['start']
            k = 0
            for tap in range(5):
                for h in range(2):
                    r = WF(st, tap) + 2*h
                    off = half*WUNIT + tap*4096 + h*512
                    pos = subs[si]['start'] + (k * max(L-4, 10)) // 10
                    pos = min(pos, subs[si]['end']-1)
                    post[pos].append((f"ds_read_b64_tr_b16 a[{r}:{r+1}], v{vw} offset:{off}", [('a', r), ('a', r+1)]))
                    k += 1
        first = {}; last = {}
        for n, m in enumerate(mf):
            first.setdefault(m['xkey'], n); last[m['xkey']] = n
        slot_of = {}; slot_free = [-1]*12
        init = [k for k in first if k[0] == 0 and k[1] == 0]
        for k in init:
            slot_of[k] = k[2]; slot_free[k[2]] = last[k]
        rest = sorted([k for k in first if k not in slot_of], key=lambda k: first[k])
        for k in rest:
            sl = min(range(12), key=lambda i: slot_free[i])
            pos = slot_free[sl]
            pos = max(pos, first[k]-60, 0)
            assert first[k] - pos >= 14, (k, first[k], pos)
            slot_of[k] = sl; slot_free[sl] = last[k]
            g, ks, q = k
            r = XF(sl); regs = [('a', r+i) for i in range(4)]
            if q < 8: t = f"ds_read_b128 a[{r}:{r+3}], v{V_X0} offset:{q*4096 + ks*512}"
            else: t = f"ds_read_b128 a[{r}:{r+3}], v{V_X1[q-8]} offset:{ks*512}"
            if opt.lsched:
                p2 = pos
                while post[p2] and first[k] - (p2+1) >= 14: p2 += 1
                if not post[p2]: pos = p2
            post[pos].append((t, regs))
        bar_at = {}
        for si, sb in enumerate(subs):
            if sb['g'] == 0 and (sb['ks'], sb['nb']) in [(0, 2), (1, 0), (1, 2)]:
                bar_at[subs[si-1]['start']] = True
        fill = {n: [] for n in range(NM)}
        j0 = 0
        for gi, gsz in enumerate(groups[:-1]):
            js = list(range(j0, j0+gsz)); j0 += gsz
            g0 = min(sb['start'] for sb in subs if sb['g'] == gi+1) + 2
            g1 = max(sb['end'] for sb in subs if sb['g'] == gi+1)
            if not opt.lsched:
                ops = []
                pendfin = []
                for idx, j in enumerate(js):
                    o, fin = epi_ops(j, 20 + 4*(j & 1))
                    ops += o[:2] + pendfin + o[2:]
                    pendfin = fin
                ops += [(4, "s_nop 1")] + pendfin
                total = sum(c for c, _ in ops)
                used = {n: 4*len(post[n]) + (8 if n in bar_at else 0) for n in range(g0, g1)}
                free = sum(max(0, 8-used[n]) for n in range(g0, g1))
                extra = max(0, total - free)
                i = 0; carry = 0.0
                for n in range(g0, g1):
                    budget = max(0, 8-used[n]) + extra/(g1-g0) + carry
                    while i < len(ops) and ops[i][0] <= budget + 1e-9:
                        fill[n].append(ops[i][1]); budget -= ops[i][0]; i += 1
                    carry = min(budget, 8)
                while i < len(ops):
                    fill[g1-1].append(ops[i][1]); i += 1
                if opt.verbose: sys.stderr.write(f"group {gi}: valu {total} free {free} extra {extra}\n")
            else:
                ops = []
                def add(text, cost, deps, prio):
                    ops.append(dict(text=text, cost=cost, deps=deps, prio=prio, gap=None)); return len(ops)-1
                last_cvt = {}; last_store = {}
                for idx, j in enumerate(js):
                    TBj = 10 if idx % 2 == 0 else 32
                    PB = 20 + 4*(j & 1)
                    outs = []
                    for p in range(2):
                        for i in range(4): outs.append((acc(j, p) + i, acc(j, 2+p) + i, TBj + 4*p + i))
                    fin_t = []
                    for oi, (f, g, t) in enumerate(outs):
                        war = [(last_cvt[(idx % 2, oi//2)], 1)] if (idx % 2, oi//2) in last_cvt else []
                        pr = lambda st: (idx, st, oi)
                        m1 = add(f"v_mul_f32 v{t}, s36, v{f}", 4, war, pr(0))
                        m2 = add(f"v_mul_f32 v{g}, s38, v{g}", 4, [], pr(0))
                        e1 = add(f"v_exp_f32 v{t}, -|v{t}|", 8, [(m1, 1)], pr(1))
                        e2 = add(f"v_exp_f32 v{g}, v{g}", 8, [(m2, 1)], pr(1))
                        b1 = add(f"v_bfi_b32 v{f}, s42, 1.0, v{f}", 4, [(m1, 1)], pr(1))
                        f1 = add(f"v_fmac_f32 v{f}, v{t}, v{f}", 4, [(e1, 1), (b1, 1)], pr(2))
                        f2 = add(f"v_fmac_f32 v{f}, v{g}, v{f}", 4, [(e2, 1), (f1, 1)], pr(3))
                        r1 = add(f"v_rcp_f32 v{f}, v{f}", 8, [(f2, 1)], pr(4))
                        f3 = add(f"v_fma_f32 v{t}, -v{t}, v{f}, v{f}", 4, [(r1, 1)], pr(5))
                        fin_t.append(f3)
                    cv = []
                    for k in range(4):
                        dep = [(fin_t[2*k], 1), (fin_t[2*k+1], 1)]
                        if idx % 2 in last_store: dep.append((last_store[idx % 2], 2))
                        c = add(f"v_cvt_pk_bf16_f32 v{PB+k}, v{TBj+2*k}, v{TBj+2*k+1}", 4, dep, (idx, 6, k))
                        last_cvt[(idx % 2, k)] = c; cv.append(c)
                    s1 = add(f"v_permlane16_swap_b32 v{PB}, v{PB+2}", 4, [(cv[0], 2), (cv[2], 2)], (idx, 7, 0))
                    s2 = add(f"v_permlane16_swap_b32 v{PB+1}, v{PB+3}", 4, [(cv[1], 2), (cv[3], 2)], (idx, 7, 1))
                    so = "0" if j < 2 else "s43"
                    txt = f"buffer_store_dwordx4 v[{PB}:{PB+3}], v{V_OUT}, s[20:23], {so} offen offset:{2048*(j&1)}{opt.spol}"
                    if j >= 2: txt = f"s_mov_b32 s43, {4096*(j//2)}\n" + txt
                    st = add(txt, 4 if j < 2 else 8, [(s1, 1), (s2, 1)], (idx, 8, 0))
                    last_store[idx % 2] = st
                ends = {sb['end']-1 for sb in subs}
                cap = {n: 8 - 4*len(post[n]) - (4 if n in ends else 0) for n in range(g0, g1)}
                slack = opt.lsched - 1
                for n in range(g0, g1):
                    c = cap[n] + slack
                    while True:
                        ready = [o for o in ops if o['gap'] is None and o['cost'] <= c and
                                 all(ops[d]['gap'] is not None and ops[d]['gap'] + mg <= n for d, mg in o['deps'])]
                        if not ready: break
                        tr = [o for o in ready if o['cost'] == 8]
                        pick = min(tr or ready, key=lambda o: o['prio'])
                        pick['gap'] = n; fill[n].append(pick['text']); c -= pick['cost']
                left = [o for o in ops if o['gap'] is None]
                if opt.verbose: sys.stderr.write(f"group {gi}: {len(ops)} ops, {len(left)} left over\n")
                if left:
                    order_ = sorted(left, key=lambda o: o['prio'])
                    tailfill = []
                    for o in order_:
                        if o['text'].startswith('v_permlane'): tailfill.append("s_nop 1")
                        tailfill.append(o['text'])
                        if o['text'].startswith(('v_exp', 'v_rcp')): tailfill.append("s_nop 0")
                    fill[g1-1] += tailfill
            for j in js: tail_js.remove(j)
        A("; ---- final chunk")
        def fstamp(idx):
            if opt.fstamp:
                A("s_memtime s[60:61]")
                ds.drain()
                A(f"v_writelane_b32 v9, s60, {idx}")
        fstamp(0)
        fi = 1
        for n, m in enumerate(mf):
            if opt.fstamp and n > 0 and n == subs[m['sub']]['start']:
                fstamp(fi); fi += 1
            if n in bar_at:
                ds.drain()
                if not opt.nobar: A("s_barrier")
            st = m['sub'] & 1
            mfma(m['acc'], WF(st, m['tap']), XF(slot_of[m['xkey']]))
            for (t, regs) in post[n]: ds.issue(t, regs)
            for t in fill[n]:
                for tt in t.split("\n"): A(tt)
            if opt.tailshift and 100 <= n < 100 + opt.tailshift: A("s_nop 0")
    if opt.stamp:
        ds.drain()
        A("s_memtime s[52:53]")
        A("s_memrealtime s[54:55]")
        A("s_waitcnt lgkmcnt(0)")
    if opt.spin:
        ds.drain()
        A("s_memrealtime s[68:69]")
        A("s_waitcnt lgkmcnt(0)")
    A("; ---- epilogue")
    A("s_nop 7")
    def epi_math(j, PB):
        pairs = []
        for p in range(2):
            for h in range(2):
                f = acc(j, p) + 2*h; g = acc(j, 2+p) + 2*h
                pairs.append((f, g, TB + 2*(2*p+h), PB + 2*p + h))
        for (f, g, t, o) in pairs: A(f"v_pk_mul_f32 v[{t}:{t+1}], v[{f}:{f+1}], s[36:37]")
        for (f, g, t, o) in pairs: A(f"v_pk_mul_f32 v[{g}:{g+1}], v[{g}:{g+1}], s[38:39]")
        for (f, g, t, o) in pairs:
            A(f"v_exp_f32 v{t}, -|v{t}|"); A(f"v_exp_f32 v{t+1}, -|v{t+1}|")
        for (f, g, t, o) in pairs:
            A(f"v_exp_f32 v{g}, v{g}"); A(f"v_exp_f32 v{g+1}, v{g+1}")
        for (f, g, t, o) in pairs:
            A(f"v_bfi_b32 v{f}, s42, 1.0, v{f}"); A(f"v_bfi_b32 v{f+1}, s42, 1.0, v{f+1}")
        for (f, g, t, o) in pairs: A(f"v_pk_fma_f32 v[{f}:{f+1}], v[{t}:{t+1}], v[{f}:{f+1}], v[{f}:{f+1}]")
        for (f, g, t, o) in pairs: A(f"v_pk_fma_f32 v[{f}:{f+1}], v[{g}:{g+1}], v[{f}:{f+1}], v[{f}:{f+1}]")
        for (f, g, t, o) in pairs:
            A(f"v_rcp_f32 v{f}, v{f}"); A(f"v_rcp_f32 v{f+1}, v{f+1}")
        for (f, g, t, o) in pairs: A(f"v_pk_fma_f32 v[{t}:{t+1}], v[{t}:{t+1}], v[{f}:{f+1}], v[{f}:{f+1}] neg_lo:[1,0,0] neg_hi:[1,0,0]")
        for (f, g, t, o) in pairs: A(f"v_cvt_pk_bf16_f32 v{o}, v{t}, v{t+1}")
        A("s_nop 1")
        A(f"v_permlane16_swap_b32 v{PB}, v{PB+2}")
        A(f"v_permlane16_swap_b32 v{PB+1}, v{PB+3}")
    def gstore(j, PB):
        if j >= 2: A(f"s_mov_b32 s43, {4096*(j//2)}")
        so = "0" if j < 2 else "s43"
        A(f"buffer_store_dwordx4 v[{PB}:{PB+3}], v{V_OUT}, s[20:23], {so} offen offset:{2048*(j&1)}{opt.spol}")
    if not opt.full:
        for j in tail_js:
            PB = 20 + 4*(j & 1)
            epi_math(j, PB)
            gstore(j, PB)
    else:
        gs = opt.full
        pend = []
        for j0 in range(0, 8, gs):
            for j in range(j0, j0+gs):
                PB = 20 + 4*(j & 1)
                epi_math(j, PB)
                A(f"ds_write_b128 v28, v[{PB}:{PB+3}] offset:{j*2048}")
                if pend:
                    jj = pend.pop(0)
                    A("s_waitcnt lgkmcnt(1)")
                    gstore(jj, 32 + 4*(jj & 1))
                    if pend: A(f"ds_read_b128 v[{32+4*(pend[0]&1)}:{35+4*(pend[0]&1)}], v29 offset:{pend[0]*2048}")
            while pend:
                jj = pend.pop(0)
                A("s_waitcnt lgkmcnt(0)")
                gstore(jj, 32 + 4*(jj & 1))
                if pend: A(f"ds_read_b128 v[{32+4*(pend[0]&1)}:{35+4*(pend[0]&1)}], v29 offset:{pend[0]*2048}")
            A("s_waitcnt lgkmcnt(0)")
            A("s_barrier")
            pend = list(range(j0, j0+gs))
            A(f"ds_read_b128 v[{32+4*(pend[0]&1)}:{35+4*(pend[0]&1)}], v29 offset:{pend[0]*2048}")
        while pend:
            jj = pend.pop(0)
            if pend: A(f"ds_read_b128 v[{32+4*(pend[0]&1)}:{35+4*(pend[0]&1)}], v29 offset:{pend[0]*2048}")
            A("s_waitcnt lgkmcnt(%d)" % (1 if pend else 0))
            gstore(jj, 32 + 4*(jj & 1))
            A("s_nop 0")
    if opt.spin:
        A("s_memrealtime s[64:65]")
        A("s_waitcnt lgkmcnt(0)")
        A("s_waitcnt vmcnt(0)")
        A("s_memrealtime s[70:71]")
        A("s_waitcnt lgkmcnt(0)")
        which, mult = opt.spin.split(',')
        a, b = {'pro': (62, 66), 'main': (66, 68), 'epi': (68, 70), 'epiv': (68, 64), 'drain': (64, 70), 'none': (70, 70)}[which]
        A(f"s_sub_u32 s43, s{b}, s{a}")
        A(f"s_mul_i32 s43, s43, {mult}")
        A("s_add_u32 s43, s43, s70")
        A("L_spin:")
        A("s_memrealtime s[60:61]")
        A("s_waitcnt lgkmcnt(0)")
        A("s_sub_u32 s42, s60, s43")
        A("s_cmp_lt_i32 s42, 0")
        A("s_cbranch_scc1 L_spin")
    if opt.stamp:
        A("s_waitcnt vmcnt(0)")
        A("s_memtime s[56:57]")
        A("s_memrealtime s[58:59]")
        A("s_waitcnt lgkmcnt(0)")
        if opt.dbgstamp:
            A("s_sub_u32 s60, s50, s44")
            A("s_sub_u32 s61, s48, s46")
            A("s_sub_u32 s62, s52, s50")
            A("s_sub_u32 s63, s54, s48")
            A("s_sub_u32 s64, s56, s52")
            A("s_sub_u32 s65, s56, s44")
            A("s_sub_u32 s66, s58, s46")
            A("s_mov_b32 s67, s46")
            A("s_cmp_lg_u32 s24, 0")
            A("s_cbranch_scc1 L_nostamp")
            A("s_mov_b32 s43, 0")
            A("s_cmp_eq_u32 s2, 0")
            A("s_cbranch_scc1 L_dostamp")
            A("s_mov_b32 s43, 32")
            A("s_cmp_eq_u32 s2, 133")
            A("s_cbranch_scc0 L_nostamp")
            A("L_dostamp:")
            A("s_mov_b32 s68, s40"); A("s_mov_b32 s69, s41"); A("s_mov_b32 s70, 256"); A("s_mov_b32 s71, 0x20000")
            A("v_mov_b32 v9, s43")
            A("s_mov_b64 exec, 1")
            for i in range(2):
                for k in range(4): A(f"v_mov_b32 v{12+k}, s{60+4*i+k}")
                A(f"buffer_store_dwordx4 v[12:15], v9, s[68:71], 0 offen offset:{16*i}")
                A("s_nop 1")
            A("L_nostamp:")
        else:
            A("s_mov_b32 s60, s40"); A("s_mov_b32 s61, s41"); A("s_mov_b32 s62, 0x10000000"); A("s_mov_b32 s63, 0x20000")
            if opt.kstamp or opt.fstamp:
                A("s_lshl_b32 s43, s2, 2"); A("s_add_u32 s43, s43, s24"); A("s_lshl_b32 s43, s43, 8")
                A("s_add_u32 s43, s43, 0x20000")
                A("v_lshlrev_b32 v12, 2, v0")
                A("v_add_u32 v12, s43, v12")
                A("buffer_store_dword v9, v12, s[60:63], 0 offen")
                A("s_nop 1")
            A("s_lshl_b32 s43, s2, 2"); A("s_add_u32 s43, s43, s24"); A("s_lshl_b32 s43, s43, 6")
            A("v_mov_b32 v9, s43")
            A("s_mov_b64 exec, 1")
            for i in range(4):
                for k in range(4): A(f"v_mov_b32 v{12+k}, s{44+4*i+k}")
                A(f"buffer_store_dwordx4 v[12:15], v9, s[60:63], 0 offen offset:{16*i}")
                A("s_nop 1")
    A("s_endpgm")
    A("L_codeend:")

    A('.section .rodata,"a"')
    A(".p2align 6")
    A(f".amdhsa_kernel {NAME}")
    A("  .amdhsa_next_free_vgpr 256")
    A("  .amdhsa_next_free_sgpr 96")
    A("  .amdhsa_accum_offset 168")
    A("  .amdhsa_group_segment_fixed_size 0")
    A("  .amdhsa_kernarg_size 40")
    A("  .amdhsa_user_sgpr_count 2")
    A("  .amdhsa_user_sgpr_kernarg_segment_ptr 1")
    A("  .amdhsa_system_sgpr_workgroup_id_x 1")
    A("  .amdhsa_float_denorm_mode_32 3")
    A(".end_amdhsa_kernel")
    if opt.meta:
        A(f""".amdgpu_metadata
---
amdhsa.version: [1, 2]
amdhsa.kernels:
  - .name: {NAME}
    .symbol: {NAME}.kd
    .kernarg_segment_size: 40
    .kernarg_segment_align: 8
    .group_segment_fixed_size: 0
    .private_segment_fixed_size: 0
    .wavefront_size: 64
    .sgpr_count: 96
    .vgpr_count: 256
    .max_flat_workgroup_size: 512
    .args:
      - {{.name: kernargs, .size: 40, .offset: 0, .value_kind: by_value}}
...
.end_amdgpu_metadata""")
    if opt.verbose: sys.stderr.write(f"loader waits: {Ns}\nloop: {Nl}\n")
    return A.text()

def parse(argv=None):
    ap = argparse.ArgumentParser()
    ap.add_argument("-o", default="/dev/stdout")
    for o in ["meta", "stamp", "dbgstamp", "nods", "nodma", "nodmaw", "nodmax", "nobar", "verbose", "lstamp", "touch", "cpf", "kstamp", "mzero", "snake", "fstamp", "pads", "pad8", "xsplit"]:
        ap.add_argument("--"+o, action="store_true")
    ap.add_argument("--spin", default="")
    ap.add_argument("--sched", default="")
    ap.add_argument("--lsched", type=int, default=0)
    ap.add_argument("--otouch", type=int, default=0)
    ap.add_argument("--otpol", default="nt")
    ap.add_argument("--tailshift", type=int, default=0)
    ap.add_argument("--skip", type=int, default=0)
    ap.add_argument("--wmerge", type=int, default=0)
    ap.add_argument("--align", default="")
    ap.add_argument("--dsb", type=int, default=0)
    ap.add_argument("--groups", default="")
    ap.add_argument("--full", type=int, default=0)
    ap.add_argument("--rot", default="")
    ap.add_argument("--order", default="xwx")
    ap.add_argument("--cprio", type=int, default=0)
    ap.add_argument("--lprio", type=int, default=0)
    ap.add_argument("--npre", type=int, default=3)
    ap.add_argument("--wpol", default="")
    ap.add_argument("--xpol", default="")
    ap.add_argument("--spol", default="nt")
    opt = ap.parse_args(argv)
    for k in ["wpol", "xpol", "spol", "otpol"]:
        v = getattr(opt, k)
        if v: setattr(opt, k, " " + v)
    return opt

def offsets(text):
    import subprocess, tempfile, os, re
    L = text.split("\n")
    start = L.index("L_compute:")
    out = []
    for i, l in enumerate(L):
        if i > start and l and not l.startswith(('.', ';')) and not l.endswith(':') and i < L.index('L_codeend:'):
            out.append(f"LL_{i}:")
        out.append(l)
    d = tempfile.mkdtemp()
    open(d+"/a.s", "w").write("\n".join(out))
    subprocess.check_call(["clang", "-x", "assembler", "-target", "amdgcn-amd-amdhsa", "-mcpu=gfx950", "-c", d+"/a.s", "-o", d+"/a.o"])
    sym = subprocess.check_output(["llvm-readelf", "-s", "--wide", d+"/a.o"]).decode()
    addr = {}
    for line in sym.splitlines():
        p = line.split()
        if len(p) == 8 and p[0].endswith(':'):
            try: addr[p[7]] = int(p[1], 16)
            except ValueError: pass
    base = addr["L_page0"]
    return {int(k[3:]): v - base for k, v in addr.items() if k.startswith("LL_")}, addr

E64_OK = ("v_mul_f32", "v_add_f32", "v_fmac_f32", "v_exp_f32", "v_rcp_f32", "v_add_u32", "v_mov_b32")
def align8(text, first_label, last_marker=None):
    L = text.split("\n")
    tmp = list(L)
    missing = [f"L_pad{m}:" for m in range(NPADS) if f"L_pad{m}:" not in L and any(f"L_pad{m}" in x for x in L)]
    ci = tmp.index("L_codeend:")
    off, addr = offsets("\n".join(tmp[:ci+1] + missing + tmp[ci+1:]))
    idx = sorted(off)
    size = {}
    for a, b in zip(idx, idx[1:]): size[a] = off[b] - off[a]
    size[idx[-1]] = 4
    start = L.index(first_label + ":")
    stop = L.index(last_marker) if last_marker else ci
    par = None
    ins = {}
    cand = None
    nw = nn = 0
    for i in idx:
        if i < start or i >= stop: continue
        if par is None: par = off[i] % 8
        sz = size[i]
        op = L[i].split()[0]
        if sz == 8:
            if par == 4:
                if cand is not None:
                    o = L[cand].split()[0]
                    L[cand] = L[cand].replace(o, o + "_e64", 1); nw += 1
                else:
                    ins[i] = True; nn += 1
                par = 0
            cand = None
        else:
            par ^= 4
            if op in E64_OK and "|" not in L[i] and "0x" not in L[i]:
                cand = i
            if par == 0: cand = None if op not in E64_OK else cand
    for i in sorted(ins, reverse=True): L.insert(i, "s_nop 0")
    sys.stderr.write(f"align8: widened {nw}, nops {nn}\n")
    return "\n".join(L)

def add_pads(text):
    npad = 0
    for bound in range(4096, 8*4096, 4096):
        L = text.split("\n")
        tmp = list(L)
        missing = [f"L_pad{m}:" for m in range(NPADS) if f"L_pad{m}:" not in L]
        ci = tmp.index("L_codeend:")
        off, addr = offsets("\n".join(tmp[:ci+1] + missing + tmp[ci+1:]))
        cand = sorted(i for i, o in off.items() if o >= bound)
        if not cand: break
        i = cand[0]
        if i < L.index("L_cloop:"): continue
        assert i > L.index("; @@final") or ALLOW_LOOP_PAD, "page boundary inside the main loop"
        L[i:i] = [f"L_pad{npad}:", "s_cbranch_vccnz L_back", "s_nop 0"]
        npad += 1
        text = "\n".join(L)
    L = text.split("\n")
    for k in range(npad, NPADS):
        i = L.index(f"s_cbranch_scc1 L_pad{k}")
        del L[i-1:i+1]
    sys.stderr.write(f"pads: {npad}\n")
    return "\n".join(L)

ALLOW_LOOP_PAD = False
if __name__ == "__main__":
    opt = parse()
    t = gen(opt)
    if opt.align == 'all': t = align8(t, "L_cloop")
    if opt.align == 'final': t = align8(t, "L_final")
    if opt.align == 'loop': t = align8(t, "L_cloop", "; @@final")
    if opt.pads: t = add_pads(t)
    open(opt.o, "w").write(t)
```

```python
import sys, argparse

NAME = "standalone__autoregressive_conv_wavernn__speech_kernel"
XBATCH = 4096000
WBYTES = 5242880
WUNIT = 20480
XBASE = 4 * WUNIT
XBUF = 33792
LDS_BYTES = XBASE + 2 * XBUF

class Asm:
    def __init__(self):
        self.L = []
    def __call__(self, s):
        self.L.append(s)
    def text(self):
        return "\n".join(self.L) + "\n"

class DS:
    def __init__(self, A, T=0):
        self.A = A
        self.q = []
        self.t = []
        self.now = 0
        self.T = T
    def issue(self, text, regs):
        if self.T == 0 and len(self.q) >= 14:
            self.wait_n(10)
        self.A(text)
        self.q.append(set(regs)); self.t.append(self.now)
    def wait_n(self, n):
        n = min(n, 15)
        if len(self.q) > n:
            self.A(f"s_waitcnt lgkmcnt({n})")
            self.q = self.q[len(self.q)-n:] if n > 0 else []
            self.t = self.t[len(self.t)-n:] if n > 0 else []
    def need(self, regs):
        regs = set(regs)
        last = -1
        for i, s in enumerate(self.q):
            if s & regs:
                last = i
        if last >= 0:
            if self.T:
                while last + 1 < len(self.q) and self.t[last+1] <= self.now - self.T: last += 1
            self.wait_n(len(self.q) - 1 - last)
    def drain(self):
        self.A("s_waitcnt lgkmcnt(0)")
        self.q = []; self.t = []
    def setq(self, q, t):
        self.q = [set(x) for x in q]; self.t = [self.now + x for x in t]
    def getq(self):
        return [set(x) for x in self.q], [x - self.now for x in self.t]

ACC0 = 40
def acc(j, nb): return ACC0 + (j*4 + nb)*4
def areg(n): return f"a[{n}:{n+3}]"
def XF(q): return 4*q
def WF(st, tap): return 48 + st*20 + tap*4
V_W = [1, 2]
V_X0 = 3
V_X1 = [4, 5, 6, 7]
V_OUT = 8
S_K = 30; S_WD = 31; S_XD = 32; S_T = 33

NPADS = 3
def gen(opt):
    A = Asm()
    A("; Kernarg layout for this problem (40 bytes, ptrs only, base s[0:1]):")
    A(";   offset   0: d_in[0] x  shape=(2, 4000, 512) dtype=bfloat16")
    A(";   offset   8: d_in[1] w  shape=(5, 512, 1024) dtype=bfloat16")
    A(";   offset  16: d_out     shape=(2, 4000, 512) dtype=bfloat16")
    A("; waves 0-3 MFMA consumers, waves 4-7 LDS-DMA loaders.")
    A(f"; @launch grid=(256,1,1) block=(512,1,1) lds={LDS_BYTES}")
    A('.amdgcn_target "amdgcn-amd-amdhsa--gfx950"')
    A(".text")
    A(f".globl {NAME}")
    A(".p2align 8")
    A(f".type {NAME},@function")
    A(f"{NAME}:")
    A("s_cmp_ge_u32 s2, 256")
    A("s_cbranch_scc1 L_end")
    A("s_load_dwordx4 s[4:7], s[0:1], 0")
    A("s_load_dwordx2 s[8:9], s[0:1], 16")
    if opt.stamp:
        A("s_load_dwordx2 s[40:41], s[0:1], %d" % (24 if opt.dbgstamp else 32))
        A("s_memtime s[44:45]")
        A("s_memrealtime s[46:47]")
    if opt.spin:
        A("s_memrealtime s[62:63]")
    A("v_lshrrev_b32 v1, 6, v0")
    A("v_and_b32 v0, 63, v0")
    A("s_and_b32 s28, s2, 7")
    A("v_readfirstlane_b32 s24, v1")
    A("s_lshr_b32 s29, s2, 3")
    A("s_lshr_b32 s30, s28, 1")
    A("s_lshl_b32 s30, s30, 3")
    A("s_lshr_b32 s31, s29, 2")
    A("s_add_u32 s30, s30, s31")
    A("s_and_b32 s31, s28, 1")
    A("s_lshl_b32 s31, s31, 2")
    A("s_and_b32 s29, s29, 3")
    A("s_add_u32 s31, s31, s29")
    A("s_lshr_b32 s27, s30, 4")
    A("s_and_b32 s25, s30, 15")
    A("s_lshl_b32 s25, s25, 8")
    A("s_lshl_b32 s26, s31, 6")
    A(f"s_mul_i32 s28, s27, {XBATCH}")
    def emit_xoff():
        A("v_lshrrev_b32 v10, 5, v0")
        A("v_bfe_u32 v11, v0, 2, 3")
        A("v_and_b32 v12, 3, v0")
        A("v_lshrrev_b32 v13, 2, v11")
        A("v_lshlrev_b32 v13, 1, v13")
        A("v_xor_b32 v13, v13, v12")
        A("v_lshlrev_b32 v14, 6, v10")
        A("v_lshl_add_u32 v15, v13, 4, v14")
        A("v_lshl_add_u32 v16, v12, 4, v14")
        A("v_and_b32 v13, 1, v11")
        A("v_lshrrev_b32 v17, 1, v11")
        A("v_lshl_add_u32 v13, v17, 4, v13")
        A("s_lshl_b32 s35, s34, 6")
        A("s_add_u32 s35, s35, s25")
        A("s_sub_u32 s35, s35, 8")
        A("v_add_u32 v13, s35, v13")
        A("v_lshlrev_b32 v17, 10, v13")
        A("v_add_u32 v17, v17, v15")
        A("v_add_u32 v3, 0x2000, v17")
        A("v_bfrev_b32 v18, 1")
        A("v_cmp_gt_i32 vcc, 0, v13")
        A("s_add_u32 s35, s25, 248")
        A("v_add_u32 v11, s35, v11")
        A("v_cndmask_b32 v2, v17, v18, vcc")
        A("v_lshlrev_b32 v11, 10, v11")
        A("v_add_u32 v4, v11, v16")
        A("s_lshl_b32 s35, s34, 4")
        A("s_mov_b64 s[36:37], 0xffff")
        A("s_lshl_b64 s[36:37], s[36:37], s35")
        A(f"s_mov_b32 s14, {XBATCH}")
        A("s_mov_b32 s15, 0x20000")
    def emit_woff():
        A("v_lshrrev_b32 v10, 3, v0")
        A("v_and_b32 v11, 7, v0")
        A("v_lshrrev_b32 v12, 1, v11")
        A("v_bfe_u32 v13, v10, 1, 1")
        A("s_and_b32 s35, s34, 1")
        A("s_lshl_b32 s35, s35, 1")
        A("v_or_b32 v13, s35, v13")
        A("v_xor_b32 v12, v12, v13")
        A("v_lshlrev_b32 v12, 5, v12")
        A("v_and_b32 v11, 1, v11")
        A("v_lshl_add_u32 v12, v11, 4, v12")
        A("s_lshl_b32 s35, s34, 3")
        A("v_add_u32 v10, s35, v10")
        A("v_lshl_add_u32 v12, v10, 11, v12")
        A("s_lshl_b32 s35, s26, 1")
        A("v_add_u32 v1, s35, v12")
        A(f"s_mov_b32 s18, {WBYTES}")
        A("s_mov_b32 s19, 0x20000")
    def emit_xstate(first_chunk):
        A(f"s_mov_b32 s66, {128*first_chunk}")
        A(f"s_add_u32 s67, s38, {XBASE + XBUF*(first_chunk & 1)}")
        A(f"s_add_u32 s69, s38, {XBASE + XBUF*((first_chunk & 1) ^ 1)}")
        A("s_xor_b32 s69, s69, s67")
    vq = []
    xq = []
    def x_issue(c, part, half=None, q_=None):
        q_ = vq if q_ is None else q_
        if opt.nodmax and c > 1: return
        qs = range(0, 4) if part == 0 else range(4, 8)
        tag = ('XH', c) if half == 'hi' else ('X', c)
        if half == 'lo': A("s_mov_b32 exec_hi, 0")
        if half == 'hi': A("s_mov_b32 exec_lo, 0")
        for q in qs:
            A(f"s_add_u32 m0, s67, {q*4096}")
            if q < 4:
                A(f"s_add_u32 s68, s66, {2*q*1024}")
                A(f"buffer_load_dwordx4 v2, s[12:15], s68 offen{opt.xpol} lds")
            else:
                A(f"s_add_u32 s68, s66, {(2*q-8)*1024}")
                A(f"buffer_load_dwordx4 v3, s[12:15], s68 offen{opt.xpol} lds")
            q_.append(tag)
        if half: A("s_mov_b64 exec, -1")
        if part == 1 and half != 'hi':
            A(f"s_sub_u32 m0, s67, s38")
            A(f"s_add_u32 m0, m0, 32768")
            A("s_mov_b64 exec, s[36:37]")
            A(f"buffer_load_dwordx4 v4, s[12:15], s66 offen{opt.xpol} lds")
            A("s_mov_b64 exec, -1")
            q_.append(tag)
        if part == 1 and half != 'lo':
            A("s_add_u32 s66, s66, 128")
            A("s_xor_b32 s67, s67, s69")
    A("s_and_b32 s34, s24, 3")
    A("s_lshl_b32 s38, s34, 10")
    if opt.xsplit:
        A("s_cmp_ge_u32 s24, 4")
        A("s_cbranch_scc1 L_loader")
        if opt.lprio: A(f"s_setprio {opt.lprio}")
        emit_xoff()
        emit_xstate(0)
        A("s_waitcnt lgkmcnt(0)")
        A("s_add_u32 s12, s4, s28")
        A("s_addc_u32 s13, s5, 0")
        x_issue(0, 0, q_=xq); x_issue(0, 1, q_=xq)
        if opt.lprio: A("s_setprio 0")
        A("s_branch L_compute")
        A("L_loader:")
        if opt.lprio: A(f"s_setprio {opt.lprio}")
        emit_woff()
        A("s_mov_b32 s64, 0")
        A("s_mov_b32 s65, s38")
        A("s_waitcnt lgkmcnt(0)")
        A("s_mov_b32 s16, s6")
        A("s_mov_b32 s17, s7")
    else:
        A("s_cmp_lt_u32 s24, 4")
        A("s_cbranch_scc1 L_compute")
        if opt.lprio: A(f"s_setprio {opt.lprio}")
        emit_xoff()
        emit_woff()
        A("s_mov_b32 s64, 0")
        A("s_mov_b32 s65, s38")
        emit_xstate(0)
        A("s_waitcnt lgkmcnt(0)")
        A("s_add_u32 s12, s4, s28")
        A("s_addc_u32 s13, s5, 0")
        A("s_mov_b32 s16, s6")
        A("s_mov_b32 s17, s7")

    def w_issue(u):
        if opt.nodmaw and u > 3: return
        for tap in range(5):
            if tap == 0:
                A("s_mov_b32 m0, s65")
                A("s_mov_b32 s68, s64")
            else:
                A("s_add_u32 m0, m0, 4096")
                A("s_add_u32 s68, s68, 0x100000")
            A(f"buffer_load_dwordx4 v1, s[16:19], s68 offen{opt.wpol} lds")
            vq.append(('W', u))
        if u & 1:
            A(f"s_add_u32 s64, s64, {65536-1024}")
            if opt.rot: A("s_and_b32 s64, s64, 0xfffff")
        else: A("s_add_u32 s64, s64, 1024")
        if (u & 3) == 3: A(f"s_sub_u32 s65, s65, {3*WUNIT}")
        else: A(f"s_add_u32 s65, s65, {WUNIT}")
    def need_n(u):
        need = [('W', u)]
        if u % 4 == 0: need.append(('X', u//4))
        if u == 2: need.append(('XH', 0))
        last = -1
        for i, t in enumerate(vq):
            if t in need: last = i
        return len(vq) - 1 - last if last >= 0 else None
    def wait_for(u, n=None):
        nn = need_n(u)
        if n is None: n = nn
        assert nn is None or n <= nn
        if n is not None and n <= len(vq):
            A(f"s_waitcnt vmcnt({n})")
            del vq[:len(vq)-n]
    sched = {}
    if opt.sched:
        for part in opt.sched.split(';'):
            k, v = part.split(':')
            sched[k] = v.split(',') if v else []
    U0 = 3 if not opt.sched else max(int(k) for k in sched if k != 'pre') + 1
    while U0 % 4 != 3: U0 += 1
    def do_item(it):
        if it[0] == 'w': w_issue(int(it[1:]))
        elif it == 'xl': x_issue(0, 0, 'lo'); x_issue(0, 1, 'lo')
        elif it == 'xla': x_issue(0, 0, 'lo')
        elif it == 'xlb': x_issue(0, 1, 'lo')
        elif it == 'xh': x_issue(0, 0, 'hi'); x_issue(0, 1, 'hi')
        elif it[0] == 'x': x_issue(int(it[1]), 0 if it[2] == 'a' else 1)
    def issues(u):
        if str(u) in sched: return sched[str(u)]
        r = []
        if u + 3 <= 31 and u + 3 >= opt.npre: r.append(f'w{u+3}')
        if u == 1: r.append('x1a')
        elif u == 2: r.append('x1b')
        elif u % 4 == 3 and u//4 + 2 <= 7: r.append(f'x{u//4+2}a')
        elif u % 4 == 0 and u >= 4 and u//4 + 1 <= 7: r.append(f'x{u//4+1}b')
        return r
    def interval(u, nfix=None):
        wait_for(u, nfix)
        if not (opt.nobar and u > 0): A("s_barrier")
        if opt.nodma: return
        for it in issues(u): do_item(it)
    def lst(i):
        if opt.lstamp: A(f"s_memtime s[{72+2*i}:{73+2*i}]")
    lst(0)
    if opt.xsplit:
        pre = sched.get('pre', [f'w{u}' for u in range(0, opt.npre)])
    else:
        pre = sched.get('pre', ['x0a', 'w0', 'x0b'] + [f'w{u}' for u in range(1, opt.npre)])
    for ii, it in enumerate(pre):
        do_item(it)
        if ii < 3: lst(1+ii)
    if opt.xsplit:
        emit_xoff()
        emit_xstate(1)
        A("s_add_u32 s12, s4, s28")
        A("s_addc_u32 s13, s5, 0")
    lst(4)
    if opt.lstamp:
        sv = list(vq)
        wait_for(0)
        lst(5)
        A("s_waitcnt lgkmcnt(0)")
        A("s_mov_b32 s84, s40"); A("s_mov_b32 s85, s41"); A("s_mov_b32 s86, 0x10000000"); A("s_mov_b32 s87, 0x20000")
        A("s_lshl_b32 s43, s2, 2"); A("s_add_u32 s43, s43, s34"); A("s_lshl_b32 s43, s43, 6")
        A("s_add_u32 s43, s43, 0x10000")
        A("v_mov_b32 v9, s43")
        A("s_mov_b64 exec, 1")
        regs = [44,45,46,47,72,73,74,75,76,77,78,79,80,81,82,83]
        for i in range(4):
            for k in range(4): A(f"v_mov_b32 v{20+k}, s{regs[4*i+k]}")
            A(f"buffer_store_dwordx4 v[20:23], v9, s[84:87], 0 offen offset:{16*i}")
            A("s_nop 1")
        A("s_mov_b64 exec, -1")
        A("s_waitcnt vmcnt(0)")
        vq[:] = sv
    saveL = list(A.L); savevq = list(vq)
    Ns = {}
    for u in range(32):
        Ns[u] = need_n(u)
        interval(u)
    A.L = saveL; vq[:] = savevq
    for u in range(0, U0): interval(u)
    Nl = {m: min([Ns[u] for u in range(U0, 27) if u % 4 == m and Ns[u] is not None] or [0]) for m in range(4)}
    A("s_mov_b32 s70, 0")
    A("L_lloop:")
    for u in range(U0, U0+4): interval(u, nfix=Nl[u % 4])
    A("s_add_u32 s70, s70, 1")
    A(f"s_cmp_lt_u32 s70, {(27-U0)//4}")
    A("s_cbranch_scc1 L_lloop")
    saveL = list(A.L)
    for u in range(U0+4, 27): interval(u, nfix=Nl[u % 4])
    A.L = saveL
    for u in range(27, 32):
        interval(u)
        if opt.otouch and u == opt.otouch:
            A("s_add_u32 s20, s8, s28")
            A("s_addc_u32 s21, s9, 0")
            A(f"s_mov_b32 s22, {XBATCH}")
            A("s_mov_b32 s23, 0x20000")
            A("s_lshr_b32 s40, s34, 1")
            A("s_and_b32 s41, s34, 1")
            A("v_and_b32 v11, 15, v0")
            A("v_and_b32 v13, 1, v11")
            A("v_lshrrev_b32 v14, 1, v11")
            A("v_lshl_add_u32 v13, v14, 4, v13")
            A("s_lshl_b32 s40, s40, 7")
            A("s_add_u32 s40, s40, s25")
            A("v_add_u32 v13, s40, v13")
            A("v_lshrrev_b32 v14, 4, v0")
            A("v_lshl_add_u32 v13, v14, 2, v13")
            A("v_lshlrev_b32 v13, 10, v13")
            A("s_lshl_b32 s41, s41, 5")
            A("s_add_u32 s41, s41, s26")
            A("s_lshl_b32 s41, s41, 1")
            A("v_add_u32 v13, s41, v13")
            A(f"buffer_load_dword v14, v13, s[20:23], 0 offen{opt.otpol}")
    A("L_end:")
    A("s_endpgm")

    A(".p2align 12" if opt.pads else ".p2align 6")
    A("L_page0:")
    if opt.skip: A(f".fill {opt.skip//4}, 4, 0xBF800000")
    A("L_compute:")
    if opt.cprio: A(f"s_setprio {opt.cprio}")
    if opt.cpf:
        A("s_getpc_b64 s[60:61]")
        A("L_pc:")
        A("v_lshlrev_b32 v28, 7, v0")
        A("s_lshl_b32 s62, s24, 13")
        A("v_add_u32 v28, s62, v28")
        A("s_mov_b32 s62, L_codeend-L_pc-4")
        A("v_min_u32 v28, s62, v28")
        A("v_mov_b32 v29, s61")
        A("v_add_co_u32 v28, vcc, s60, v28")
        A("s_nop 1")
        A("v_addc_co_u32 v29, vcc, 0, v29, vcc")
        A("global_load_dword v9, v[28:29], off")
    A("s_lshr_b32 s34, s24, 1")
    A("s_and_b32 s35, s24, 1")
    A("v_lshrrev_b32 v10, 4, v0")
    A("v_and_b32 v11, 15, v0")
    A("v_lshrrev_b32 v12, 2, v11")
    A("v_lshl_add_u32 v12, v10, 3, v12")
    A("v_lshlrev_b32 v12, 7, v12")
    A("v_and_b32 v13, 3, v11")
    A("v_lshl_add_u32 v12, v13, 3, v12")
    A("v_lshrrev_b32 v13, 3, v11")
    A("v_and_b32 v14, 1, v10")
    A("v_lshl_or_b32 v13, v14, 1, v13")
    A("s_lshl_b32 s36, s35, 1")
    for p in range(2):
        A(f"s_add_u32 s37, s36, {p}")
        A("v_xor_b32 v14, s37, v13")
        A(f"v_lshl_add_u32 v{V_W[p]}, v14, 5, v12")
    A("s_lshl_b32 s36, s34, 4")
    def xaddr(dst, Rreg):
        A(f"v_lshrrev_b32 v15, 3, v{Rreg}")
        A(f"v_lshlrev_b32 v15, 10, v15")
        A(f"v_and_b32 v16, 7, v{Rreg}")
        A(f"v_lshl_add_u32 v15, v16, 6, v15")
        A(f"v_bfe_u32 v16, v{Rreg}, 2, 1")
        A(f"v_lshlrev_b32 v16, 1, v16")
        A(f"v_xor_b32 v16, v16, v10")
        A(f"v_lshl_add_u32 v15, v16, 4, v15")
        A(f"v_add_u32 v{dst}, {XBASE}, v15")
    A("v_add_u32 v13, s36, v11")
    xaddr(V_X0, 13)
    A("v_add_u32 v13, 2, v13")
    xaddr(17, 13)
    A("v_and_b32 v16, 1, v13")
    A("v_lshlrev_b32 v16, 6, v16")
    A("v_lshl_add_u32 v16, v10, 4, v16")
    A(f"v_add_u32 v16, {XBASE+32768}, v16")
    A("v_cmp_le_u32 vcc, 32, v13")
    for q in range(4):
        A(f"v_add_u32 v18, {q*4096}, v17")
        A(f"v_add_u32 v19, {q*128}, v16")
        A(f"v_cndmask_b32 v{V_X1[q]}, v18, v19, vcc")
    A("v_and_b32 v13, 1, v11")
    A("v_lshrrev_b32 v14, 1, v11")
    A("v_lshl_add_u32 v13, v14, 4, v13")
    A("s_lshl_b32 s36, s34, 7")
    A("s_add_u32 s36, s36, s25")
    A("v_add_u32 v13, s36, v13")
    A("v_lshlrev_b32 v13, 10, v13")
    A("v_and_b32 v14, 1, v10")
    A("v_lshlrev_b32 v14, 5, v14")
    A("v_lshrrev_b32 v15, 1, v10")
    A("v_lshl_add_u32 v14, v15, 4, v14")
    A("s_lshl_b32 s36, s35, 5")
    A("s_add_u32 s36, s36, s26")
    A("s_lshl_b32 s36, s36, 1")
    A("v_add_u32 v13, s36, v13")
    A(f"v_add_u32 v{V_OUT}, v13, v14")
    if opt.full:
        A("v_and_b32 v13, 1, v10")
        A("v_lshlrev_b32 v13, 1, v13")
        A("v_lshrrev_b32 v14, 1, v10")
        A("v_or_b32 v13, v13, v14")
        A("s_lshl_b32 s43, s35, 2")
        A("v_add_u32 v13, s43, v13")
        A("v_and_b32 v14, 7, v11")
        A("v_xor_b32 v13, v13, v14")
        A("v_lshlrev_b32 v13, 4, v13")
        A("v_lshl_add_u32 v13, v11, 7, v13")
        A("s_lshl_b32 s43, s34, 14")
        A("v_add_u32 v28, s43, v13")
        A("v_lshrrev_b32 v13, 3, v0")
        A("v_and_b32 v14, 7, v0")
        A("v_xor_b32 v15, v13, v14")
        A("v_lshlrev_b32 v15, 4, v15")
        A("s_lshl_b32 s21, s35, 3")
        A("v_add_u32 v13, s21, v13")
        A("v_lshl_add_u32 v15, v13, 7, v15")
        A("v_add_u32 v29, s43, v15")
        A("v_and_b32 v15, 1, v13")
        A("v_lshrrev_b32 v16, 1, v13")
        A("v_lshl_add_u32 v15, v16, 4, v15")
        A("s_lshl_b32 s43, s34, 7")
        A("s_add_u32 s43, s43, s25")
        A("v_add_u32 v15, s43, v15")
        A("v_lshlrev_b32 v15, 10, v15")
        A("v_lshl_add_u32 v15, v14, 4, v15")
        A("s_lshl_b32 s43, s26, 1")
        A(f"v_add_u32 v{V_OUT}, s43, v15")
    if opt.mzero:
        for r in range(4): A(f"v_mov_b32 v{32+r}, 0")
        A("s_nop 1")
        for b in range(8):
            A(f"v_mfma_f32_32x32x16_bf16 v[{ACC0+16*b}:{ACC0+16*b+15}], v[32:35], v[32:35], 0")
    else:
        for r in range(128):
            A(f"v_mov_b32 v{ACC0+r}, 0")
    A(f"s_mov_b32 s22, {XBATCH}")
    A("s_mov_b32 s23, 0x20000")
    A(f"s_mov_b32 s{S_K}, 0")
    A(f"s_mov_b32 s{S_XD}, {XBUF}")
    A(f"v_add_u32 v30, {2*WUNIT}, v{V_W[0]}")
    A(f"v_add_u32 v31, {2*WUNIT}, v{V_W[1]}")
    A("s_mov_b32 s36, 0x4038aa3b")
    A("s_mov_b32 s37, 0x4038aa3b")
    A("s_mov_b32 s38, 0xbfb8aa3b")
    A("s_mov_b32 s39, 0xbfb8aa3b")
    A("s_mov_b32 s42, 0x7fffffff")
    A("s_waitcnt lgkmcnt(0)")
    A("s_add_u32 s20, s8, s28")
    A("s_addc_u32 s21, s9, 0")
    if opt.pads:
        A("s_mov_b64 vcc, -1")
        for k in range(NPADS):
            A(f"s_cmp_eq_u32 s24, {k}")
            A(f"s_cbranch_scc1 L_pad{k}")
        A("L_back:")
        A("s_mov_b64 vcc, 0")
    if opt.touch:
        A(f"buffer_load_dword v9, v{V_OUT}, s[20:23], 0 offen")
    ds = DS(A, opt.wmerge)
    VW2 = [30, 31]
    def wreads(phi_next):
        p = phi_next & 1; half = (phi_next >> 1) & 1; st = phi_next & 1
        vw = VW2[p] if (phi_next >> 2) & 1 else V_W[p]
        out = []
        for tap in range(5):
            for h in range(2):
                r = WF(st, tap) + 2*h
                off = half*WUNIT + tap*4096 + h*512
                out.append((f"ds_read_b64_tr_b16 a[{r}:{r+1}], v{vw} offset:{off}", [('a', r), ('a', r+1)]))
        return out
    def xread(q, ks=0):
        r = XF(q)
        regs = [('a', r+i) for i in range(4)]
        if q < 8:
            return (f"ds_read_b128 a[{r}:{r+3}], v{V_X0} offset:{q*4096 + ks*512}", regs)
        return (f"ds_read_b128 a[{r}:{r+3}], v{V_X1[q-8]} offset:{ks*512}", regs)

    def mfma(a, wf, xf):
        ds.need([('a', wf+i) for i in range(4)] + [('a', xf+i) for i in range(4)])
        A(f"v_mfma_f32_16x16x32_bf16 v[{a}:{a+3}], {areg(wf)}, {areg(xf)}, v[{a}:{a+3}]")
        ds.now += 1

    def phase(phi, wnext=True, xreload=False, barrier=False, extra=None):
        nb = phi & 3; st = phi & 1
        A(f"; ---- phase {phi}")
        if barrier:
            if opt.kstamp:
                A("s_memtime s[60:61]")
            if opt.spin.startswith('pro1') and phi == 1:
                A("s_memrealtime s[72:73]")
            ds.drain()
            if opt.spin.startswith('pro1') and phi == 1:
                A(f"s_cmp_eq_u32 s{S_K}, 1")
                A("s_cselect_b32 s74, s72, s74")
            if opt.kstamp:
                A(f"s_lshl_b32 s62, s{S_K}, 2")
                A(f"s_add_u32 m0, s62, {(phi & 7) >> 1}")
                A("s_nop 0")
                A("v_writelane_b32 v9, s60, m0")
            if not opt.nobar: A("s_barrier")
            if opt.kstamp:
                A("s_memtime s[60:61]")
                A("s_waitcnt lgkmcnt(0)")
                A("s_add_u32 m0, m0, 32")
                A("s_nop 0")
                A("v_writelane_b32 v9, s60, m0")
        post = {n: [] for n in range(40)}
        order = []
        for j in range(8):
            taps = list(range(5))
            if opt.snake and j % 2 == 1: taps.reverse()
            for tap in taps: order.append((j, tap))
        if wnext:
            for i, rd in enumerate(wreads(phi+1)):
                post[(5*(i//2)+4) if opt.dsb else 2*i].append(rd)
        if xreload:
            for q in range(12):
                lastn = max(n for n, (j, tap) in enumerate(order) if j + tap == q)
                if opt.dsb: lastn = 5*(lastn//5) + 4
                post[lastn].append(xread(q, ((phi+1) >> 2) & 1))
        if opt.dsb and extra:
            ex2 = {}
            for n, v in extra.items(): ex2.setdefault(min(5*(n//5)+4, 39) if opt.dsb > 1 else n, []).extend(v)
            extra = ex2
        for n, (j, tap) in enumerate(order):
            mfma(acc(j, nb), WF(st, tap), XF(j+tap))
            for (t, regs) in post[n]:
                if opt.nods: continue
                ds.issue(t, regs)
            if extra and n in extra:
                for t in extra[n]: A(t)

    groups = [int(g) for g in opt.groups.split(',')] if opt.groups else None
    assert groups
    NIT = 7
    xupd = {3: [f"v_add_u32 v{V_X0}, s{S_XD}, v{V_X0}"],
            7: [f"v_add_u32 v{V_X1[0]}, s{S_XD}, v{V_X1[0]}"],
            23: [f"v_add_u32 v{V_X1[1]}, s{S_XD}, v{V_X1[1]}"],
            27: [f"v_add_u32 v{V_X1[2]}, s{S_XD}, v{V_X1[2]}"],
            31: [f"v_add_u32 v{V_X1[3]}, s{S_XD}, v{V_X1[3]}"],
            35: [f"s_sub_u32 s{S_XD}, 0, s{S_XD}"]}
    def body():
        phase(0)
        phase(1, barrier=True)
        phase(2)
        phase(3, barrier=True, xreload=True)
        phase(4)
        phase(5, barrier=True, extra=xupd)
        phase(6, extra={25: [f"s_add_u32 s{S_K}, s{S_K}, 1"]})
        phase(7, barrier=True, xreload=True, extra={33: [f"s_cmp_lt_u32 s{S_K}, {NIT}"]})
    saveL = list(A.L)
    ds.q = []; ds.t = []; body(); Q1, T1 = ds.getq()
    body(); Q2, T2 = ds.getq()
    assert Q1 == Q2 and T1 == T2, (Q1, Q2)
    A.L = saveL
    if opt.fstamp:
        A("s_memtime s[60:61]")
        A("s_waitcnt lgkmcnt(0)")
        A("v_writelane_b32 v9, s60, 60")
        A("v_writelane_b32 v9, s44, 61")
    if opt.xsplit: A("s_waitcnt vmcnt(0)")
    A("s_barrier")
    if opt.stamp:
        A("s_memtime s[50:51]")
        A("s_memrealtime s[48:49]")
        A("s_waitcnt lgkmcnt(0)")
    if opt.spin:
        A("s_memrealtime s[66:67]")
        A("s_waitcnt lgkmcnt(0)")
    wr = wreads(0)
    order = []
    for tap in range(5):
        order.append(xread(tap)); order += wr[2*tap:2*tap+2]
    for q in range(5, 12): order.append(xread(q))
    tail = [o for o in order if set(o[1]) in Q1]
    head = [o for o in order if set(o[1]) not in Q1]
    tail.sort(key=lambda o: Q1.index(set(o[1])))
    assert len(tail) == len(Q1)
    ds.q = []; ds.t = []
    for k, (t, regs) in enumerate(head + tail):
        if len(ds.q) >= 14: ds.wait_n(8)
        ds.issue(t, regs)
    ds.wait_n(len(Q1))
    ds.setq(Q1, T1)
    A(".p2align 6")
    A("L_cloop:")
    body()
    A("s_cbranch_scc1 L_cloop")
    A("; @@final")
    A("L_final:")
    assert ds.getq()[0] == Q1

    TB = 10
    def epi_ops(j, PB):
        outs = []
        for p in range(2):
            for i in range(4):
                outs.append((acc(j, p) + i, acc(j, 2+p) + i, TB + 4*p + i))
        ops = []
        for (f, g, t) in outs: ops.append((4, f"v_mul_f32 v{t}, s36, v{f}"))
        for (f, g, t) in outs: ops.append((4, f"v_mul_f32 v{g}, s38, v{g}"))
        for (f, g, t) in outs: ops.append((8, f"v_exp_f32 v{t}, -|v{t}|"))
        for (f, g, t) in outs: ops.append((8, f"v_exp_f32 v{g}, v{g}"))
        for (f, g, t) in outs: ops.append((4, f"v_bfi_b32 v{f}, s42, 1.0, v{f}"))
        for (f, g, t) in outs: ops.append((4, f"v_fmac_f32 v{f}, v{t}, v{f}"))
        for (f, g, t) in outs: ops.append((4, f"v_fmac_f32 v{f}, v{g}, v{f}"))
        for (f, g, t) in outs: ops.append((8, f"v_rcp_f32 v{f}, v{f}"))
        for (f, g, t) in outs: ops.append((4, f"v_fma_f32 v{t}, -v{t}, v{f}, v{f}"))
        for k in range(4): ops.append((4, f"v_cvt_pk_bf16_f32 v{PB+k}, v{TB+2*k}, v{TB+2*k+1}"))
        fin = [(4, f"v_permlane16_swap_b32 v{PB}, v{PB+2}"), (4, f"v_permlane16_swap_b32 v{PB+1}, v{PB+3}")]
        if j >= 2: fin.append((4, f"s_mov_b32 s43, {4096*(j//2)}"))
        so = "0" if j < 2 else "s43"
        fin.append((4, f"buffer_store_dwordx4 v[{PB}:{PB+3}], v{V_OUT}, s[20:23], {so} offen offset:{2048*(j&1)}{opt.spol}"))
        return ops, fin

    tail_js = list(range(8))
    if not groups:
        phase(60); phase(61, barrier=True); phase(62); phase(63, wnext=False)
    else:
        assert sum(groups) == 8
        subs = []
        j0 = 0
        for gi, gsz in enumerate(groups):
            js = list(range(j0, j0+gsz)); j0 += gsz
            for ks in range(2):
                for nb in range(4):
                    subs.append(dict(g=gi, js=js, ks=ks, nb=nb))
        mf = []
        for si, sb in enumerate(subs):
            sb['start'] = len(mf)
            for ji, j in enumerate(sb['js']):
                for tap in (range(4, -1, -1) if (opt.snake and ji % 2 == 1) else range(5)):
                    mf.append(dict(sub=si, acc=acc(j, sb['nb']), tap=tap, xkey=(sb['g'], sb['ks'], j+tap)))
            sb['end'] = len(mf)
        NM = len(mf)
        post = {n: [] for n in range(NM)}
        for si in range(len(subs)-1):
            nx = subs[si+1]
            p = nx['nb'] & 1; half = nx['nb'] >> 1; st = (si+1) & 1
            vw = V_W[p] if nx['ks'] == 0 else VW2[p]
            L = subs[si]['end'] - subs[si]['start']
            k = 0
            for tap in range(5):
                for h in range(2):
                    r = WF(st, tap) + 2*h
                    off = half*WUNIT + tap*4096 + h*512
                    pos = subs[si]['start'] + (k * max(L-4, 10)) // 10
                    pos = min(pos, subs[si]['end']-1)
                    post[pos].append((f"ds_read_b64_tr_b16 a[{r}:{r+1}], v{vw} offset:{off}", [('a', r), ('a', r+1)]))
                    k += 1
        first = {}; last = {}
        for n, m in enumerate(mf):
            first.setdefault(m['xkey'], n); last[m['xkey']] = n
        slot_of = {}; slot_free = [-1]*12
        init = [k for k in first if k[0] == 0 and k[1] == 0]
        for k in init:
            slot_of[k] = k[2]; slot_free[k[2]] = last[k]
        rest = sorted([k for k in first if k not in slot_of], key=lambda k: first[k])
        for k in rest:
            sl = min(range(12), key=lambda i: slot_free[i])
            pos = slot_free[sl]
            pos = max(pos, first[k]-60, 0)
            assert first[k] - pos >= 14, (k, first[k], pos)
            slot_of[k] = sl; slot_free[sl] = last[k]
            g, ks, q = k
            r = XF(sl); regs = [('a', r+i) for i in range(4)]
            if q < 8: t = f"ds_read_b128 a[{r}:{r+3}], v{V_X0} offset:{q*4096 + ks*512}"
            else: t = f"ds_read_b128 a[{r}:{r+3}], v{V_X1[q-8]} offset:{ks*512}"
            if opt.lsched:
                p2 = pos
                while post[p2] and first[k] - (p2+1) >= 14: p2 += 1
                if not post[p2]: pos = p2
            post[pos].append((t, regs))
        bar_at = {}
        for si, sb in enumerate(subs):
            if sb['g'] == 0 and (sb['ks'], sb['nb']) in [(0, 2), (1, 0), (1, 2)]:
                bar_at[subs[si-1]['start']] = True
        fill = {n: [] for n in range(NM)}
        j0 = 0
        for gi, gsz in enumerate(groups[:-1]):
            js = list(range(j0, j0+gsz)); j0 += gsz
            g0 = min(sb['start'] for sb in subs if sb['g'] == gi+1) + 2
            g1 = max(sb['end'] for sb in subs if sb['g'] == gi+1)
            if not opt.lsched:
                ops = []
                pendfin = []
                for idx, j in enumerate(js):
                    o, fin = epi_ops(j, 20 + 4*(j & 1))
                    ops += o[:2] + pendfin + o[2:]
                    pendfin = fin
                ops += [(4, "s_nop 1")] + pendfin
                total = sum(c for c, _ in ops)
                used = {n: 4*len(post[n]) + (8 if n in bar_at else 0) for n in range(g0, g1)}
                free = sum(max(0, 8-used[n]) for n in range(g0, g1))
                extra = max(0, total - free)
                i = 0; carry = 0.0
                for n in range(g0, g1):
                    budget = max(0, 8-used[n]) + extra/(g1-g0) + carry
                    while i < len(ops) and ops[i][0] <= budget + 1e-9:
                        fill[n].append(ops[i][1]); budget -= ops[i][0]; i += 1
                    carry = min(budget, 8)
                while i < len(ops):
                    fill[g1-1].append(ops[i][1]); i += 1
                if opt.verbose: sys.stderr.write(f"group {gi}: valu {total} free {free} extra {extra}\n")
            else:
                ops = []
                def add(text, cost, deps, prio):
                    ops.append(dict(text=text, cost=cost, deps=deps, prio=prio, gap=None)); return len(ops)-1
                last_cvt = {}; last_store = {}
                for idx, j in enumerate(js):
                    TBj = 10 if idx % 2 == 0 else 32
                    PB = 20 + 4*(j & 1)
                    outs = []
                    for p in range(2):
                        for i in range(4): outs.append((acc(j, p) + i, acc(j, 2+p) + i, TBj + 4*p + i))
                    fin_t = []
                    for oi, (f, g, t) in enumerate(outs):
                        war = [(last_cvt[(idx % 2, oi//2)], 1)] if (idx % 2, oi//2) in last_cvt else []
                        pr = lambda st: (idx, st, oi)
                        m1 = add(f"v_mul_f32 v{t}, s36, v{f}", 4, war, pr(0))
                        m2 = add(f"v_mul_f32 v{g}, s38, v{g}", 4, [], pr(0))
                        e1 = add(f"v_exp_f32 v{t}, -|v{t}|", 8, [(m1, 1)], pr(1))
                        e2 = add(f"v_exp_f32 v{g}, v{g}", 8, [(m2, 1)], pr(1))
                        b1 = add(f"v_bfi_b32 v{f}, s42, 1.0, v{f}", 4, [(m1, 1)], pr(1))
                        f1 = add(f"v_fmac_f32 v{f}, v{t}, v{f}", 4, [(e1, 1), (b1, 1)], pr(2))
                        f2 = add(f"v_fmac_f32 v{f}, v{g}, v{f}", 4, [(e2, 1), (f1, 1)], pr(3))
                        r1 = add(f"v_rcp_f32 v{f}, v{f}", 8, [(f2, 1)], pr(4))
                        f3 = add(f"v_fma_f32 v{t}, -v{t}, v{f}, v{f}", 4, [(r1, 1)], pr(5))
                        fin_t.append(f3)
                    cv = []
                    for k in range(4):
                        dep = [(fin_t[2*k], 1), (fin_t[2*k+1], 1)]
                        if idx % 2 in last_store: dep.append((last_store[idx % 2], 2))
                        c = add(f"v_cvt_pk_bf16_f32 v{PB+k}, v{TBj+2*k}, v{TBj+2*k+1}", 4, dep, (idx, 6, k))
                        last_cvt[(idx % 2, k)] = c; cv.append(c)
                    s1 = add(f"v_permlane16_swap_b32 v{PB}, v{PB+2}", 4, [(cv[0], 2), (cv[2], 2)], (idx, 7, 0))
                    s2 = add(f"v_permlane16_swap_b32 v{PB+1}, v{PB+3}", 4, [(cv[1], 2), (cv[3], 2)], (idx, 7, 1))
                    so = "0" if j < 2 else "s43"
                    txt = f"buffer_store_dwordx4 v[{PB}:{PB+3}], v{V_OUT}, s[20:23], {so} offen offset:{2048*(j&1)}{opt.spol}"
                    if j >= 2: txt = f"s_mov_b32 s43, {4096*(j//2)}\n" + txt
                    st = add(txt, 4 if j < 2 else 8, [(s1, 1), (s2, 1)], (idx, 8, 0))
                    last_store[idx % 2] = st
                ends = {sb['end']-1 for sb in subs}
                cap = {n: 8 - 4*len(post[n]) - (4 if n in ends else 0) for n in range(g0, g1)}
                slack = opt.lsched - 1
                for n in range(g0, g1):
                    c = cap[n] + slack
                    while True:
                        ready = [o for o in ops if o['gap'] is None and o['cost'] <= c and
                                 all(ops[d]['gap'] is not None and ops[d]['gap'] + mg <= n for d, mg in o['deps'])]
                        if not ready: break
                        tr = [o for o in ready if o['cost'] == 8]
                        pick = min(tr or ready, key=lambda o: o['prio'])
                        pick['gap'] = n; fill[n].append(pick['text']); c -= pick['cost']
                left = [o for o in ops if o['gap'] is None]
                if opt.verbose: sys.stderr.write(f"group {gi}: {len(ops)} ops, {len(left)} left over\n")
                if left:
                    order_ = sorted(left, key=lambda o: o['prio'])
                    tailfill = []
                    for o in order_:
                        if o['text'].startswith('v_permlane'): tailfill.append("s_nop 1")
                        tailfill.append(o['text'])
                        if o['text'].startswith(('v_exp', 'v_rcp')): tailfill.append("s_nop 0")
                    fill[g1-1] += tailfill
            for j in js: tail_js.remove(j)
        A("; ---- final chunk")
        def fstamp(idx):
            if opt.fstamp:
                A("s_memtime s[60:61]")
                ds.drain()
                A(f"v_writelane_b32 v9, s60, {idx}")
        fstamp(0)
        fi = 1
        for n, m in enumerate(mf):
            if opt.fstamp and n > 0 and n == subs[m['sub']]['start']:
                fstamp(fi); fi += 1
            if n in bar_at:
                ds.drain()
                if not opt.nobar: A("s_barrier")
            st = m['sub'] & 1
            mfma(m['acc'], WF(st, m['tap']), XF(slot_of[m['xkey']]))
            for (t, regs) in post[n]: ds.issue(t, regs)
            for t in fill[n]:
                for tt in t.split("\n"): A(tt)
            if opt.tailshift and 100 <= n < 100 + opt.tailshift: A("s_nop 0")
    if opt.stamp:
        ds.drain()
        A("s_memtime s[52:53]")
        A("s_memrealtime s[54:55]")
        A("s_waitcnt lgkmcnt(0)")
    if opt.spin:
        ds.drain()
        A("s_memrealtime s[68:69]")
        A("s_waitcnt lgkmcnt(0)")
    A("; ---- epilogue")
    A("s_nop 7")
    def epi_math(j, PB):
        pairs = []
        for p in range(2):
            for h in range(2):
                f = acc(j, p) + 2*h; g = acc(j, 2+p) + 2*h
                pairs.append((f, g, TB + 2*(2*p+h), PB + 2*p + h))
        for (f, g, t, o) in pairs: A(f"v_pk_mul_f32 v[{t}:{t+1}], v[{f}:{f+1}], s[36:37]")
        for (f, g, t, o) in pairs: A(f"v_pk_mul_f32 v[{g}:{g+1}], v[{g}:{g+1}], s[38:39]")
        for (f, g, t, o) in pairs:
            A(f"v_exp_f32 v{t}, -|v{t}|"); A(f"v_exp_f32 v{t+1}, -|v{t+1}|")
        for (f, g, t, o) in pairs:
            A(f"v_exp_f32 v{g}, v{g}"); A(f"v_exp_f32 v{g+1}, v{g+1}")
        for (f, g, t, o) in pairs:
            A(f"v_bfi_b32 v{f}, s42, 1.0, v{f}"); A(f"v_bfi_b32 v{f+1}, s42, 1.0, v{f+1}")
        for (f, g, t, o) in pairs: A(f"v_pk_fma_f32 v[{f}:{f+1}], v[{t}:{t+1}], v[{f}:{f+1}], v[{f}:{f+1}]")
        for (f, g, t, o) in pairs: A(f"v_pk_fma_f32 v[{f}:{f+1}], v[{g}:{g+1}], v[{f}:{f+1}], v[{f}:{f+1}]")
        for (f, g, t, o) in pairs:
            A(f"v_rcp_f32 v{f}, v{f}"); A(f"v_rcp_f32 v{f+1}, v{f+1}")
        for (f, g, t, o) in pairs: A(f"v_pk_fma_f32 v[{t}:{t+1}], v[{t}:{t+1}], v[{f}:{f+1}], v[{f}:{f+1}] neg_lo:[1,0,0] neg_hi:[1,0,0]")
        for (f, g, t, o) in pairs: A(f"v_cvt_pk_bf16_f32 v{o}, v{t}, v{t+1}")
        A("s_nop 1")
        A(f"v_permlane16_swap_b32 v{PB}, v{PB+2}")
        A(f"v_permlane16_swap_b32 v{PB+1}, v{PB+3}")
    def gstore(j, PB):
        if j >= 2: A(f"s_mov_b32 s43, {4096*(j//2)}")
        so = "0" if j < 2 else "s43"
        A(f"buffer_store_dwordx4 v[{PB}:{PB+3}], v{V_OUT}, s[20:23], {so} offen offset:{2048*(j&1)}{opt.spol}")
    if not opt.full:
        for j in tail_js:
            PB = 20 + 4*(j & 1)
            epi_math(j, PB)
            gstore(j, PB)
    else:
        gs = opt.full
        pend = []
        for j0 in range(0, 8, gs):
            for j in range(j0, j0+gs):
                PB = 20 + 4*(j & 1)
                epi_math(j, PB)
                A(f"ds_write_b128 v28, v[{PB}:{PB+3}] offset:{j*2048}")
                if pend:
                    jj = pend.pop(0)
                    A("s_waitcnt lgkmcnt(1)")
                    gstore(jj, 32 + 4*(jj & 1))
                    if pend: A(f"ds_read_b128 v[{32+4*(pend[0]&1)}:{35+4*(pend[0]&1)}], v29 offset:{pend[0]*2048}")
            while pend:
                jj = pend.pop(0)
                A("s_waitcnt lgkmcnt(0)")
                gstore(jj, 32 + 4*(jj & 1))
                if pend: A(f"ds_read_b128 v[{32+4*(pend[0]&1)}:{35+4*(pend[0]&1)}], v29 offset:{pend[0]*2048}")
            A("s_waitcnt lgkmcnt(0)")
            A("s_barrier")
            pend = list(range(j0, j0+gs))
            A(f"ds_read_b128 v[{32+4*(pend[0]&1)}:{35+4*(pend[0]&1)}], v29 offset:{pend[0]*2048}")
        while pend:
            jj = pend.pop(0)
            if pend: A(f"ds_read_b128 v[{32+4*(pend[0]&1)}:{35+4*(pend[0]&1)}], v29 offset:{pend[0]*2048}")
            A("s_waitcnt lgkmcnt(%d)" % (1 if pend else 0))
            gstore(jj, 32 + 4*(jj & 1))
            A("s_nop 0")
    if opt.spin:
        A("s_memrealtime s[64:65]")
        A("s_waitcnt lgkmcnt(0)")
        A("s_waitcnt vmcnt(0)")
        A("s_memrealtime s[70:71]")
        A("s_waitcnt lgkmcnt(0)")
        which, mult = opt.spin.split(',')
        a, b = {'pro': (62, 66), 'main': (66, 68), 'epi': (68, 70), 'epiv': (68, 64), 'drain': (64, 70), 'none': (70, 70), 'pro1': (62, 74)}[which]
        A(f"s_sub_u32 s43, s{b}, s{a}")
        A(f"s_mul_i32 s43, s43, {mult}")
        A("s_add_u32 s43, s43, s70")
        A("L_spin:")
        A("s_memrealtime s[60:61]")
        A("s_waitcnt lgkmcnt(0)")
        A("s_sub_u32 s42, s60, s43")
        A("s_cmp_lt_i32 s42, 0")
        A("s_cbranch_scc1 L_spin")
    if opt.stamp:
        A("s_waitcnt vmcnt(0)")
        A("s_memtime s[56:57]")
        A("s_memrealtime s[58:59]")
        A("s_waitcnt lgkmcnt(0)")
        if opt.dbgstamp:
            A("s_sub_u32 s60, s50, s44")
            A("s_sub_u32 s61, s48, s46")
            A("s_sub_u32 s62, s52, s50")
            A("s_sub_u32 s63, s54, s48")
            A("s_sub_u32 s64, s56, s52")
            A("s_sub_u32 s65, s56, s44")
            A("s_sub_u32 s66, s58, s46")
            A("s_mov_b32 s67, s46")
            A("s_cmp_lg_u32 s24, 0")
            A("s_cbranch_scc1 L_nostamp")
            A("s_mov_b32 s43, 0")
            A("s_cmp_eq_u32 s2, 0")
            A("s_cbranch_scc1 L_dostamp")
            A("s_mov_b32 s43, 32")
            A("s_cmp_eq_u32 s2, 133")
            A("s_cbranch_scc0 L_nostamp")
            A("L_dostamp:")
            A("s_mov_b32 s68, s40"); A("s_mov_b32 s69, s41"); A("s_mov_b32 s70, 256"); A("s_mov_b32 s71, 0x20000")
            A("v_mov_b32 v9, s43")
            A("s_mov_b64 exec, 1")
            for i in range(2):
                for k in range(4): A(f"v_mov_b32 v{12+k}, s{60+4*i+k}")
                A(f"buffer_store_dwordx4 v[12:15], v9, s[68:71], 0 offen offset:{16*i}")
                A("s_nop 1")
            A("L_nostamp:")
        else:
            A("s_mov_b32 s60, s40"); A("s_mov_b32 s61, s41"); A("s_mov_b32 s62, 0x10000000"); A("s_mov_b32 s63, 0x20000")
            if opt.kstamp or opt.fstamp:
                A("s_lshl_b32 s43, s2, 2"); A("s_add_u32 s43, s43, s24"); A("s_lshl_b32 s43, s43, 8")
                A("s_add_u32 s43, s43, 0x20000")
                A("v_lshlrev_b32 v12, 2, v0")
                A("v_add_u32 v12, s43, v12")
                A("buffer_store_dword v9, v12, s[60:63], 0 offen")
                A("s_nop 1")
            A("s_lshl_b32 s43, s2, 2"); A("s_add_u32 s43, s43, s24"); A("s_lshl_b32 s43, s43, 6")
            A("v_mov_b32 v9, s43")
            A("s_mov_b64 exec, 1")
            for i in range(4):
                for k in range(4): A(f"v_mov_b32 v{12+k}, s{44+4*i+k}")
                A(f"buffer_store_dwordx4 v[12:15], v9, s[60:63], 0 offen offset:{16*i}")
                A("s_nop 1")
    A("s_endpgm")
    A("L_codeend:")

    A('.section .rodata,"a"')
    A(".p2align 6")
    A(f".amdhsa_kernel {NAME}")
    A("  .amdhsa_next_free_vgpr 256")
    A("  .amdhsa_next_free_sgpr 96")
    A("  .amdhsa_accum_offset 168")
    A("  .amdhsa_group_segment_fixed_size 0")
    A("  .amdhsa_kernarg_size 40")
    A("  .amdhsa_user_sgpr_count 2")
    A("  .amdhsa_user_sgpr_kernarg_segment_ptr 1")
    A("  .amdhsa_system_sgpr_workgroup_id_x 1")
    A("  .amdhsa_float_denorm_mode_32 3")
    A(".end_amdhsa_kernel")
    if opt.meta:
        A(f""".amdgpu_metadata
---
amdhsa.version: [1, 2]
amdhsa.kernels:
  - .name: {NAME}
    .symbol: {NAME}.kd
    .kernarg_segment_size: 40
    .kernarg_segment_align: 8
    .group_segment_fixed_size: 0
    .private_segment_fixed_size: 0
    .wavefront_size: 64
    .sgpr_count: 96
    .vgpr_count: 256
    .max_flat_workgroup_size: 512
    .args:
      - {{.name: kernargs, .size: 40, .offset: 0, .value_kind: by_value}}
...
.end_amdgpu_metadata""")
    if opt.verbose: sys.stderr.write(f"loader waits: {Ns}\nloop: {Nl}\n")
    return A.text()

def parse(argv=None):
    ap = argparse.ArgumentParser()
    ap.add_argument("-o", default="/dev/stdout")
    for o in ["meta", "stamp", "dbgstamp", "nods", "nodma", "nodmaw", "nodmax", "nobar", "verbose", "lstamp", "touch", "cpf", "kstamp", "mzero", "snake", "fstamp", "pads", "pad8", "xsplit"]:
        ap.add_argument("--"+o, action="store_true")
    ap.add_argument("--spin", default="")
    ap.add_argument("--sched", default="")
    ap.add_argument("--lsched", type=int, default=0)
    ap.add_argument("--otouch", type=int, default=0)
    ap.add_argument("--otpol", default="nt")
    ap.add_argument("--tailshift", type=int, default=0)
    ap.add_argument("--skip", type=int, default=0)
    ap.add_argument("--wmerge", type=int, default=0)
    ap.add_argument("--align", default="")
    ap.add_argument("--dsb", type=int, default=0)
    ap.add_argument("--groups", default="")
    ap.add_argument("--full", type=int, default=0)
    ap.add_argument("--rot", default="")
    ap.add_argument("--order", default="xwx")
    ap.add_argument("--cprio", type=int, default=0)
    ap.add_argument("--lprio", type=int, default=0)
    ap.add_argument("--npre", type=int, default=3)
    ap.add_argument("--wpol", default="")
    ap.add_argument("--xpol", default="")
    ap.add_argument("--spol", default="nt")
    opt = ap.parse_args(argv)
    for k in ["wpol", "xpol", "spol", "otpol"]:
        v = getattr(opt, k)
        if v: setattr(opt, k, " " + v)
    return opt

def offsets(text):
    import subprocess, tempfile, os, re
    L = text.split("\n")
    start = L.index("L_compute:")
    out = []
    for i, l in enumerate(L):
        if i > start and l and not l.startswith(('.', ';')) and not l.endswith(':') and i < L.index('L_codeend:'):
            out.append(f"LL_{i}:")
        out.append(l)
    d = tempfile.mkdtemp()
    open(d+"/a.s", "w").write("\n".join(out))
    subprocess.check_call(["clang", "-x", "assembler", "-target", "amdgcn-amd-amdhsa", "-mcpu=gfx950", "-c", d+"/a.s", "-o", d+"/a.o"])
    sym = subprocess.check_output(["llvm-readelf", "-s", "--wide", d+"/a.o"]).decode()
    addr = {}
    for line in sym.splitlines():
        p = line.split()
        if len(p) == 8 and p[0].endswith(':'):
            try: addr[p[7]] = int(p[1], 16)
            except ValueError: pass
    base = addr["L_page0"]
    return {int(k[3:]): v - base for k, v in addr.items() if k.startswith("LL_")}, addr

E64_OK = ("v_mul_f32", "v_add_f32", "v_fmac_f32", "v_exp_f32", "v_rcp_f32", "v_add_u32", "v_mov_b32")
def align8(text, first_label, last_marker=None):
    L = text.split("\n")
    tmp = list(L)
    missing = [f"L_pad{m}:" for m in range(NPADS) if f"L_pad{m}:" not in L and any(f"L_pad{m}" in x for x in L)]
    ci = tmp.index("L_codeend:")
    off, addr = offsets("\n".join(tmp[:ci+1] + missing + tmp[ci+1:]))
    idx = sorted(off)
    size = {}
    for a, b in zip(idx, idx[1:]): size[a] = off[b] - off[a]
    size[idx[-1]] = 4
    start = L.index(first_label + ":")
    stop = L.index(last_marker) if last_marker else ci
    par = None
    ins = {}
    cand = None
    nw = nn = 0
    for i in idx:
        if i < start or i >= stop: continue
        if par is None: par = off[i] % 8
        sz = size[i]
        op = L[i].split()[0]
        if sz == 8:
            if par == 4:
                if cand is not None:
                    o = L[cand].split()[0]
                    L[cand] = L[cand].replace(o, o + "_e64", 1); nw += 1
                else:
                    ins[i] = True; nn += 1
                par = 0
            cand = None
        else:
            par ^= 4
            if op in E64_OK and "|" not in L[i] and "0x" not in L[i]:
                cand = i
            if par == 0: cand = None if op not in E64_OK else cand
    for i in sorted(ins, reverse=True): L.insert(i, "s_nop 0")
    sys.stderr.write(f"align8: widened {nw}, nops {nn}\n")
    return "\n".join(L)

def add_pads(text):
    npad = 0
    for bound in range(4096, 8*4096, 4096):
        L = text.split("\n")
        tmp = list(L)
        missing = [f"L_pad{m}:" for m in range(NPADS) if f"L_pad{m}:" not in L]
        ci = tmp.index("L_codeend:")
        off, addr = offsets("\n".join(tmp[:ci+1] + missing + tmp[ci+1:]))
        cand = sorted(i for i, o in off.items() if o >= bound)
        if not cand: break
        i = cand[0]
        if i < L.index("L_cloop:"): continue
        assert i > L.index("; @@final") or ALLOW_LOOP_PAD, "page boundary inside the main loop"
        L[i:i] = [f"L_pad{npad}:", "s_cbranch_vccnz L_back", "s_nop 0"]
        npad += 1
        text = "\n".join(L)
    L = text.split("\n")
    for k in range(npad, NPADS):
        i = L.index(f"s_cbranch_scc1 L_pad{k}")
        del L[i-1:i+1]
    sys.stderr.write(f"pads: {npad}\n")
    return "\n".join(L)

ALLOW_LOOP_PAD = False
if __name__ == "__main__":
    opt = parse()
    t = gen(opt)
    if opt.align == 'all': t = align8(t, "L_cloop")
    if opt.align == 'final': t = align8(t, "L_final")
    if opt.align == 'loop': t = align8(t, "L_cloop", "; @@final")
    if opt.pads: t = add_pads(t)
    open(opt.o, "w").write(t)
```

```python
import sys, argparse

NAME = "standalone__autoregressive_conv_wavernn__speech_kernel"
XBATCH = 4096000
WBYTES = 5242880
WUNIT = 20480
XBASE = 4 * WUNIT
XBUF = 33792
LDS_BYTES = XBASE + 2 * XBUF

class Asm:
    def __init__(self):
        self.L = []
    def __call__(self, s):
        self.L.append(s)
    def text(self):
        return "\n".join(self.L) + "\n"

class DS:
    def __init__(self, A, T=0):
        self.A = A
        self.q = []
        self.t = []
        self.now = 0
        self.T = T
    def issue(self, text, regs):
        if self.T == 0 and len(self.q) >= 14:
            self.wait_n(10)
        self.A(text)
        self.q.append(set(regs)); self.t.append(self.now)
    def wait_n(self, n):
        n = min(n, 15)
        if len(self.q) > n:
            self.A(f"s_waitcnt lgkmcnt({n})")
            self.q = self.q[len(self.q)-n:] if n > 0 else []
            self.t = self.t[len(self.t)-n:] if n > 0 else []
    def need(self, regs):
        regs = set(regs)
        last = -1
        for i, s in enumerate(self.q):
            if s & regs:
                last = i
        if last >= 0:
            if self.T:
                while last + 1 < len(self.q) and self.t[last+1] <= self.now - self.T: last += 1
            self.wait_n(len(self.q) - 1 - last)
    def drain(self):
        self.A("s_waitcnt lgkmcnt(0)")
        self.q = []; self.t = []
    def setq(self, q, t):
        self.q = [set(x) for x in q]; self.t = [self.now + x for x in t]
    def getq(self):
        return [set(x) for x in self.q], [x - self.now for x in self.t]

ACC0 = 40
def acc(j, nb): return ACC0 + (j*4 + nb)*4
def areg(n): return f"a[{n}:{n+3}]"
def XF(q): return 4*q
def WF(st, tap): return 48 + st*20 + tap*4
V_W = [1, 2]
V_X0 = 3
V_X1 = [4, 5, 6, 7]
V_OUT = 8
S_K = 30; S_WD = 31; S_XD = 32; S_T = 33

NPADS = 3
def gen(opt):
    A = Asm()
    A("; Kernarg layout for this problem (40 bytes, ptrs only, base s[0:1]):")
    A(";   offset   0: d_in[0] x  shape=(2, 4000, 512) dtype=bfloat16")
    A(";   offset   8: d_in[1] w  shape=(5, 512, 1024) dtype=bfloat16")
    A(";   offset  16: d_out     shape=(2, 4000, 512) dtype=bfloat16")
    A("; waves 0-3 MFMA consumers, waves 4-7 LDS-DMA loaders.")
    A(f"; @launch grid=(256,1,1) block=(512,1,1) lds={LDS_BYTES}")
    A('.amdgcn_target "amdgcn-amd-amdhsa--gfx950"')
    A(".text")
    A(f".globl {NAME}")
    A(".p2align 8")
    A(f".type {NAME},@function")
    A(f"{NAME}:")
    A("s_cmp_ge_u32 s2, 256")
    A("s_cbranch_scc1 L_end")
    A("s_load_dwordx4 s[4:7], s[0:1], 0")
    A("s_load_dwordx2 s[8:9], s[0:1], 16")
    if opt.stamp:
        A("s_load_dwordx2 s[40:41], s[0:1], %d" % (24 if opt.dbgstamp else 32))
        A("s_memtime s[44:45]")
        A("s_memrealtime s[46:47]")
    if opt.spin:
        A("s_memrealtime s[62:63]")
    A("v_lshrrev_b32 v1, 6, v0")
    A("v_and_b32 v0, 63, v0")
    A("s_and_b32 s28, s2, 7")
    A("v_readfirstlane_b32 s24, v1")
    A("s_lshr_b32 s29, s2, 3")
    A("s_lshr_b32 s30, s28, 1")
    A("s_lshl_b32 s30, s30, 3")
    A("s_lshr_b32 s31, s29, 2")
    A("s_add_u32 s30, s30, s31")
    A("s_and_b32 s31, s28, 1")
    A("s_lshl_b32 s31, s31, 2")
    A("s_and_b32 s29, s29, 3")
    A("s_add_u32 s31, s31, s29")
    A("s_lshr_b32 s27, s30, 4")
    A("s_and_b32 s25, s30, 15")
    A("s_lshl_b32 s25, s25, 8")
    A("s_lshl_b32 s26, s31, 6")
    A(f"s_mul_i32 s28, s27, {XBATCH}")
    def emit_xoff():
        A("v_lshrrev_b32 v10, 5, v0")
        A("v_bfe_u32 v11, v0, 2, 3")
        A("v_and_b32 v12, 3, v0")
        A("v_lshrrev_b32 v13, 2, v11")
        A("v_lshlrev_b32 v13, 1, v13")
        A("v_xor_b32 v13, v13, v12")
        A("v_lshlrev_b32 v14, 6, v10")
        A("v_lshl_add_u32 v15, v13, 4, v14")
        A("v_lshl_add_u32 v16, v12, 4, v14")
        A("v_and_b32 v13, 1, v11")
        A("v_lshrrev_b32 v17, 1, v11")
        A("v_lshl_add_u32 v13, v17, 4, v13")
        A("s_lshl_b32 s35, s34, 6")
        A("s_add_u32 s35, s35, s25")
        A("s_sub_u32 s35, s35, 8")
        A("v_add_u32 v13, s35, v13")
        A("v_lshlrev_b32 v17, 10, v13")
        A("v_add_u32 v17, v17, v15")
        A("v_add_u32 v3, 0x2000, v17")
        A("v_bfrev_b32 v18, 1")
        A("v_cmp_gt_i32 vcc, 0, v13")
        A("s_add_u32 s35, s25, 248")
        A("v_add_u32 v11, s35, v11")
        A("v_cndmask_b32 v2, v17, v18, vcc")
        A("v_lshlrev_b32 v11, 10, v11")
        A("v_add_u32 v4, v11, v16")
        A("s_lshl_b32 s35, s34, 4")
        A("s_mov_b64 s[36:37], 0xffff")
        A("s_lshl_b64 s[36:37], s[36:37], s35")
        A(f"s_mov_b32 s14, {XBATCH}")
        A("s_mov_b32 s15, 0x20000")
    def emit_woff():
        A("v_lshrrev_b32 v10, 3, v0")
        A("v_and_b32 v11, 7, v0")
        A("v_lshrrev_b32 v12, 1, v11")
        A("v_bfe_u32 v13, v10, 1, 1")
        A("s_and_b32 s35, s34, 1")
        A("s_lshl_b32 s35, s35, 1")
        A("v_or_b32 v13, s35, v13")
        A("v_xor_b32 v12, v12, v13")
        A("v_lshlrev_b32 v12, 5, v12")
        A("v_and_b32 v11, 1, v11")
        A("v_lshl_add_u32 v12, v11, 4, v12")
        A("s_lshl_b32 s35, s34, 3")
        A("v_add_u32 v10, s35, v10")
        A("v_lshl_add_u32 v12, v10, 11, v12")
        A("s_lshl_b32 s35, s26, 1")
        A("v_add_u32 v1, s35, v12")
        A(f"s_mov_b32 s18, {WBYTES}")
        A("s_mov_b32 s19, 0x20000")
    def emit_xstate(first_chunk):
        A(f"s_mov_b32 s66, {128*first_chunk}")
        A(f"s_add_u32 s67, s38, {XBASE + XBUF*(first_chunk & 1)}")
        A(f"s_add_u32 s69, s38, {XBASE + XBUF*((first_chunk & 1) ^ 1)}")
        A("s_xor_b32 s69, s69, s67")
    vq = []
    xq = []
    def x_issue(c, part, half=None, q_=None):
        q_ = vq if q_ is None else q_
        if opt.nodmax and c > 1: return
        qs = range(0, 4) if part == 0 else range(4, 8)
        tag = ('XH', c) if half == 'hi' else ('X', c)
        if half == 'lo': A("s_mov_b32 exec_hi, 0")
        if half == 'hi': A("s_mov_b32 exec_lo, 0")
        for q in qs:
            A(f"s_add_u32 m0, s67, {q*4096}")
            if q < 4:
                A(f"s_add_u32 s68, s66, {2*q*1024}")
                A(f"buffer_load_dwordx4 v2, s[12:15], s68 offen{opt.xpol} lds")
            else:
                A(f"s_add_u32 s68, s66, {(2*q-8)*1024}")
                A(f"buffer_load_dwordx4 v3, s[12:15], s68 offen{opt.xpol} lds")
            q_.append(tag)
        if half: A("s_mov_b64 exec, -1")
        if part == 1 and half != 'hi':
            A(f"s_sub_u32 m0, s67, s38")
            A(f"s_add_u32 m0, m0, 32768")
            A("s_mov_b64 exec, s[36:37]")
            A(f"buffer_load_dwordx4 v4, s[12:15], s66 offen{opt.xpol} lds")
            A("s_mov_b64 exec, -1")
            q_.append(tag)
        if part == 1 and half != 'lo':
            A("s_add_u32 s66, s66, 128")
            A("s_xor_b32 s67, s67, s69")
    A("s_and_b32 s34, s24, 3")
    A("s_lshl_b32 s38, s34, 10")
    if opt.xsplit:
        A("s_cmp_ge_u32 s24, 4")
        A("s_cbranch_scc1 L_loader")
        if opt.lprio: A(f"s_setprio {opt.lprio}")
        emit_xoff()
        emit_xstate(0)
        A("s_waitcnt lgkmcnt(0)")
        A("s_add_u32 s12, s4, s28")
        A("s_addc_u32 s13, s5, 0")
        x_issue(0, 0, q_=xq); x_issue(0, 1, q_=xq)
        if opt.lprio: A("s_setprio 0")
        A("s_branch L_compute")
        A("L_loader:")
        if opt.lprio: A(f"s_setprio {opt.lprio}")
        emit_woff()
        A("s_mov_b32 s64, 0")
        A("s_mov_b32 s65, s38")
        A("s_waitcnt lgkmcnt(0)")
        A("s_mov_b32 s16, s6")
        A("s_mov_b32 s17, s7")
    else:
        A("s_cmp_lt_u32 s24, 4")
        A("s_cbranch_scc1 L_compute")
        if opt.lprio: A(f"s_setprio {opt.lprio}")
        emit_xoff()
        emit_woff()
        A("s_mov_b32 s64, 0")
        A("s_mov_b32 s65, s38")
        emit_xstate(0)
        A("s_waitcnt lgkmcnt(0)")
        A("s_add_u32 s12, s4, s28")
        A("s_addc_u32 s13, s5, 0")
        A("s_mov_b32 s16, s6")
        A("s_mov_b32 s17, s7")

    def w_issue(u):
        if opt.nodmaw and u > 3: return
        for tap in range(5):
            if tap == 0:
                A("s_mov_b32 m0, s65")
                A("s_mov_b32 s68, s64")
            else:
                A("s_add_u32 m0, m0, 4096")
                A("s_add_u32 s68, s68, 0x100000")
            A(f"buffer_load_dwordx4 v1, s[16:19], s68 offen{opt.wpol} lds")
            vq.append(('W', u))
        if u & 1:
            A(f"s_add_u32 s64, s64, {65536-1024}")
            if opt.rot: A("s_and_b32 s64, s64, 0xfffff")
        else: A("s_add_u32 s64, s64, 1024")
        if (u & 3) == 3: A(f"s_sub_u32 s65, s65, {3*WUNIT}")
        else: A(f"s_add_u32 s65, s65, {WUNIT}")
    def need_n(u):
        need = [('W', u)]
        if u % 4 == 0: need.append(('X', u//4))
        if u == 2: need.append(('XH', 0))
        last = -1
        for i, t in enumerate(vq):
            if t in need: last = i
        return len(vq) - 1 - last if last >= 0 else None
    def wait_for(u, n=None):
        nn = need_n(u)
        if n is None: n = nn
        assert nn is None or n <= nn
        if n is not None and n <= len(vq):
            A(f"s_waitcnt vmcnt({n})")
            del vq[:len(vq)-n]
    sched = {}
    if opt.sched:
        for part in opt.sched.split(';'):
            k, v = part.split(':')
            sched[k] = v.split(',') if v else []
    U0 = 3 if not opt.sched else max(int(k) for k in sched if k != 'pre') + 1
    while U0 % 4 != 3: U0 += 1
    def do_item(it):
        if it[0] == 'w': w_issue(int(it[1:]))
        elif it == 'xl': x_issue(0, 0, 'lo'); x_issue(0, 1, 'lo')
        elif it == 'xla': x_issue(0, 0, 'lo')
        elif it == 'xlb': x_issue(0, 1, 'lo')
        elif it == 'xh': x_issue(0, 0, 'hi'); x_issue(0, 1, 'hi')
        elif it[0] == 'x': x_issue(int(it[1]), 0 if it[2] == 'a' else 1)
    def issues(u):
        if str(u) in sched: return sched[str(u)]
        r = []
        if u + 3 <= 31 and u + 3 >= opt.npre: r.append(f'w{u+3}')
        if u == 1: r.append('x1a')
        elif u == 2: r.append('x1b')
        elif u % 4 == 3 and u//4 + 2 <= 7: r.append(f'x{u//4+2}a')
        elif u % 4 == 0 and u >= 4 and u//4 + 1 <= 7: r.append(f'x{u//4+1}b')
        return r
    def interval(u, nfix=None):
        wait_for(u, nfix)
        if not (opt.nobar and u > 0): A("s_barrier")
        if opt.nodma: return
        for it in issues(u): do_item(it)
    def lst(i):
        if opt.lstamp: A(f"s_memtime s[{72+2*i}:{73+2*i}]")
    lst(0)
    if opt.xsplit:
        pre = sched.get('pre', [f'w{u}' for u in range(0, opt.npre)])
    else:
        pre = sched.get('pre', ['x0a', 'w0', 'x0b'] + [f'w{u}' for u in range(1, opt.npre)])
    for ii, it in enumerate(pre):
        do_item(it)
        if ii < 3: lst(1+ii)
    if opt.xsplit:
        emit_xoff()
        emit_xstate(1)
        A("s_add_u32 s12, s4, s28")
        A("s_addc_u32 s13, s5, 0")
    lst(4)
    if opt.lstamp:
        sv = list(vq)
        wait_for(0)
        lst(5)
        A("s_waitcnt lgkmcnt(0)")
        A("s_mov_b32 s84, s40"); A("s_mov_b32 s85, s41"); A("s_mov_b32 s86, 0x10000000"); A("s_mov_b32 s87, 0x20000")
        A("s_lshl_b32 s43, s2, 2"); A("s_add_u32 s43, s43, s34"); A("s_lshl_b32 s43, s43, 6")
        A("s_add_u32 s43, s43, 0x10000")
        A("v_mov_b32 v9, s43")
        A("s_mov_b64 exec, 1")
        regs = [44,45,46,47,72,73,74,75,76,77,78,79,80,81,82,83]
        for i in range(4):
            for k in range(4): A(f"v_mov_b32 v{20+k}, s{regs[4*i+k]}")
            A(f"buffer_store_dwordx4 v[20:23], v9, s[84:87], 0 offen offset:{16*i}")
            A("s_nop 1")
        A("s_mov_b64 exec, -1")
        A("s_waitcnt vmcnt(0)")
        vq[:] = sv
    saveL = list(A.L); savevq = list(vq)
    Ns = {}
    for u in range(32):
        Ns[u] = need_n(u)
        interval(u)
    A.L = saveL; vq[:] = savevq
    for u in range(0, U0): interval(u)
    Nl = {m: min([Ns[u] for u in range(U0, 27) if u % 4 == m and Ns[u] is not None] or [0]) for m in range(4)}
    A("s_mov_b32 s70, 0")
    A("L_lloop:")
    for u in range(U0, U0+4): interval(u, nfix=Nl[u % 4])
    A("s_add_u32 s70, s70, 1")
    A(f"s_cmp_lt_u32 s70, {(27-U0)//4}")
    A("s_cbranch_scc1 L_lloop")
    saveL = list(A.L)
    for u in range(U0+4, 27): interval(u, nfix=Nl[u % 4])
    A.L = saveL
    for u in range(27, 32):
        interval(u)
        if opt.otouch and u == opt.otouch:
            A("s_add_u32 s20, s8, s28")
            A("s_addc_u32 s21, s9, 0")
            A(f"s_mov_b32 s22, {XBATCH}")
            A("s_mov_b32 s23, 0x20000")
            A("s_lshr_b32 s40, s34, 1")
            A("s_and_b32 s41, s34, 1")
            A("v_and_b32 v11, 15, v0")
            A("v_and_b32 v13, 1, v11")
            A("v_lshrrev_b32 v14, 1, v11")
            A("v_lshl_add_u32 v13, v14, 4, v13")
            A("s_lshl_b32 s40, s40, 7")
            A("s_add_u32 s40, s40, s25")
            A("v_add_u32 v13, s40, v13")
            A("v_lshrrev_b32 v14, 4, v0")
            A("v_lshl_add_u32 v13, v14, 2, v13")
            A("v_lshlrev_b32 v13, 10, v13")
            A("s_lshl_b32 s41, s41, 5")
            A("s_add_u32 s41, s41, s26")
            A("s_lshl_b32 s41, s41, 1")
            A("v_add_u32 v13, s41, v13")
            A(f"buffer_load_dword v14, v13, s[20:23], 0 offen{opt.otpol}")
    A("L_end:")
    A("s_endpgm")

    A(".p2align 12" if opt.pads else ".p2align 6")
    A("L_page0:")
    if opt.skip: A(f".fill {opt.skip//4}, 4, 0xBF800000")
    A("L_compute:")
    if opt.cprio: A(f"s_setprio {opt.cprio}")
    if opt.cpf:
        A("s_getpc_b64 s[60:61]")
        A("L_pc:")
        A("v_lshlrev_b32 v28, 7, v0")
        A("s_lshl_b32 s62, s24, 13")
        A("v_add_u32 v28, s62, v28")
        A("s_mov_b32 s62, L_codeend-L_pc-4")
        A("v_min_u32 v28, s62, v28")
        A("v_mov_b32 v29, s61")
        A("v_add_co_u32 v28, vcc, s60, v28")
        A("s_nop 1")
        A("v_addc_co_u32 v29, vcc, 0, v29, vcc")
        A("global_load_dword v9, v[28:29], off")
    A("s_lshr_b32 s34, s24, 1")
    A("s_and_b32 s35, s24, 1")
    A("v_lshrrev_b32 v10, 4, v0")
    A("v_and_b32 v11, 15, v0")
    A("v_lshrrev_b32 v12, 2, v11")
    A("v_lshl_add_u32 v12, v10, 3, v12")
    A("v_lshlrev_b32 v12, 7, v12")
    A("v_and_b32 v13, 3, v11")
    A("v_lshl_add_u32 v12, v13, 3, v12")
    A("v_lshrrev_b32 v13, 3, v11")
    A("v_and_b32 v14, 1, v10")
    A("v_lshl_or_b32 v13, v14, 1, v13")
    A("s_lshl_b32 s36, s35, 1")
    for p in range(2):
        A(f"s_add_u32 s37, s36, {p}")
        A("v_xor_b32 v14, s37, v13")
        A(f"v_lshl_add_u32 v{V_W[p]}, v14, 5, v12")
    A("s_lshl_b32 s36, s34, 4")
    def xaddr(dst, Rreg):
        A(f"v_lshrrev_b32 v15, 3, v{Rreg}")
        A(f"v_lshlrev_b32 v15, 10, v15")
        A(f"v_and_b32 v16, 7, v{Rreg}")
        A(f"v_lshl_add_u32 v15, v16, 6, v15")
        A(f"v_bfe_u32 v16, v{Rreg}, 2, 1")
        A(f"v_lshlrev_b32 v16, 1, v16")
        A(f"v_xor_b32 v16, v16, v10")
        A(f"v_lshl_add_u32 v15, v16, 4, v15")
        A(f"v_add_u32 v{dst}, {XBASE}, v15")
    A("v_add_u32 v13, s36, v11")
    xaddr(V_X0, 13)
    A("v_add_u32 v13, 2, v13")
    xaddr(17, 13)
    A("v_and_b32 v16, 1, v13")
    A("v_lshlrev_b32 v16, 6, v16")
    A("v_lshl_add_u32 v16, v10, 4, v16")
    A(f"v_add_u32 v16, {XBASE+32768}, v16")
    A("v_cmp_le_u32 vcc, 32, v13")
    for q in range(4):
        A(f"v_add_u32 v18, {q*4096}, v17")
        A(f"v_add_u32 v19, {q*128}, v16")
        A(f"v_cndmask_b32 v{V_X1[q]}, v18, v19, vcc")
    A("v_and_b32 v13, 1, v11")
    A("v_lshrrev_b32 v14, 1, v11")
    A("v_lshl_add_u32 v13, v14, 4, v13")
    A("s_lshl_b32 s36, s34, 7")
    A("s_add_u32 s36, s36, s25")
    A("v_add_u32 v13, s36, v13")
    A("v_lshlrev_b32 v13, 10, v13")
    A("v_and_b32 v14, 1, v10")
    A("v_lshlrev_b32 v14, 5, v14")
    A("v_lshrrev_b32 v15, 1, v10")
    A("v_lshl_add_u32 v14, v15, 4, v14")
    A("s_lshl_b32 s36, s35, 5")
    A("s_add_u32 s36, s36, s26")
    A("s_lshl_b32 s36, s36, 1")
    A("v_add_u32 v13, s36, v13")
    A(f"v_add_u32 v{V_OUT}, v13, v14")
    if opt.full:
        A("v_and_b32 v13, 1, v10")
        A("v_lshlrev_b32 v13, 1, v13")
        A("v_lshrrev_b32 v14, 1, v10")
        A("v_or_b32 v13, v13, v14")
        A("s_lshl_b32 s43, s35, 2")
        A("v_add_u32 v13, s43, v13")
        A("v_and_b32 v14, 7, v11")
        A("v_xor_b32 v13, v13, v14")
        A("v_lshlrev_b32 v13, 4, v13")
        A("v_lshl_add_u32 v13, v11, 7, v13")
        A("s_lshl_b32 s43, s34, 14")
        A("v_add_u32 v28, s43, v13")
        A("v_lshrrev_b32 v13, 3, v0")
        A("v_and_b32 v14, 7, v0")
        A("v_xor_b32 v15, v13, v14")
        A("v_lshlrev_b32 v15, 4, v15")
        A("s_lshl_b32 s21, s35, 3")
        A("v_add_u32 v13, s21, v13")
        A("v_lshl_add_u32 v15, v13, 7, v15")
        A("v_add_u32 v29, s43, v15")
        A("v_and_b32 v15, 1, v13")
        A("v_lshrrev_b32 v16, 1, v13")
        A("v_lshl_add_u32 v15, v16, 4, v15")
        A("s_lshl_b32 s43, s34, 7")
        A("s_add_u32 s43, s43, s25")
        A("v_add_u32 v15, s43, v15")
        A("v_lshlrev_b32 v15, 10, v15")
        A("v_lshl_add_u32 v15, v14, 4, v15")
        A("s_lshl_b32 s43, s26, 1")
        A(f"v_add_u32 v{V_OUT}, s43, v15")
    if opt.mzero:
        for r in range(4): A(f"v_mov_b32 v{32+r}, 0")
        A("s_nop 1")
        for b in range(8):
            A(f"v_mfma_f32_32x32x16_bf16 v[{ACC0+16*b}:{ACC0+16*b+15}], v[32:35], v[32:35], 0")
    else:
        for r in range(128):
            A(f"v_mov_b32 v{ACC0+r}, 0")
    A(f"s_mov_b32 s22, {XBATCH}")
    A("s_mov_b32 s23, 0x20000")
    A(f"s_mov_b32 s{S_K}, 0")
    A(f"s_mov_b32 s{S_XD}, {XBUF}")
    A(f"v_add_u32 v30, {2*WUNIT}, v{V_W[0]}")
    A(f"v_add_u32 v31, {2*WUNIT}, v{V_W[1]}")
    A("s_mov_b32 s36, 0x4038aa3b")
    A("s_mov_b32 s37, 0x4038aa3b")
    A("s_mov_b32 s38, 0xbfb8aa3b")
    A("s_mov_b32 s39, 0xbfb8aa3b")
    A("s_mov_b32 s42, 0x7fffffff")
    A("s_waitcnt lgkmcnt(0)")
    A("s_add_u32 s20, s8, s28")
    A("s_addc_u32 s21, s9, 0")
    if opt.pads:
        A("s_mov_b64 vcc, -1")
        for k in range(NPADS):
            A(f"s_cmp_eq_u32 s24, {k}")
            A(f"s_cbranch_scc1 L_pad{k}")
        A("L_back:")
        A("s_mov_b64 vcc, 0")
    if opt.touch:
        A(f"buffer_load_dword v9, v{V_OUT}, s[20:23], 0 offen")
    ds = DS(A, opt.wmerge)
    VW2 = [30, 31]
    def wreads(phi_next):
        p = phi_next & 1; half = (phi_next >> 1) & 1; st = phi_next & 1
        vw = VW2[p] if (phi_next >> 2) & 1 else V_W[p]
        out = []
        for tap in range(5):
            for h in range(2):
                r = WF(st, tap) + 2*h
                off = half*WUNIT + tap*4096 + h*512
                out.append((f"ds_read_b64_tr_b16 a[{r}:{r+1}], v{vw} offset:{off}", [('a', r), ('a', r+1)]))
        return out
    def xread(q, ks=0):
        r = XF(q)
        regs = [('a', r+i) for i in range(4)]
        if q < 8:
            return (f"ds_read_b128 a[{r}:{r+3}], v{V_X0} offset:{q*4096 + ks*512}", regs)
        return (f"ds_read_b128 a[{r}:{r+3}], v{V_X1[q-8]} offset:{ks*512}", regs)

    def mfma(a, wf, xf):
        ds.need([('a', wf+i) for i in range(4)] + [('a', xf+i) for i in range(4)])
        A(f"v_mfma_f32_16x16x32_bf16 v[{a}:{a+3}], {areg(wf)}, {areg(xf)}, v[{a}:{a+3}]")
        ds.now += 1

    def phase(phi, wnext=True, xreload=False, barrier=False, extra=None):
        nb = phi & 3; st = phi & 1
        A(f"; ---- phase {phi}")
        if barrier:
            if opt.kstamp:
                A("s_memtime s[60:61]")
            if opt.spin.startswith('pro1') and phi == 1:
                A("s_memrealtime s[72:73]")
            ds.drain()
            if opt.spin.startswith('pro1') and phi == 1:
                A(f"s_cmp_eq_u32 s{S_K}, 1")
                A("s_cselect_b32 s74, s72, s74")
            if opt.kstamp:
                A(f"s_lshl_b32 s62, s{S_K}, 2")
                A(f"s_add_u32 m0, s62, {(phi & 7) >> 1}")
                A("s_nop 0")
                A("v_writelane_b32 v9, s60, m0")
            if not opt.nobar: A("s_barrier")
            if opt.kstamp:
                A("s_memtime s[60:61]")
                A("s_waitcnt lgkmcnt(0)")
                A("s_add_u32 m0, m0, 32")
                A("s_nop 0")
                A("v_writelane_b32 v9, s60, m0")
        post = {n: [] for n in range(40)}
        order = []
        for j in range(8):
            taps = list(range(5))
            if opt.snake and j % 2 == 1: taps.reverse()
            for tap in taps: order.append((j, tap))
        if wnext:
            for i, rd in enumerate(wreads(phi+1)):
                post[(5*(i//2)+4) if opt.dsb else 2*i].append(rd)
        if xreload:
            for q in range(12):
                lastn = max(n for n, (j, tap) in enumerate(order) if j + tap == q)
                if opt.dsb: lastn = 5*(lastn//5) + 4
                post[lastn].append(xread(q, ((phi+1) >> 2) & 1))
        if opt.dsb and extra:
            ex2 = {}
            for n, v in extra.items(): ex2.setdefault(min(5*(n//5)+4, 39) if opt.dsb > 1 else n, []).extend(v)
            extra = ex2
        for n, (j, tap) in enumerate(order):
            mfma(acc(j, nb), WF(st, tap), XF(j+tap))
            for (t, regs) in post[n]:
                if opt.nods: continue
                ds.issue(t, regs)
            if extra and n in extra:
                for t in extra[n]: A(t)

    groups = [int(g) for g in opt.groups.split(',')] if opt.groups else None
    assert groups
    NIT = 7
    xupd = {3: [f"v_add_u32 v{V_X0}, s{S_XD}, v{V_X0}"],
            7: [f"v_add_u32 v{V_X1[0]}, s{S_XD}, v{V_X1[0]}"],
            23: [f"v_add_u32 v{V_X1[1]}, s{S_XD}, v{V_X1[1]}"],
            27: [f"v_add_u32 v{V_X1[2]}, s{S_XD}, v{V_X1[2]}"],
            31: [f"v_add_u32 v{V_X1[3]}, s{S_XD}, v{V_X1[3]}"],
            35: [f"s_sub_u32 s{S_XD}, 0, s{S_XD}"]}
    def body():
        phase(0)
        phase(1, barrier=True)
        phase(2)
        phase(3, barrier=True, xreload=True)
        phase(4)
        phase(5, barrier=True, extra=xupd)
        phase(6, extra={25: [f"s_add_u32 s{S_K}, s{S_K}, 1"]})
        phase(7, barrier=True, xreload=True, extra={33: [f"s_cmp_lt_u32 s{S_K}, {NIT}"]})
    saveL = list(A.L)
    ds.q = []; ds.t = []; body(); Q1, T1 = ds.getq()
    body(); Q2, T2 = ds.getq()
    assert Q1 == Q2 and T1 == T2, (Q1, Q2)
    A.L = saveL
    if opt.fstamp:
        A("s_memtime s[60:61]")
        A("s_waitcnt lgkmcnt(0)")
        A("v_writelane_b32 v9, s60, 60")
        A("v_writelane_b32 v9, s44, 61")
    if opt.xsplit: A("s_waitcnt vmcnt(0)")
    A("s_barrier")
    if opt.stamp:
        A("s_memtime s[50:51]")
        A("s_memrealtime s[48:49]")
        A("s_waitcnt lgkmcnt(0)")
    if opt.spin:
        A("s_memrealtime s[66:67]")
        A("s_waitcnt lgkmcnt(0)")
    wr = wreads(0)
    order = []
    for tap in range(5):
        order.append(xread(tap)); order += wr[2*tap:2*tap+2]
    for q in range(5, 12): order.append(xread(q))
    tail = [o for o in order if set(o[1]) in Q1]
    head = [o for o in order if set(o[1]) not in Q1]
    tail.sort(key=lambda o: Q1.index(set(o[1])))
    assert len(tail) == len(Q1)
    ds.q = []; ds.t = []
    for k, (t, regs) in enumerate(head + tail):
        if len(ds.q) >= 14: ds.wait_n(8)
        ds.issue(t, regs)
    ds.wait_n(len(Q1))
    ds.setq(Q1, T1)
    A(".p2align 6")
    A("L_cloop:")
    body()
    A("s_cbranch_scc1 L_cloop")
    A("; @@final")
    A("L_final:")
    if opt.spin.startswith('fin'):
        A("s_memrealtime s[76:77]")
        ds.drain()
    assert ds.getq()[0] == Q1

    TB = 10
    def epi_ops(j, PB):
        outs = []
        for p in range(2):
            for i in range(4):
                outs.append((acc(j, p) + i, acc(j, 2+p) + i, TB + 4*p + i))
        ops = []
        for (f, g, t) in outs: ops.append((4, f"v_mul_f32 v{t}, s36, v{f}"))
        for (f, g, t) in outs: ops.append((4, f"v_mul_f32 v{g}, s38, v{g}"))
        for (f, g, t) in outs: ops.append((8, f"v_exp_f32 v{t}, -|v{t}|"))
        for (f, g, t) in outs: ops.append((8, f"v_exp_f32 v{g}, v{g}"))
        for (f, g, t) in outs: ops.append((4, f"v_bfi_b32 v{f}, s42, 1.0, v{f}"))
        for (f, g, t) in outs: ops.append((4, f"v_fmac_f32 v{f}, v{t}, v{f}"))
        for (f, g, t) in outs: ops.append((4, f"v_fmac_f32 v{f}, v{g}, v{f}"))
        for (f, g, t) in outs: ops.append((8, f"v_rcp_f32 v{f}, v{f}"))
        for (f, g, t) in outs: ops.append((4, f"v_fma_f32 v{t}, -v{t}, v{f}, v{f}"))
        for k in range(4): ops.append((4, f"v_cvt_pk_bf16_f32 v{PB+k}, v{TB+2*k}, v{TB+2*k+1}"))
        fin = [(4, f"v_permlane16_swap_b32 v{PB}, v{PB+2}"), (4, f"v_permlane16_swap_b32 v{PB+1}, v{PB+3}")]
        if j >= 2: fin.append((4, f"s_mov_b32 s43, {4096*(j//2)}"))
        so = "0" if j < 2 else "s43"
        fin.append((4, f"buffer_store_dwordx4 v[{PB}:{PB+3}], v{V_OUT}, s[20:23], {so} offen offset:{2048*(j&1)}{opt.spol}"))
        return ops, fin

    tail_js = list(range(8))
    if not groups:
        phase(60); phase(61, barrier=True); phase(62); phase(63, wnext=False)
    else:
        assert sum(groups) == 8
        subs = []
        j0 = 0
        for gi, gsz in enumerate(groups):
            js = list(range(j0, j0+gsz)); j0 += gsz
            for ks in range(2):
                for nb in range(4):
                    subs.append(dict(g=gi, js=js, ks=ks, nb=nb))
        mf = []
        for si, sb in enumerate(subs):
            sb['start'] = len(mf)
            for ji, j in enumerate(sb['js']):
                for tap in (range(4, -1, -1) if (opt.snake and ji % 2 == 1) else range(5)):
                    mf.append(dict(sub=si, acc=acc(j, sb['nb']), tap=tap, xkey=(sb['g'], sb['ks'], j+tap)))
            sb['end'] = len(mf)
        NM = len(mf)
        post = {n: [] for n in range(NM)}
        for si in range(len(subs)-1):
            nx = subs[si+1]
            p = nx['nb'] & 1; half = nx['nb'] >> 1; st = (si+1) & 1
            vw = V_W[p] if nx['ks'] == 0 else VW2[p]
            L = subs[si]['end'] - subs[si]['start']
            k = 0
            for tap in range(5):
                for h in range(2):
                    r = WF(st, tap) + 2*h
                    off = half*WUNIT + tap*4096 + h*512
                    pos = subs[si]['start'] + (k * max(L-4, 10)) // 10
                    pos = min(pos, subs[si]['end']-1)
                    post[pos].append((f"ds_read_b64_tr_b16 a[{r}:{r+1}], v{vw} offset:{off}", [('a', r), ('a', r+1)]))
                    k += 1
        first = {}; last = {}
        for n, m in enumerate(mf):
            first.setdefault(m['xkey'], n); last[m['xkey']] = n
        slot_of = {}; slot_free = [-1]*12
        init = [k for k in first if k[0] == 0 and k[1] == 0]
        for k in init:
            slot_of[k] = k[2]; slot_free[k[2]] = last[k]
        rest = sorted([k for k in first if k not in slot_of], key=lambda k: first[k])
        for k in rest:
            sl = min(range(12), key=lambda i: slot_free[i])
            pos = slot_free[sl]
            pos = max(pos, first[k]-60, 0)
            assert first[k] - pos >= 14, (k, first[k], pos)
            slot_of[k] = sl; slot_free[sl] = last[k]
            g, ks, q = k
            r = XF(sl); regs = [('a', r+i) for i in range(4)]
            if q < 8: t = f"ds_read_b128 a[{r}:{r+3}], v{V_X0} offset:{q*4096 + ks*512}"
            else: t = f"ds_read_b128 a[{r}:{r+3}], v{V_X1[q-8]} offset:{ks*512}"
            if opt.lsched:
                p2 = pos
                while post[p2] and first[k] - (p2+1) >= 14: p2 += 1
                if not post[p2]: pos = p2
            post[pos].append((t, regs))
        bar_at = {}
        for si, sb in enumerate(subs):
            if sb['g'] == 0 and (sb['ks'], sb['nb']) in [(0, 2), (1, 0), (1, 2)]:
                bar_at[subs[si-1]['start']] = True
        fill = {n: [] for n in range(NM)}
        j0 = 0
        for gi, gsz in enumerate(groups[:-1]):
            js = list(range(j0, j0+gsz)); j0 += gsz
            g0 = min(sb['start'] for sb in subs if sb['g'] == gi+1) + 2
            g1 = max(sb['end'] for sb in subs if sb['g'] == gi+1)
            if not opt.lsched:
                ops = []
                pendfin = []
                for idx, j in enumerate(js):
                    o, fin = epi_ops(j, 20 + 4*(j & 1))
                    ops += o[:2] + pendfin + o[2:]
                    pendfin = fin
                ops += [(4, "s_nop 1")] + pendfin
                total = sum(c for c, _ in ops)
                used = {n: 4*len(post[n]) + (8 if n in bar_at else 0) for n in range(g0, g1)}
                free = sum(max(0, 8-used[n]) for n in range(g0, g1))
                extra = max(0, total - free)
                i = 0; carry = 0.0
                for n in range(g0, g1):
                    budget = max(0, 8-used[n]) + extra/(g1-g0) + carry
                    while i < len(ops) and ops[i][0] <= budget + 1e-9:
                        fill[n].append(ops[i][1]); budget -= ops[i][0]; i += 1
                    carry = min(budget, 8)
                while i < len(ops):
                    fill[g1-1].append(ops[i][1]); i += 1
                if opt.verbose: sys.stderr.write(f"group {gi}: valu {total} free {free} extra {extra}\n")
            else:
                ops = []
                def add(text, cost, deps, prio):
                    ops.append(dict(text=text, cost=cost, deps=deps, prio=prio, gap=None)); return len(ops)-1
                last_cvt = {}; last_store = {}
                for idx, j in enumerate(js):
                    TBj = 10 if idx % 2 == 0 else 32
                    PB = 20 + 4*(j & 1)
                    outs = []
                    for p in range(2):
                        for i in range(4): outs.append((acc(j, p) + i, acc(j, 2+p) + i, TBj + 4*p + i))
                    fin_t = []
                    for oi, (f, g, t) in enumerate(outs):
                        war = [(last_cvt[(idx % 2, oi//2)], 1)] if (idx % 2, oi//2) in last_cvt else []
                        pr = lambda st: (idx, st, oi)
                        m1 = add(f"v_mul_f32 v{t}, s36, v{f}", 4, war, pr(0))
                        m2 = add(f"v_mul_f32 v{g}, s38, v{g}", 4, [], pr(0))
                        e1 = add(f"v_exp_f32 v{t}, -|v{t}|", 8, [(m1, 1)], pr(1))
                        e2 = add(f"v_exp_f32 v{g}, v{g}", 8, [(m2, 1)], pr(1))
                        b1 = add(f"v_bfi_b32 v{f}, s42, 1.0, v{f}", 4, [(m1, 1)], pr(1))
                        f1 = add(f"v_fmac_f32 v{f}, v{t}, v{f}", 4, [(e1, 1), (b1, 1)], pr(2))
                        f2 = add(f"v_fmac_f32 v{f}, v{g}, v{f}", 4, [(e2, 1), (f1, 1)], pr(3))
                        r1 = add(f"v_rcp_f32 v{f}, v{f}", 8, [(f2, 1)], pr(4))
                        f3 = add(f"v_fma_f32 v{t}, -v{t}, v{f}, v{f}", 4, [(r1, 1)], pr(5))
                        fin_t.append(f3)
                    cv = []
                    for k in range(4):
                        dep = [(fin_t[2*k], 1), (fin_t[2*k+1], 1)]
                        if idx % 2 in last_store: dep.append((last_store[idx % 2], 2))
                        c = add(f"v_cvt_pk_bf16_f32 v{PB+k}, v{TBj+2*k}, v{TBj+2*k+1}", 4, dep, (idx, 6, k))
                        last_cvt[(idx % 2, k)] = c; cv.append(c)
                    s1 = add(f"v_permlane16_swap_b32 v{PB}, v{PB+2}", 4, [(cv[0], 2), (cv[2], 2)], (idx, 7, 0))
                    s2 = add(f"v_permlane16_swap_b32 v{PB+1}, v{PB+3}", 4, [(cv[1], 2), (cv[3], 2)], (idx, 7, 1))
                    so = "0" if j < 2 else "s43"
                    txt = f"buffer_store_dwordx4 v[{PB}:{PB+3}], v{V_OUT}, s[20:23], {so} offen offset:{2048*(j&1)}{opt.spol}"
                    if j >= 2: txt = f"s_mov_b32 s43, {4096*(j//2)}\n" + txt
                    st = add(txt, 4 if j < 2 else 8, [(s1, 1), (s2, 1)], (idx, 8, 0))
                    last_store[idx % 2] = st
                ends = {sb['end']-1 for sb in subs}
                cap = {n: 8 - 4*len(post[n]) - (4 if n in ends else 0) for n in range(g0, g1)}
                slack = opt.lsched - 1
                for n in range(g0, g1):
                    c = cap[n] + slack
                    while True:
                        ready = [o for o in ops if o['gap'] is None and o['cost'] <= c and
                                 all(ops[d]['gap'] is not None and ops[d]['gap'] + mg <= n for d, mg in o['deps'])]
                        if not ready: break
                        tr = [o for o in ready if o['cost'] == 8]
                        pick = min(tr or ready, key=lambda o: o['prio'])
                        pick['gap'] = n; fill[n].append(pick['text']); c -= pick['cost']
                left = [o for o in ops if o['gap'] is None]
                if opt.verbose: sys.stderr.write(f"group {gi}: {len(ops)} ops, {len(left)} left over\n")
                if left:
                    order_ = sorted(left, key=lambda o: o['prio'])
                    tailfill = []
                    for o in order_:
                        if o['text'].startswith('v_permlane'): tailfill.append("s_nop 1")
                        tailfill.append(o['text'])
                        if o['text'].startswith(('v_exp', 'v_rcp')): tailfill.append("s_nop 0")
                    fill[g1-1] += tailfill
            for j in js: tail_js.remove(j)
        A("; ---- final chunk")
        def fstamp(idx):
            if opt.fstamp:
                A("s_memtime s[60:61]")
                ds.drain()
                A(f"v_writelane_b32 v9, s60, {idx}")
        fstamp(0)
        fi = 1
        for n, m in enumerate(mf):
            if opt.fstamp and n > 0 and n == subs[m['sub']]['start']:
                fstamp(fi); fi += 1
            if n in bar_at:
                ds.drain()
                if not opt.nobar: A("s_barrier")
            st = m['sub'] & 1
            mfma(m['acc'], WF(st, m['tap']), XF(slot_of[m['xkey']]))
            for (t, regs) in post[n]: ds.issue(t, regs)
            for t in fill[n]:
                for tt in t.split("\n"): A(tt)
            if opt.tailshift and 100 <= n < 100 + opt.tailshift: A("s_nop 0")
    if opt.stamp:
        ds.drain()
        A("s_memtime s[52:53]")
        A("s_memrealtime s[54:55]")
        A("s_waitcnt lgkmcnt(0)")
    if opt.spin:
        ds.drain()
        A("s_memrealtime s[68:69]")
        A("s_waitcnt lgkmcnt(0)")
    A("; ---- epilogue")
    A("s_nop 7")
    def epi_math(j, PB):
        pairs = []
        for p in range(2):
            for h in range(2):
                f = acc(j, p) + 2*h; g = acc(j, 2+p) + 2*h
                pairs.append((f, g, TB + 2*(2*p+h), PB + 2*p + h))
        for (f, g, t, o) in pairs: A(f"v_pk_mul_f32 v[{t}:{t+1}], v[{f}:{f+1}], s[36:37]")
        for (f, g, t, o) in pairs: A(f"v_pk_mul_f32 v[{g}:{g+1}], v[{g}:{g+1}], s[38:39]")
        for (f, g, t, o) in pairs:
            A(f"v_exp_f32 v{t}, -|v{t}|"); A(f"v_exp_f32 v{t+1}, -|v{t+1}|")
        for (f, g, t, o) in pairs:
            A(f"v_exp_f32 v{g}, v{g}"); A(f"v_exp_f32 v{g+1}, v{g+1}")
        for (f, g, t, o) in pairs:
            A(f"v_bfi_b32 v{f}, s42, 1.0, v{f}"); A(f"v_bfi_b32 v{f+1}, s42, 1.0, v{f+1}")
        for (f, g, t, o) in pairs: A(f"v_pk_fma_f32 v[{f}:{f+1}], v[{t}:{t+1}], v[{f}:{f+1}], v[{f}:{f+1}]")
        for (f, g, t, o) in pairs: A(f"v_pk_fma_f32 v[{f}:{f+1}], v[{g}:{g+1}], v[{f}:{f+1}], v[{f}:{f+1}]")
        for (f, g, t, o) in pairs:
            A(f"v_rcp_f32 v{f}, v{f}"); A(f"v_rcp_f32 v{f+1}, v{f+1}")
        for (f, g, t, o) in pairs: A(f"v_pk_fma_f32 v[{t}:{t+1}], v[{t}:{t+1}], v[{f}:{f+1}], v[{f}:{f+1}] neg_lo:[1,0,0] neg_hi:[1,0,0]")
        for (f, g, t, o) in pairs: A(f"v_cvt_pk_bf16_f32 v{o}, v{t}, v{t+1}")
        A("s_nop 1")
        A(f"v_permlane16_swap_b32 v{PB}, v{PB+2}")
        A(f"v_permlane16_swap_b32 v{PB+1}, v{PB+3}")
    def gstore(j, PB):
        if j >= 2: A(f"s_mov_b32 s43, {4096*(j//2)}")
        so = "0" if j < 2 else "s43"
        A(f"buffer_store_dwordx4 v[{PB}:{PB+3}], v{V_OUT}, s[20:23], {so} offen offset:{2048*(j&1)}{opt.spol}")
    if not opt.full:
        for j in tail_js:
            PB = 20 + 4*(j & 1)
            epi_math(j, PB)
            gstore(j, PB)
    else:
        gs = opt.full
        pend = []
        for j0 in range(0, 8, gs):
            for j in range(j0, j0+gs):
                PB = 20 + 4*(j & 1)
                epi_math(j, PB)
                A(f"ds_write_b128 v28, v[{PB}:{PB+3}] offset:{j*2048}")
                if pend:
                    jj = pend.pop(0)
                    A("s_waitcnt lgkmcnt(1)")
                    gstore(jj, 32 + 4*(jj & 1))
                    if pend: A(f"ds_read_b128 v[{32+4*(pend[0]&1)}:{35+4*(pend[0]&1)}], v29 offset:{pend[0]*2048}")
            while pend:
                jj = pend.pop(0)
                A("s_waitcnt lgkmcnt(0)")
                gstore(jj, 32 + 4*(jj & 1))
                if pend: A(f"ds_read_b128 v[{32+4*(pend[0]&1)}:{35+4*(pend[0]&1)}], v29 offset:{pend[0]*2048}")
            A("s_waitcnt lgkmcnt(0)")
            A("s_barrier")
            pend = list(range(j0, j0+gs))
            A(f"ds_read_b128 v[{32+4*(pend[0]&1)}:{35+4*(pend[0]&1)}], v29 offset:{pend[0]*2048}")
        while pend:
            jj = pend.pop(0)
            if pend: A(f"ds_read_b128 v[{32+4*(pend[0]&1)}:{35+4*(pend[0]&1)}], v29 offset:{pend[0]*2048}")
            A("s_waitcnt lgkmcnt(%d)" % (1 if pend else 0))
            gstore(jj, 32 + 4*(jj & 1))
            A("s_nop 0")
    if opt.spin:
        A("s_memrealtime s[64:65]")
        A("s_waitcnt lgkmcnt(0)")
        A("s_waitcnt vmcnt(0)")
        A("s_memrealtime s[70:71]")
        A("s_waitcnt lgkmcnt(0)")
        which, mult = opt.spin.split(',')
        a, b = {'pro': (62, 66), 'main': (66, 68), 'epi': (68, 70), 'epiv': (68, 64), 'drain': (64, 70), 'none': (70, 70), 'pro1': (62, 74), 'fin': (76, 70)}[which]
        A(f"s_sub_u32 s43, s{b}, s{a}")
        A(f"s_mul_i32 s43, s43, {mult}")
        A("s_add_u32 s43, s43, s70")
        A("L_spin:")
        A("s_memrealtime s[60:61]")
        A("s_waitcnt lgkmcnt(0)")
        A("s_sub_u32 s42, s60, s43")
        A("s_cmp_lt_i32 s42, 0")
        A("s_cbranch_scc1 L_spin")
    if opt.stamp:
        A("s_waitcnt vmcnt(0)")
        A("s_memtime s[56:57]")
        A("s_memrealtime s[58:59]")
        A("s_waitcnt lgkmcnt(0)")
        if opt.dbgstamp:
            A("s_sub_u32 s60, s50, s44")
            A("s_sub_u32 s61, s48, s46")
            A("s_sub_u32 s62, s52, s50")
            A("s_sub_u32 s63, s54, s48")
            A("s_sub_u32 s64, s56, s52")
            A("s_sub_u32 s65, s56, s44")
            A("s_sub_u32 s66, s58, s46")
            A("s_mov_b32 s67, s46")
            A("s_cmp_lg_u32 s24, 0")
            A("s_cbranch_scc1 L_nostamp")
            A("s_mov_b32 s43, 0")
            A("s_cmp_eq_u32 s2, 0")
            A("s_cbranch_scc1 L_dostamp")
            A("s_mov_b32 s43, 32")
            A("s_cmp_eq_u32 s2, 133")
            A("s_cbranch_scc0 L_nostamp")
            A("L_dostamp:")
            A("s_mov_b32 s68, s40"); A("s_mov_b32 s69, s41"); A("s_mov_b32 s70, 256"); A("s_mov_b32 s71, 0x20000")
            A("v_mov_b32 v9, s43")
            A("s_mov_b64 exec, 1")
            for i in range(2):
                for k in range(4): A(f"v_mov_b32 v{12+k}, s{60+4*i+k}")
                A(f"buffer_store_dwordx4 v[12:15], v9, s[68:71], 0 offen offset:{16*i}")
                A("s_nop 1")
            A("L_nostamp:")
        else:
            A("s_mov_b32 s60, s40"); A("s_mov_b32 s61, s41"); A("s_mov_b32 s62, 0x10000000"); A("s_mov_b32 s63, 0x20000")
            if opt.kstamp or opt.fstamp:
                A("s_lshl_b32 s43, s2, 2"); A("s_add_u32 s43, s43, s24"); A("s_lshl_b32 s43, s43, 8")
                A("s_add_u32 s43, s43, 0x20000")
                A("v_lshlrev_b32 v12, 2, v0")
                A("v_add_u32 v12, s43, v12")
                A("buffer_store_dword v9, v12, s[60:63], 0 offen")
                A("s_nop 1")
            A("s_lshl_b32 s43, s2, 2"); A("s_add_u32 s43, s43, s24"); A("s_lshl_b32 s43, s43, 6")
            A("v_mov_b32 v9, s43")
            A("s_mov_b64 exec, 1")
            for i in range(4):
                for k in range(4): A(f"v_mov_b32 v{12+k}, s{44+4*i+k}")
                A(f"buffer_store_dwordx4 v[12:15], v9, s[60:63], 0 offen offset:{16*i}")
                A("s_nop 1")
    A("s_endpgm")
    A("L_codeend:")

    A('.section .rodata,"a"')
    A(".p2align 6")
    A(f".amdhsa_kernel {NAME}")
    A("  .amdhsa_next_free_vgpr 256")
    A("  .amdhsa_next_free_sgpr 96")
    A("  .amdhsa_accum_offset 168")
    A("  .amdhsa_group_segment_fixed_size 0")
    A("  .amdhsa_kernarg_size 40")
    A("  .amdhsa_user_sgpr_count 2")
    A("  .amdhsa_user_sgpr_kernarg_segment_ptr 1")
    A("  .amdhsa_system_sgpr_workgroup_id_x 1")
    A("  .amdhsa_float_denorm_mode_32 3")
    A(".end_amdhsa_kernel")
    if opt.meta:
        A(f""".amdgpu_metadata
---
amdhsa.version: [1, 2]
amdhsa.kernels:
  - .name: {NAME}
    .symbol: {NAME}.kd
    .kernarg_segment_size: 40
    .kernarg_segment_align: 8
    .group_segment_fixed_size: 0
    .private_segment_fixed_size: 0
    .wavefront_size: 64
    .sgpr_count: 96
    .vgpr_count: 256
    .max_flat_workgroup_size: 512
    .args:
      - {{.name: kernargs, .size: 40, .offset: 0, .value_kind: by_value}}
...
.end_amdgpu_metadata""")
    if opt.verbose: sys.stderr.write(f"loader waits: {Ns}\nloop: {Nl}\n")
    return A.text()

def parse(argv=None):
    ap = argparse.ArgumentParser()
    ap.add_argument("-o", default="/dev/stdout")
    for o in ["meta", "stamp", "dbgstamp", "nods", "nodma", "nodmaw", "nodmax", "nobar", "verbose", "lstamp", "touch", "cpf", "kstamp", "mzero", "snake", "fstamp", "pads", "pad8", "xsplit"]:
        ap.add_argument("--"+o, action="store_true")
    ap.add_argument("--spin", default="")
    ap.add_argument("--sched", default="")
    ap.add_argument("--lsched", type=int, default=0)
    ap.add_argument("--otouch", type=int, default=0)
    ap.add_argument("--otpol", default="nt")
    ap.add_argument("--tailshift", type=int, default=0)
    ap.add_argument("--skip", type=int, default=0)
    ap.add_argument("--wmerge", type=int, default=0)
    ap.add_argument("--align", default="")
    ap.add_argument("--dsb", type=int, default=0)
    ap.add_argument("--groups", default="")
    ap.add_argument("--full", type=int, default=0)
    ap.add_argument("--rot", default="")
    ap.add_argument("--order", default="xwx")
    ap.add_argument("--cprio", type=int, default=0)
    ap.add_argument("--lprio", type=int, default=0)
    ap.add_argument("--npre", type=int, default=3)
    ap.add_argument("--wpol", default="")
    ap.add_argument("--xpol", default="")
    ap.add_argument("--spol", default="nt")
    opt = ap.parse_args(argv)
    for k in ["wpol", "xpol", "spol", "otpol"]:
        v = getattr(opt, k)
        if v: setattr(opt, k, " " + v)
    return opt

def offsets(text):
    import subprocess, tempfile, os, re
    L = text.split("\n")
    start = L.index("L_compute:")
    out = []
    for i, l in enumerate(L):
        if i > start and l and not l.startswith(('.', ';')) and not l.endswith(':') and i < L.index('L_codeend:'):
            out.append(f"LL_{i}:")
        out.append(l)
    d = tempfile.mkdtemp()
    open(d+"/a.s", "w").write("\n".join(out))
    subprocess.check_call(["clang", "-x", "assembler", "-target", "amdgcn-amd-amdhsa", "-mcpu=gfx950", "-c", d+"/a.s", "-o", d+"/a.o"])
    sym = subprocess.check_output(["llvm-readelf", "-s", "--wide", d+"/a.o"]).decode()
    addr = {}
    for line in sym.splitlines():
        p = line.split()
        if len(p) == 8 and p[0].endswith(':'):
            try: addr[p[7]] = int(p[1], 16)
            except ValueError: pass
    base = addr["L_page0"]
    return {int(k[3:]): v - base for k, v in addr.items() if k.startswith("LL_")}, addr

E64_OK = ("v_mul_f32", "v_add_f32", "v_fmac_f32", "v_exp_f32", "v_rcp_f32", "v_add_u32", "v_mov_b32")
def align8(text, first_label, last_marker=None):
    L = text.split("\n")
    tmp = list(L)
    missing = [f"L_pad{m}:" for m in range(NPADS) if f"L_pad{m}:" not in L and any(f"L_pad{m}" in x for x in L)]
    ci = tmp.index("L_codeend:")
    off, addr = offsets("\n".join(tmp[:ci+1] + missing + tmp[ci+1:]))
    idx = sorted(off)
    size = {}
    for a, b in zip(idx, idx[1:]): size[a] = off[b] - off[a]
    size[idx[-1]] = 4
    start = L.index(first_label + ":")
    stop = L.index(last_marker) if last_marker else ci
    par = None
    ins = {}
    cand = None
    nw = nn = 0
    for i in idx:
        if i < start or i >= stop: continue
        if par is None: par = off[i] % 8
        sz = size[i]
        op = L[i].split()[0]
        if sz == 8:
            if par == 4:
                if cand is not None:
                    o = L[cand].split()[0]
                    L[cand] = L[cand].replace(o, o + "_e64", 1); nw += 1
                else:
                    ins[i] = True; nn += 1
                par = 0
            cand = None
        else:
            par ^= 4
            if op in E64_OK and "|" not in L[i] and "0x" not in L[i]:
                cand = i
            if par == 0: cand = None if op not in E64_OK else cand
    for i in sorted(ins, reverse=True): L.insert(i, "s_nop 0")
    sys.stderr.write(f"align8: widened {nw}, nops {nn}\n")
    return "\n".join(L)

def add_pads(text):
    npad = 0
    for bound in range(4096, 8*4096, 4096):
        L = text.split("\n")
        tmp = list(L)
        missing = [f"L_pad{m}:" for m in range(NPADS) if f"L_pad{m}:" not in L]
        ci = tmp.index("L_codeend:")
        off, addr = offsets("\n".join(tmp[:ci+1] + missing + tmp[ci+1:]))
        cand = sorted(i for i, o in off.items() if o >= bound)
        if not cand: break
        i = cand[0]
        if i < L.index("L_cloop:"): continue
        assert i > L.index("; @@final") or ALLOW_LOOP_PAD, "page boundary inside the main loop"
        L[i:i] = [f"L_pad{npad}:", "s_cbranch_vccnz L_back", "s_nop 0"]
        npad += 1
        text = "\n".join(L)
    L = text.split("\n")
    for k in range(npad, NPADS):
        i = L.index(f"s_cbranch_scc1 L_pad{k}")
        del L[i-1:i+1]
    sys.stderr.write(f"pads: {npad}\n")
    return "\n".join(L)

ALLOW_LOOP_PAD = False
if __name__ == "__main__":
    opt = parse()
    t = gen(opt)
    if opt.align == 'all': t = align8(t, "L_cloop")
    if opt.align == 'final': t = align8(t, "L_final")
    if opt.align == 'loop': t = align8(t, "L_cloop", "; @@final")
    if opt.pads: t = add_pads(t)
    open(opt.o, "w").write(t)
```
